```python
import torch

def _softmax(x, axis=-1):
    return torch.softmax(x, dim=axis)
def _gelu(x):
    return torch.nn.functional.gelu(x, approximate="tanh")
def _silu(x):
    return torch.nn.functional.silu(x)
def _sigmoid(x):
    return torch.sigmoid(x)
def _layernorm(x, axis=-1, eps=1e-5):
    m = x.mean(dim=axis, keepdim=True)
    v = x.var(dim=axis, keepdim=True, unbiased=False)
    return (x - m) / torch.sqrt(v + eps)
def _scatter_add(tgt, idx, src, axis=0):
    return tgt.clone().index_add_(axis, idx, src)
def _segment_sum(src, seg, n):
    out = torch.zeros((n,) + src.shape[1:], dtype=src.dtype)
    return out.index_add_(0, seg, src)
def _pad(x, pw):
    flat = tuple(v for pair in reversed(pw) for v in pair)
    return torch.nn.functional.pad(x, flat)

kernel_name = 'recurrent_scan__compressed_kv_cla__geglu_ffn__decode'

def setup_inputs():

    _w = (lambda a: (lambda t: t.to(torch.bfloat16) if t.is_floating_point() else t)(torch.as_tensor(a)))
    def _A_setup():
        B, H, Sq, Sk, D, M = 1, 32, 1, 16384, 128, 512
        Dc = 4 * D
        return {
            "x": _w((lambda *s: torch.randn(*s, dtype=torch.bfloat16) * 0.05)(B, Sq, M)),
            "c_kv": _w((lambda *s: torch.randn(*s, dtype=torch.bfloat16) * 0.8)(B, Sk, Dc)),
            "w_q": _w((lambda *s: torch.randn(*s, dtype=torch.bfloat16) * 1.6)(M, H, D) * (M ** -0.5)),
            "w_uk": _w((lambda *s: torch.randn(*s, dtype=torch.bfloat16) * 1.6)(Dc, H, D) * (Dc ** -0.5)),
            "w_uv": _w((lambda *s: torch.randn(*s, dtype=torch.bfloat16) * 0.8)(Dc, H, D) * (Dc ** -0.5)),
            "w_o": _w((lambda *s: torch.randn(*s, dtype=torch.bfloat16) * 0.8)(H, D, M) * ((H * D) ** -0.5)),
        }
    _A_in = _A_setup()

    def _B_setup():
        B, S, D, F = 1, 1, 512, 1792
        return {
            "x": _w((lambda *s: torch.randn(*s, dtype=torch.bfloat16) * 0.05)(B, S, D)),
            "w_gate": _w((lambda *s: torch.randn(*s, dtype=torch.bfloat16) * 0.2)(D, F)),
            "w_up": _w((lambda *s: torch.randn(*s, dtype=torch.bfloat16) * 0.2)(D, F)),
            "w_down": _w((lambda *s: torch.randn(*s, dtype=torch.bfloat16) * 0.2)(F, D)),
        }
    _B_in = _B_setup()

    return {
        "A_x": _A_in["x"],
        "A_c_kv": _A_in["c_kv"],
        "A_w_q": _A_in["w_q"],
        "A_w_uk": _A_in["w_uk"],
        "A_w_uv": _A_in["w_uv"],
        "A_w_o": _A_in["w_o"],
        "B_x": _B_in["x"],
        "B_w_gate": _B_in["w_gate"],
        "B_w_up": _B_in["w_up"],
        "B_w_down": _B_in["w_down"],
    }

def reference(A_x, A_c_kv, A_w_q, A_w_uk, A_w_uv, A_w_o, B_x, B_w_gate, B_w_up, B_w_down):
    def _A_ref(x, c_kv, w_q, w_uk, w_uv, w_o):
        B, Sq, M = x.shape[0], x.shape[1], x.shape[2]
        Sk = c_kv.shape[1]
        H, D = w_q.shape[1], w_q.shape[2]
        q = torch.einsum("bqm,mhd->bhqd", x, w_q)
        k = torch.einsum("bkc,chd->bhkd", c_kv, w_uk)
        v = torch.einsum("bkc,chd->bhkd", c_kv, w_uv)
        scores = torch.einsum("bhqd,bhkd->bhqk", q, k) * (D ** -0.5)
        off = Sk - Sq
        qi = torch.arange(Sq)[:, None]
        kj = torch.arange(Sk)[None, :]
        cmask = kj <= (qi + off)
        scores = torch.where(cmask[None, None], scores, -1e9)
        p = _softmax(scores, axis=-1)
        ctx = torch.einsum("bhqk,bhkd->bhqd", p, v)
        return torch.einsum("bhqd,hdm->bqm", ctx, w_o)

    def _B_ref(x, w_gate, w_up, w_down):
        return (_gelu(x @ w_gate) * (x @ w_up)) @ w_down

    x = A_x
    xn = _layernorm(x, axis=-1)
    s = _A_ref(xn, A_c_kv, A_w_q, A_w_uk, A_w_uv, A_w_o)
    g = _silu(_B_ref(xn, B_w_gate, B_w_up, B_w_down))
    return x + s * g
```

```python
KN = "recurrent_scan__compressed_kv_cla__geglu_ffn__decode_kernel"
HDR_COMMENT = open("recurrent_scan__compressed_kv_cla__geglu_ffn__decode.s.ref").read().split("; Override launch")[0]
class Asm:
    def __init__(self):
        self.lines = []
        self.nlabel = 0
    def __call__(self, s):
        for l in s.strip("\n").split("\n"):
            self.lines.append("    " + l.strip() if not l.strip().endswith(":") else l.strip())
    def label(self, base="L"):
        self.nlabel += 1
        return "%s_%d" % (base, self.nlabel)
    def text(self):
        return "\n".join(self.lines) + "\n"
def kernel_desc(name, vgpr, sgpr=102, accum=None):
    if accum is None:
        accum = min(256, (vgpr + 3) // 4 * 4)
    return f""".amdhsa_kernel {name}
  .amdhsa_next_free_vgpr {vgpr}
  .amdhsa_next_free_sgpr {sgpr}
  .amdhsa_accum_offset {accum}
  .amdhsa_group_segment_fixed_size 0
  .amdhsa_kernarg_size 104
  .amdhsa_user_sgpr_count 2
  .amdhsa_user_sgpr_kernarg_segment_ptr 1
  .amdhsa_system_sgpr_workgroup_id_x 1
.end_amdhsa_kernel
"""
DOC = """;
"""
def wrap_single(body, grid, block, lds, vgpr, sgpr=102, accum=None, extra_desc=""):
    d = kernel_desc(KN, vgpr, sgpr, accum)
    if extra_desc:
        d = d.replace(".end_amdhsa_kernel", extra_desc + "\n.end_amdhsa_kernel")
    return (HDR_COMMENT + f"; @launch grid=({grid},1,1) block=({block},1,1) lds={lds}\n" + DOC
      + '.amdgcn_target "amdgcn-amd-amdhsa--gfx950"\n.text\n'
      + f".globl {KN}\n.p2align 8\n.type {KN},@function\n{KN}:\n" + body
      + '.section .rodata,"a"\n.p2align 6\n' + d)
def wrap_multi(kernels):
    s = HDR_COMMENT
    for k in kernels:
        s += f"; @launch kernel={k['name']} grid=({k['grid']},1,1) block=({k['block']},1,1) lds={k['lds']}\n"
    s += '.amdgcn_target "amdgcn-amd-amdhsa--gfx950"\n.text\n'
    seen = set()
    for k in kernels:
        if k['name'] in seen: continue
        seen.add(k['name'])
        s += f".globl {k['name']}\n.p2align 8\n.type {k['name']},@function\n{k['name']}:\n" + k['body']
    s += '.section .rodata,"a"\n'
    seen = set()
    for k in kernels:
        if k['name'] in seen: continue
        seen.add(k['name'])
        s += ".p2align 6\n" + kernel_desc(k['name'], k['vgpr'], k.get('sgpr', 102), k.get('accum'))
    return s
```

```python
import re
REG = re.compile(r"\b([vsa])(\d+)\b|\b([vsa])\[(\d+):(\d+)\]|\b(vcc|exec|m0|vcc_lo|vcc_hi|exec_lo|exec_hi)\b")
TRANS = ("v_exp_f32", "v_log_f32", "v_rcp_f32", "v_rsq_f32", "v_sqrt_f32", "v_sin_f32", "v_cos_f32", "v_rcp_iflag_f32")
def regs(op):
    out = set()
    for m in REG.finditer(op):
        if m.group(1): out.add(m.group(1) + m.group(2))
        elif m.group(3):
            for i in range(int(m.group(4)), int(m.group(5)) + 1): out.add(m.group(3) + str(i))
        else:
            n = m.group(6)
            if n.startswith("vcc"): out.add("vcc")
            elif n.startswith("exec"): out.add("exec")
            else: out.add(n)
    return out
def split_ops(s):
    ops = []; depth = 0; cur = ""
    for ch in s:
        if ch == "[": depth += 1
        if ch == "]": depth -= 1
        if ch == "," and depth == 0: ops.append(cur.strip()); cur = ""
        else: cur += ch
    if cur.strip(): ops.append(cur.strip())
    return ops
class I:
    def __init__(self, text):
        self.text = text
        t = text.split(";")[0].strip()
        self.label = t[:-1] if t.endswith(":") else None
        self.op = None; self.dst = set(); self.src = set(); self.cls = None
        self.srcC = set(); self.srcAB = set(); self.slots = 1; self.target = None
        self.storedata = set()
        if self.label is not None or not t or t.startswith("."):
            self.slots = 0; return
        parts = t.split(None, 1)
        op = parts[0]; self.op = op
        rest = parts[1] if len(parts) > 1 else ""
        ops = split_ops(rest)
        if op == "s_nop": self.slots = int(rest, 0) + 1; self.cls = "nop"; return
        if op.startswith("s_cbranch") or op == "s_branch":
            self.cls = "branch"; self.target = rest.strip(); return
        if op.startswith("v_mfma"):
            self.cls = "mfma"; self.dst = regs(ops[0]); self.srcAB = regs(ops[1]) | regs(ops[2]); self.srcC = regs(ops[3])
            self.src = self.srcAB | self.srcC
            self.passes = 8 if "32x32" in op else 4
            return
        if op.startswith("v_"):
            self.cls = "valu"
            self.dpp = "_dpp" in op or "row_" in rest or "quad_perm" in rest
            self.trans = any(op.startswith(x) for x in TRANS)
            self.dot = op.startswith("v_dot")
            self.permlane = op.startswith("v_permlane")
            self.rdlane = op.startswith("v_readlane") or op.startswith("v_readfirstlane")
            if self.permlane:
                self.dst = regs(ops[0]) | regs(ops[1]); self.src = set(self.dst)
            elif op.startswith("v_add_co") or op.startswith("v_sub_co") or op.startswith("v_addc_co") or op.startswith("v_mad_u64"):
                self.dst = regs(ops[0]) | regs(ops[1]); self.src = set().union(*[regs(o) for o in ops[2:]])
            else:
                self.dst = regs(ops[0]); self.src = set().union(*[regs(o) for o in ops[1:]]) if len(ops) > 1 else set()
                if op.startswith("v_fmac") or op.startswith("v_dot2c") or op.startswith("v_writelane") or self.dpp: self.src |= self.dst
                if op.startswith("v_cndmask") and len(ops) == 3: self.src.add("vcc")
            if self.dot:
                self.srcC = regs(ops[3]) if len(ops) > 3 else set(self.dst)
                self.srcAB = regs(ops[1]) | regs(ops[2])
            return
        if op.startswith("ds_"):
            self.cls = "ds"
            if op.startswith("ds_read") or op.startswith("ds_bpermute") or op.startswith("ds_permute") or op.startswith("ds_swizzle") or "_rtn" in op:
                self.dst = regs(ops[0]); self.src = set().union(*[regs(o) for o in ops[1:]])
            else: self.src = set().union(*[regs(o) for o in ops])
            return
        if op.startswith("buffer_") or op.startswith("global_") or op.startswith("flat_"):
            self.cls = "vmem"
            self.ldsdma = ("_lds_" in op) or re.search(r"\blds\b", rest) is not None
            if "load" in op and not self.ldsdma:
                self.dst = regs(ops[0]); self.src = set().union(*[regs(o) for o in ops[1:]])
            else:
                self.src = set().union(*[regs(o) for o in ops]) if ops else set()
                if "store" in op and ("x4" in op or "x3" in op):
                    self.storedata = regs(ops[0]) if op.startswith("buffer_") else regs(ops[1])
                if "atomic" in op and "sc0" in rest: self.dst = regs(ops[0])
            return
        if op.startswith("s_"):
            self.cls = "salu"
            if op.startswith("s_cmp") or op in ("s_waitcnt", "s_barrier", "s_endpgm", "s_setprio", "s_sleep"):
                self.src = set().union(*[regs(o) for o in ops]) if ops else set()
            else:
                self.dst = regs(ops[0]) if ops else set()
                self.src = set().union(*[regs(o) for o in ops[1:]]) if len(ops) > 1 else set()
                if "saveexec" in op: self.dst.add("exec")
            return
        raise ValueError("unknown instr: " + text)
def isv(r): return r[0] in "va" and r != "vcc"
def need(p, c):
    n = 0
    pv = {r for r in p.dst if isv(r)}; ps = p.dst - pv
    if p.cls == "valu":
        if c.cls == "valu":
            if pv & c.src:
                if c.dpp or c.permlane: n = max(n, 2)
                if c.rdlane: n = max(n, 1)
                if p.trans: n = max(n, 1)
            if ps & c.src:
                n = max(n, 4 if (c.rdlane or c.op.startswith("v_writelane")) else 2)
            if p.dot:
                if c.op == p.op:
                    if pv & c.srcAB: n = max(n, 3)
                elif pv & (c.src | c.dst): n = max(n, 3)
        elif c.cls == "mfma":
            if pv & c.src: n = max(n, 3 if p.dot else 2)
        elif c.cls in ("vmem", "ds"):
            if ps & c.src: n = max(n, 5)
            if pv & c.src and (p.trans): n = max(n, 1)
            if pv & (c.src | c.dst) and p.dot: n = max(n, 3)
    elif p.cls == "mfma":
        big = {4: 8, 8: 12}[p.passes]; ov = {4: 6, 8: 10}[p.passes]; war = {4: 3, 8: 7}[p.passes]
        if c.cls == "mfma":
            if p.dst & c.srcAB: n = max(n, big)
            if p.dst & c.srcC and not (p.dst == c.srcC and p.passes == c.passes): n = max(n, ov)
            if p.dst & c.dst and not (p.dst == c.srcC): n = max(n, ov)
        elif c.cls in ("valu", "vmem", "ds"):
            if p.dst & (c.src | c.dst): n = max(n, big)
            if c.cls == "valu" and (p.srcC & c.dst): n = max(n, war)
    elif p.cls == "vmem":
        if p.storedata & c.dst: n = max(n, 2 if c.cls in ("valu", "mfma") else 1)
    elif p.cls == "salu":
        if "m0" in p.dst and c.cls == "vmem" and c.ldsdma: n = max(n, 1)
    return n
MAXD = 12
def fix(lines):
    ins = [I(l) for l in lines]
    i = 0
    def sites():
        m = {}
        for k, x in enumerate(ins):
            if x.cls == "branch": m.setdefault(x.target, []).append(k)
        return m
    br = sites()
    def back(k, dist, c, seen):
        req = 0
        k -= 1
        while k >= 0 and dist < MAXD:
            x = ins[k]
            if x.label is not None:
                for s in br.get(x.label, []):
                    if (s, dist) not in seen:
                        seen.add((s, dist))
                        req = max(req, back(s, dist + 1, c, seen))
            elif x.op is not None:
                if x.op in ("s_branch", "s_endpgm"): return req
                if x.cls != "nop" and x.cls != "branch":
                    req = max(req, need(x, c) - dist)
                dist += x.slots
            k -= 1
        return req
    nins = 0
    while i < len(ins):
        c = ins[i]
        if c.op is not None and c.cls in ("valu", "mfma", "vmem", "ds"):
            r = back(i, 0, c, set())
            if r > 0:
                ins.insert(i, I("    s_nop %d" % (r - 1))); nins += 1
                br = sites()
                i += 1
        i += 1
    return [x.text for x in ins], nins
```

```python
import sys, math, struct
from asmlib import *
import hazard

def f2u(x): return struct.unpack("<I", struct.pack("<f", x))[0]

QP, QA, CP, FP, LS, SP, OP, STAMP = 0x10000, 0x50000, 0x60000, 0xA0000, 0x100000, 0x200000, 0x400000, 0x1000000
KTAG = 0x9E3779B9
RS = 1056
L_C = 0
L_P = 128 * RS
L_MX = L_P + 4096
L_ST2 = L_MX + 512
L_QS = L_ST2 + 64
L_FIN = L_QS + 256
L_OR = L_FIN + 1024
L_Q = L_OR + 2560
L_Q = (L_Q + 255) // 256 * 256
L_UV = L_Q
LDS_BYTES = L_Q + 16 * RS
assert LDS_BYTES <= 163840, LDS_BYTES

def gen(opt):
    DIAG = opt.get("diag", 0)
    THR = opt.get("thr", 0)
    NT = opt.get("nt", "nt")
    SPIN = opt.get("spin", 200000)
    a = Asm()
    sW = "s3"
    sX, sIDX, sG, sJ, sH, sI, sFG, sTAG = "s30", "s31", "s32", "s33", "s34", "s35", "s36", "s37"
    sLO, sHI, sCNT = "s38", "s39", "s40"
    t0, t1, t2, t3, t4, t5 = "s41", "s42", "s43", "s44", "s45", "s46"
    sMSK = "s47"
    R_WS, R_A, R_B, R_O, R_D = 48, 52, 56, 60, 64
    sSAVE = "s[68:69]"
    ST0 = 70
    nst = [0]
    def srd(d, p, n):
        a(f"s_mov_b32 s{d}, s{p}\ns_mov_b32 s{d+1}, s{p+1}\ns_mov_b32 s{d+2}, {n}\ns_mov_b32 s{d+3}, 0x00020000")
    def S(r): return f"s[{r}:{r+3}]"
    def V(r, n=4): return f"v[{r}:{r+n-1}]"
    def stamp(k):
        if DIAG:
            a(f"s_memrealtime s[{ST0+2*k}:{ST0+2*k+1}]\ns_waitcnt lgkmcnt(0)")
    vL, vL16, vN, vG, vM8, vR8 = 0, 1, 2, 3, 4, 5
    vT = 6
    vF8 = 7
    XP = 16; WO = 20; WD = 28; WB = 32
    QF = 64; AF = 128; TF = 192
    def allred_hi(v, tmp, op):
        a(f"v_mov_b32 v{tmp}, v{v}\nv_permlane16_swap_b32 v{v}, v{tmp}\n{op} v{v}, v{v}, v{tmp}")
        a(f"v_mov_b32 v{tmp}, v{v}\nv_permlane32_swap_b32 v{v}, v{tmp}\n{op} v{v}, v{v}, v{tmp}")
    def dpp(op, d, s, mode, bank="0xf"):
        a(f"{op}_dpp v{d}, v{s}, v{s} {mode} row_mask:0xf bank_mask:{bank}")
    def allred_lo8(v, op):
        dpp(op, v, v, "quad_perm:[1,0,3,2]"); dpp(op, v, v, "quad_perm:[2,3,0,1]"); dpp(op, v, v, "row_half_mirror")
    def wave_sum(v, tmp):
        allred_lo8(v, "v_add_f32"); dpp("v_add_f32", v, v, "row_mirror"); allred_hi(v, tmp, "v_add_f32")
    def rs8(acc, out):
        for c in range(4): a(f"v_permlane32_swap_b32 v{acc+c}, v{acc+c+4}")
        for c in range(4): a(f"v_add_f32 v{acc+c}, v{acc+c}, v{acc+c+4}")
        for c in range(2): a(f"v_permlane16_swap_b32 v{acc+c}, v{acc+c+2}")
        for c in range(2): a(f"v_add_f32 v{acc+c}, v{acc+c}, v{acc+c+2}")
        dpp("v_add_f32", out, acc, "row_ror:8", "0x3"); dpp("v_add_f32", out, acc + 1, "row_ror:8", "0xc")
    def bfround(d, s):
        a(f"v_cvt_pk_bf16_f32 v{d}, v{s}, v{s}\nv_lshlrev_b32 v{d}, 16, v{d}")
    def gemv_perm(W, P):
        for k in range(4):
            for e in range(4):
                a(f"v_perm_b32 v{P+8*k+2*e}, v{W+8*k+4+e}, v{W+8*k+e}, {sLO}")
                a(f"v_perm_b32 v{P+8*k+2*e+1}, v{W+8*k+4+e}, v{W+8*k+e}, {sHI}")
    def gemv_dot(P, acc, out):
        for k in range(4):
            for c in range(8):
                a(f"v_dot2_f32_bf16 v{acc+c}, v{P+8*k+c}, v{XP+k}, {'0' if k == 0 else 'v%d' % (acc+c)}")
        rs8(acc, out)
    def gather(loads, tags, bad, name):
        L = a.label(name); D = a.label(name + "d")
        a(f"s_mov_b32 {sCNT}, {SPIN}\n{L}:")
        for l in loads: a(l)
        a("s_waitcnt vmcnt(0)")
        a(f"v_xor_b32 v{bad}, v{tags[0]}, v{vT}")
        for t in tags[1:]:
            a(f"v_bitop3_b32 v{bad}, v{t}, v{vT}, v{bad} bitop3:0xbe")
        a(f"v_cmp_ne_u32 vcc, 0, v{bad}\ns_sub_u32 {sCNT}, {sCNT}, 1\ns_cbranch_scc1 {D}\ns_cbranch_vccnz {L}\n{D}:")

    stamp_entry = f"s_memrealtime s[{ST0}:{ST0+1}]" if DIAG else ""
    a(f"""
{stamp_entry}
s_cmp_ge_u32 s2, 256
s_cbranch_scc1 L_end
s_load_dwordx16 s[4:19], s[0:1], 0
s_load_dwordx8 s[20:27], s[0:1], 64
s_load_dwordx2 s[28:29], s[0:1], 96
v_lshrrev_b32 v1, 6, v0
v_and_b32 v0, 63, v0
v_readfirstlane_b32 {sW}, v1
v_lshlrev_b32 v{vL16}, 4, v0
v_and_b32 v{vN}, 15, v0
v_lshrrev_b32 v{vG}, 4, v0
v_and_b32 v{vM8}, 7, v0
v_lshrrev_b32 v{vR8}, 3, v0
s_and_b32 {sX}, s2, 7
s_lshr_b32 {sIDX}, s2, 3
s_lshr_b32 {sG}, {sIDX}, 4
s_and_b32 {sJ}, {sIDX}, 7
s_lshr_b32 {t0}, {sIDX}, 3
s_and_b32 {t1}, {t0}, 1
s_lshl_b32 {sH}, {sG}, 4
s_lshl_b32 {t2}, {sX}, 1
s_add_u32 {sH}, {sH}, {t2}
s_add_u32 {sH}, {sH}, {t1}
s_lshl_b32 {sI}, {sX}, 4
s_and_b32 {t1}, {sIDX}, 15
s_add_u32 {sI}, {sI}, {t1}
s_lshl_b32 {sFG}, {t0}, 3
s_add_u32 {sFG}, {sFG}, {sX}
s_mov_b32 {sLO}, 0x05040100
s_mov_b32 {sHI}, 0x07060302
s_mov_b32 {sMSK}, 0xffff0000
""")
    if DIAG:
        for k in range(1, 16): a(f"s_mov_b32 s{ST0+2*k}, 0")
    a(f"v_mov_b32 v{vF8}, v{vR8}")
    a("s_waitcnt lgkmcnt(0)")
    a(f"s_load_dword {sTAG}, s[28:29], 0")
    srd(R_WS, 28, 0x10000000)
    srd(R_O, 14, 4194304)
    srd(R_D, 22, 1835008)
    a(f"""
s_cmp_ge_u32 {sW}, 4
s_cbranch_scc1 L_loader
s_cmp_eq_u32 {sW}, 2
s_cbranch_scc1 L_w2
s_cmp_eq_u32 {sW}, 3
s_cbranch_scc1 L_w3
""")
    srd(R_A, 8, 4194304)
    a(f"""
global_load_dwordx4 v[8:11], v{vL16}, s[4:5]
v_lshlrev_b32 v64, 4, v{vR8}
s_lshl_b32 {t0}, {sJ}, 7
v_add_u32 v64, {t0}, v64
global_load_dwordx4 v[12:15], v64, s[4:5]
v_lshlrev_b32 v65, 16, v{vR8}
v_lshl_add_u32 v65, v{vM8}, 4, v65
s_lshl_b32 {t0}, {sJ}, 19
s_lshl_b32 {t1}, {sH}, 8
s_add_u32 {t0}, {t0}, {t1}
s_lshl_b32 {t1}, {sW}, 7
s_add_u32 {t0}, {t0}, {t1}
""")
    for u in range(8):
        a(f"buffer_load_dwordx4 {V(WB+4*u)}, v65, {S(R_A)}, {t0} offen {NT}")
        if u < 7: a(f"s_add_u32 {t0}, {t0}, 8192")
    a("s_waitcnt vmcnt(9)")
    for e in range(4):
        a(f"v_lshlrev_b32 v{64+2*e}, 16, v{8+e}\nv_and_b32 v{65+2*e}, {sMSK}, v{8+e}")
    a("""
v_add_f32 v72, v64, v65
v_add_f32 v73, v66, v67
v_add_f32 v74, v68, v69
v_add_f32 v75, v70, v71
v_add_f32 v72, v72, v73
v_add_f32 v74, v74, v75
v_add_f32 v72, v72, v74
""")
    wave_sum(72, 73)
    a(f"v_mul_f32 v72, 0x{f2u(1/512):08x}, v72")
    for e in range(8): a(f"v_sub_f32 v{64+e}, v{64+e}, v72")
    a("v_mul_f32 v74, v64, v64\nv_mul_f32 v75, v65, v65")
    for e in range(2, 8): a(f"v_fmac_f32 v{74+(e&1)}, v{64+e}, v{64+e}")
    a("v_add_f32 v74, v74, v75")
    wave_sum(74, 73)
    a(f"v_mul_f32 v74, 0x{f2u(1/512):08x}, v74")
    bfround(74, 74)
    a(f"v_add_f32 v74, 0x{f2u(1e-5):08x}, v74")
    bfround(74, 74)
    a("v_sqrt_f32 v74, v74")
    bfround(74, 74)
    a("v_rcp_f32 v74, v74")
    bfround(72, 72)
    a("s_waitcnt vmcnt(8)")
    for e in range(4):
        a(f"""
v_lshlrev_b32 v64, 16, v{12+e}
v_and_b32 v65, {sMSK}, v{12+e}
v_sub_f32 v64, v64, v72
v_sub_f32 v65, v65, v72
v_cvt_pk_bf16_f32 v66, v64, v65
v_lshlrev_b32 v64, 16, v66
v_and_b32 v65, {sMSK}, v66
v_mul_f32 v64, v64, v74
v_mul_f32 v65, v65, v74
v_cvt_pk_bf16_f32 v{XP+e}, v64, v65
""")
    a(f"""
v_lshlrev_b32 v8, 6, v{vM8}
v_lshl_add_u32 v8, v{vF8}, 3, v8
s_lshl_b32 {t0}, {sH}, 13
s_lshl_b32 {t1}, {sJ}, 10
s_add_u32 {t0}, {t0}, {t1}
s_lshl_b32 {t1}, {sW}, 9
s_add_u32 {t0}, {t0}, {t1}
s_add_u32 {t0}, {t0}, {QP}
s_waitcnt lgkmcnt(0)
s_add_u32 {sTAG}, {sTAG}, {KTAG}
v_mov_b32 v{vT}, {sTAG}
v_mov_b32 v11, {sTAG}
s_waitcnt vmcnt(0)
""")
    stamp(1)
    gemv_perm(WB, 64)
    gemv_dot(64, 96, 10)
    a(f"buffer_store_dwordx2 v[10:11], v8, {S(R_WS)}, {t0} offen sc1")
    stamp(2)
    a("s_branch L_h2")
    a("L_w2:")
    srd(R_A, 10, 4194304)
    a(f"""
v_lshlrev_b32 v8, 13, v{vN}
v_lshl_add_u32 v8, v{vG}, 4, v8
s_lshl_b32 {t0}, {sJ}, 19
s_lshl_b32 {t1}, {sH}, 8
s_add_u32 {t0}, {t0}, {t1}
""")
    UK = 128
    for t in range(4):
        for s in range(4):
            a(f"buffer_load_dwordx4 {V(UK+16*t+4*s)}, v8, {S(R_A)}, {t0} offen offset:{64*s} {NT}")
        if t < 3: a(f"s_add_u32 {t0}, {t0}, 131072")
    a(f"""
s_lshl_b32 {t0}, {sH}, 13
s_add_u32 {t0}, {t0}, {QP}
s_add_u32 {t1}, {t0}, 4096
v_lshlrev_b32 v9, 2, v0
v_add_u32 v9, {L_QS}, v9
v_lshlrev_b32 v10, 4, v{vG}
v_add_u32 v10, {L_QS}, v10
v_lshlrev_b32 v11, 6, v{vN}
v_lshl_add_u32 v11, v{vG}, 4, v11
s_lshl_b32 {t2}, {sH}, 11
s_lshl_b32 {t3}, {sJ}, 8
s_add_u32 {t2}, {t2}, {t3}
s_add_u32 {t2}, {t2}, {QA}
s_waitcnt lgkmcnt(0)
s_add_u32 {sTAG}, {sTAG}, {KTAG}
v_mov_b32 v{vT}, {sTAG}
v_mov_b32 v13, {sTAG}
v_mov_b32 v15, {sTAG}
s_waitcnt vmcnt(0)
""")
    stamp(1)
    G1 = 64
    gather([f"buffer_load_dwordx4 {V(G1+4*p)}, v{vL16}, {S(R_WS)}, {t0 if p < 4 else t1} offen offset:{(p&3)*1024} sc1" for p in range(8)],
           [G1 + 4 * p + k for p in range(8) for k in (1, 3)], 96, "L_h1")
    stamp(2)
    for st in (4, 8, 16):
        for p in range(0, 32, 2 * st):
            a(f"v_add_f32 v{G1+p}, v{G1+p}, v{G1+p+st}\nv_add_f32 v{G1+p+2}, v{G1+p+2}, v{G1+p+st+2}")
    sc = (128 ** -0.5) * math.log2(math.e)
    a(f"""
v_mul_f32 v{G1}, 0x{f2u(sc):08x}, v{G1}
v_mul_f32 v{G1+2}, 0x{f2u(sc):08x}, v{G1+2}
v_cvt_pk_bf16_f32 v{G1}, v{G1}, v{G1+2}
ds_write_b32 v9, v{G1}
s_waitcnt lgkmcnt(0)
""")
    for s in range(4): a(f"ds_read_b128 {V(96+4*s)}, v10 offset:{64*s}")
    for s in range(4):
        a(f"s_waitcnt lgkmcnt({3-s})")
        for t in range(4):
            a(f"v_mfma_f32_16x16x32_bf16 {V(112+4*t)}, {V(UK+16*t+4*s)}, {V(96+4*s)}, {'0' if s == 0 else V(112+4*t)}")
    for t in range(4):
        m = 0x0001 << t
        m32 = m | (m << 16)
        a(f"s_mov_b32 exec_lo, 0x{m32:08x}\ns_mov_b32 exec_hi, 0x{m32:08x}")
        a(f"v_cvt_pk_bf16_f32 v12, v{112+4*t}, v{113+4*t}\nv_cvt_pk_bf16_f32 v14, v{114+4*t}, v{115+4*t}")
    a(f"""
s_mov_b32 exec_lo, 0x000f000f
s_mov_b32 exec_hi, 0x000f000f
buffer_store_dwordx4 v[12:15], v11, {S(R_WS)}, {t2} offen sc1
s_mov_b64 exec, -1
""")
    stamp(3)
    a("s_branch L_h2")
    a(f"""
L_w3:
s_waitcnt lgkmcnt(0)
s_add_u32 {sTAG}, {sTAG}, {KTAG}
v_mov_b32 v{vT}, {sTAG}
L_h2:
""")
    G2 = 64
    a(f"""
s_lshl_b32 {t0}, {sG}, 15
s_lshl_b32 {t1}, {sW}, 13
s_add_u32 {t0}, {t0}, {t1}
s_add_u32 {t0}, {t0}, {QA}
s_add_u32 {t1}, {t0}, 4096
s_mul_i32 {t2}, {sW}, {4*RS}
s_add_u32 {t2}, {t2}, {L_Q}
v_lshlrev_b32 v8, 3, v0
v_add_u32 v8, {t2}, v8
""")
    if opt.get("canary", 1):
        gather([f"buffer_load_dwordx4 {V(G2)}, v{vL16}, {S(R_WS)}, {t0} offen sc1"], [G2 + 1, G2 + 3], 96, "L_h2c")
    stamp(4)
    gather([f"buffer_load_dwordx4 {V(G2+4*k)}, v{vL16}, {S(R_WS)}, {t0 if k < 4 else t1} offen offset:{(k&3)*1024} sc1" for k in range(8)],
           [G2 + 4 * k + e for k in range(8) for e in (1, 3)], 96, "L_h2g")
    stamp(5)
    for k in range(8):
        off = (k >> 1) * RS + (k & 1) * 512
        a(f"v_mov_b32 v{G2+4*k+1}, v{G2+4*k+2}")
        a(f"ds_write_b64 v8, {V(G2+4*k, 2)} offset:{off}")
    Lsk = a.label("L_nogu")
    a(f"""
s_cmp_ge_u32 {sW}, 2
s_cbranch_scc1 {Lsk}
s_cmp_ge_u32 {sFG}, 28
s_cbranch_scc1 {Lsk}
s_cmp_eq_u32 {sW}, 0
s_cselect_b32 s{R_B}, s18, s20
s_cselect_b32 s{R_B+1}, s19, s21
s_mov_b32 s{R_B+2}, 1835008
s_mov_b32 s{R_B+3}, 0x00020000
v_mul_u32_u24 v9, {8*3584}, v{vR8}
v_lshl_add_u32 v9, v{vM8}, 4, v9
s_mul_i32 {t0}, {sJ}, {64*3584}
s_lshl_b32 {t1}, {sFG}, 7
s_add_u32 {t0}, {t0}, {t1}
""")
    for u in range(8):
        a(f"buffer_load_dwordx4 {V(WB+4*u)}, v9, {S(R_B)}, {t0} offen {NT}")
        if u < 7: a(f"s_add_u32 {t0}, {t0}, 3584")
    a(f"{Lsk}:\ns_waitcnt lgkmcnt(0)\ns_branch L_b1")
    a("L_loader:")
    srd(R_A, 6, 16777216)
    a(f"""
s_sub_u32 {t0}, {sW}, 4
s_lshl_b32 {t1}, {sI}, 17
s_lshl_b32 {t2}, {t0}, 15
s_add_u32 {t1}, {t1}, {t2}
s_mul_i32 {t2}, {t0}, {32*RS}
s_mov_b32 {t3}, 8
L_cl:
""")
    for r in range(4):
        a(f"s_add_u32 m0, {t2}, {32*r}")
        a(f"buffer_load_dwordx4 v{vL16}, {S(R_A)}, {t1} offen offset:{1024*r} {NT} lds")
        if THR: a(f"s_waitcnt vmcnt({THR})")
    a(f"""
s_add_u32 {t1}, {t1}, 4096
s_add_u32 {t2}, {t2}, {4*RS}
s_sub_u32 {t3}, {t3}, 1
s_cmp_lg_u32 {t3}, 0
s_cbranch_scc1 L_cl
s_waitcnt lgkmcnt(0)
s_add_u32 {sTAG}, {sTAG}, {KTAG}
v_mov_b32 v{vT}, {sTAG}
""")
    stamp(1)
    a("s_waitcnt vmcnt(0)")
    stamp(2)
    a("L_b1:")
    srd(R_A, 12, 4194304)
    a(f"""
v_mul_u32_u24 v8, {RS}, v{vN}
v_lshl_add_u32 v8, v{vG}, 4, v8
s_mul_i32 {t0}, {sW}, {16*RS}
v_add_u32 v9, {t0}, v8
v_add_u32 v8, {L_Q}, v8
v_lshrrev_b32 v10, 2, v0
v_mul_u32_u24 v10, {RS}, v10
v_and_b32 v11, 3, v0
v_lshl_add_u32 v10, v11, 3, v10
s_lshl_b32 {t0}, {sW}, 7
v_add_u32 v10, {t0}, v10
v_add_u32 v11, {64*RS}, v10
s_barrier
""")
    stamp(6)
    PRE = 6
    def rdS(s):
        a(f"ds_read_b128 {V(QF+4*s)}, v8 offset:{64*s}\nds_read_b128 {V(AF+4*s)}, v9 offset:{64*s}")
    for s in range(PRE): rdS(s)
    SA = 12
    for s in range(16):
        rem = min(16, s + PRE) - (s + 1)
        a(f"s_waitcnt lgkmcnt({2*rem})")
        a(f"v_mfma_f32_16x16x32_bf16 {V(SA)}, {V(AF+4*s)}, {V(QF+4*s)}, {'0' if s == 0 else V(SA)}")
        if s + PRE < 16: rdS(s + PRE)
    def rdT(ks, T):
        base = "v10" if ks < 2 else "v11"
        off = (ks & 1) * 32 * RS + 32 * T
        r = TF + 16 * ks + 4 * T
        a(f"ds_read_b64_tr_b16 {V(r,2)}, {base} offset:{off}\nds_read_b64_tr_b16 {V(r+2,2)}, {base} offset:{off+16*RS}")
    a(f"""
v_lshlrev_b32 v64, 5, v{vN}
s_lshl_b32 {t0}, {sW}, 2
s_add_u32 {t0}, {t0}, {L_MX}
v_add_u32 v65, {t0}, v64
v_add_u32 v64, {L_MX}, v64
v_max3_f32 v66, v{SA}, v{SA+1}, v{SA+2}
v_max_f32 v66, v66, v{SA+3}
""")
    allred_hi(66, 67, "v_max_f32")
    a("ds_write_b32 v65, v66\ns_waitcnt lgkmcnt(0)\ns_barrier")
    a("ds_read_b128 v[68:71], v64\nds_read_b128 v[72:75], v64 offset:16")
    for T in range(4): rdT(0, T)
    for T in range(2): rdT(1, T)
    a(f"""
s_lshr_b32 {t0}, {sW}, 1
s_lshl_b32 {t0}, {t0}, 10
s_and_b32 {t1}, {sW}, 1
s_lshl_b32 {t1}, {t1}, 3
s_add_u32 {t0}, {t0}, {t1}
s_add_u32 {t0}, {t0}, {L_P}
v_add_u32 v65, {t0}, v{vL16}
v_add_u32 v64, {L_P}, v{vL16}
s_waitcnt lgkmcnt(12)
v_max3_f32 v66, v68, v69, v70
v_max3_f32 v66, v66, v71, v72
v_max3_f32 v66, v66, v73, v74
v_max_f32 v66, v66, v75
""")
    for r in range(4): a(f"v_sub_f32 v{SA+r}, v{SA+r}, v66")
    for r in range(4): a(f"v_exp_f32 v{SA+r}, v{SA+r}")
    a(f"""
v_cvt_pk_bf16_f32 v68, v{SA}, v{SA+1}
v_cvt_pk_bf16_f32 v69, v{SA+2}, v{SA+3}
ds_write_b64 v65, v[68:69]
s_waitcnt lgkmcnt(0)
s_barrier
""")
    stamp(7)
    PF = 80
    for ks in range(4): a(f"ds_read_b128 {V(PF+4*ks)}, v64 offset:{1024*ks}")
    for T in range(2, 4): rdT(1, T)
    for T in range(3): rdT(2, T)
    OA = AF; LA = AF + 16; ONE = AF + 20
    for r in range(4): a(f"v_mov_b32 v{ONE+r}, 0x3f803f80")
    a(f"""
v_lshrrev_b32 v72, 1, v{vN}
v_xor_b32 v72, v72, v{vG}
v_lshlrev_b32 v72, 5, v72
v_and_b32 v73, 1, v0
v_lshl_add_u32 v72, v73, 4, v72
v_lshl_add_u32 v72, v{vG}, 13, v72
v_xor_b32 v73, 128, v72
s_lshl_b32 {t0}, {sJ}, 19
s_lshl_b32 {t1}, {sH}, 8
s_add_u32 {t0}, {t0}, {t1}
s_lshl_b32 {t1}, {sW}, 16
s_add_u32 {t0}, {t0}, {t1}
s_add_u32 {t1}, {t0}, 32768
s_lshl_b32 {t2}, {sW}, 11
s_add_u32 {t2}, {t2}, {L_UV}
s_waitcnt lgkmcnt(10)
""")
    def pv(ks):
        for T in range(4):
            a(f"v_mfma_f32_16x16x32_bf16 {V(OA+4*T)}, {V(TF+16*ks+4*T)}, {V(PF+4*ks)}, {'0' if ks == 0 else V(OA+4*T)}")
        a(f"v_mfma_f32_16x16x32_bf16 {V(LA)}, {V(ONE)}, {V(PF+4*ks)}, {'0' if ks == 0 else V(LA)}")
    pv(0)
    rdT(2, 3); rdT(3, 0)
    a("s_waitcnt lgkmcnt(10)")
    pv(1)
    for T in range(1, 3): rdT(3, T)
    a("s_waitcnt lgkmcnt(6)")
    pv(2)
    rdT(3, 3)
    a(f"""
v_lshlrev_b32 v74, 17, v{vN}
v_lshl_add_u32 v74, v{vG}, 4, v74
s_lshl_b32 {t3}, {sG}, 21
s_lshl_b32 {t4}, {sW}, 14
s_add_u32 {t3}, {t3}, {t4}
s_lshl_b32 {t4}, {sI}, 7
s_add_u32 {t3}, {t3}, {t4}
s_add_u32 {t3}, {t3}, {OP}
s_lshl_b32 {t4}, {sG}, 18
s_lshl_b32 {t5}, {sW}, 15
s_add_u32 {t4}, {t4}, {t5}
s_lshl_b32 {t5}, {sI}, 8
s_add_u32 {t4}, {t4}, {t5}
s_add_u32 {t4}, {t4}, {LS}
s_waitcnt lgkmcnt(0)
""")
    pv(3)
    for T in range(4):
        a(f"v_cvt_pk_bf16_f32 v{96+2*T}, v{OA+4*T}, v{OA+4*T+1}\nv_cvt_pk_bf16_f32 v{97+2*T}, v{OA+4*T+2}, v{OA+4*T+3}")
        if T & 1:
            a(f"buffer_store_dwordx4 {V(96+2*T-2)}, v74, {S(R_WS)}, {t3} offen offset:{32*(T-1)} sc1")
    a(f"""
v_mov_b32 v104, v66
v_mov_b32 v105, v{vT}
v_mov_b32 v106, v{LA}
v_mov_b32 v107, v{vT}
""")
    stamp(8)
    a("s_waitcnt vmcnt(0)")
    a(f"""
s_mov_b64 exec, 0xffff
buffer_store_dwordx4 v[104:107], v{vL16}, {S(R_WS)}, {t4} offen sc1
s_mov_b64 exec, -1
""")
    stamp(9)
    a(f"""
s_mov_b32 m0, {t2}
buffer_load_dwordx4 v72, {S(R_A)}, {t0} offen {NT} lds
s_add_u32 m0, {t2}, 1024
buffer_load_dwordx4 v73, {S(R_A)}, {t1} offen {NT} lds
v_lshlrev_b32 v8, 11, v{vR8}
v_lshl_add_u32 v8, v{vM8}, 4, v8
s_lshl_b32 {t0}, {sH}, 17
s_lshl_b32 {t1}, {sJ}, 14
s_add_u32 {t0}, {t0}, {t1}
s_lshl_b32 {t1}, {sW}, 7
s_add_u32 {t0}, {t0}, {t1}
buffer_load_dwordx4 {V(WO)}, v8, {S(R_O)}, {t0} offen {NT}
buffer_load_dwordx4 {V(WO+4)}, v8, {S(R_O)}, {t0} offen offset:1024 {NT}
v_lshlrev_b32 v9, 10, v{vR8}
v_lshl_add_u32 v9, v{vM8}, 4, v9
s_lshl_b32 {t0}, {sFG}, 16
s_lshl_b32 {t2}, {sJ}, 13
s_add_u32 {t0}, {t0}, {t2}
s_add_u32 {t0}, {t0}, {t1}
buffer_load_dwordx4 {V(WD)}, v9, {S(R_D)}, {t0} offen {NT}
""")
    Lsk = a.label("L_nof1")
    a(f"""
s_cmp_ge_u32 {sW}, 2
s_cbranch_scc1 {Lsk}
s_cmp_ge_u32 {sFG}, 28
s_cbranch_scc1 {Lsk}
v_lshlrev_b32 v8, 10, v{vM8}
v_lshl_add_u32 v8, v{vF8}, 3, v8
s_lshl_b32 {t0}, {sFG}, 13
s_lshl_b32 {t1}, {sJ}, 7
s_add_u32 {t0}, {t0}, {t1}
s_lshl_b32 {t1}, {sW}, 6
s_add_u32 {t0}, {t0}, {t1}
s_add_u32 {t0}, {t0}, {FP}
v_mov_b32 v11, v{vT}
""")
    gemv_perm(WB, 64)
    gemv_dot(64, 96, 10)
    a(f"buffer_store_dwordx2 v[10:11], v8, {S(R_WS)}, {t0} offen sc1\n{Lsk}:")
    a(f"""
v_lshlrev_b32 v8, 8, v{vR8}
s_lshl_b32 {t0}, {sG}, 18
s_lshl_b32 {t1}, {sJ}, 15
s_add_u32 {t0}, {t0}, {t1}
s_lshl_b32 {t1}, {sW}, 12
s_add_u32 {t0}, {t0}, {t1}
s_and_b32 {t1}, {sH}, 15
s_lshl_b32 {t1}, {t1}, 4
s_add_u32 {t0}, {t0}, {t1}
s_add_u32 {t0}, {t0}, {LS}
s_lshl_b32 {t1}, {sH}, 17
s_lshl_b32 {t2}, {sJ}, 14
s_add_u32 {t1}, {t1}, {t2}
s_lshl_b32 {t2}, {sW}, 11
s_add_u32 {t1}, {t1}, {t2}
s_add_u32 {t1}, {t1}, {OP}
""")
    gather([f"buffer_load_dwordx4 v[64:67], v8, {S(R_WS)}, {t0} offen sc1",
            f"buffer_load_dwordx4 v[68:71], v8, {S(R_WS)}, {t0} offen offset:2048 sc1"], [65, 67, 69, 71], 72, "L_h3")
    a(f"""
buffer_load_dwordx4 v[80:83], v{vL16}, {S(R_WS)}, {t1} offen sc1
buffer_load_dwordx4 v[84:87], v{vL16}, {S(R_WS)}, {t1} offen offset:1024 sc1
""")
    stamp(10)
    a("v_max_f32 v72, v64, v68")
    dpp("v_max_f32", 72, 72, "row_ror:8")
    allred_hi(72, 73, "v_max_f32")
    a("""
v_sub_f32 v64, v64, v72
v_sub_f32 v68, v68, v72
v_exp_f32 v64, v64
v_exp_f32 v68, v68
v_mul_f32 v73, v64, v66
v_fmac_f32 v73, v68, v70
""")
    dpp("v_add_f32", 73, 73, "row_ror:8")
    allred_hi(73, 74, "v_add_f32")
    a(f"""
s_lshl_b32 {t0}, {sW}, 3
s_add_u32 {t0}, {t0}, {L_ST2}
v_mov_b32 v74, {t0}
ds_write_b64 v74, v[72:73]
v_bfe_u32 v75, v0, 3, 1
v_mul_u32_u24 v75, 160, v75
v_lshl_add_u32 v75, v{vM8}, 4, v75
v_lshl_add_u32 v75, v{vG}, 2, v75
s_mul_i32 {t0}, {sW}, 320
s_add_u32 {t0}, {t0}, {L_OR}
v_add_u32 v75, {t0}, v75
v_mul_u32_u24 v76, 160, v{vN}
v_lshl_add_u32 v76, v{vG}, 4, v76
v_add_u32 v76, {L_OR}, v76
v_lshrrev_b32 v77, 2, v0
v_and_b32 v78, 7, v77
v_xor_b32 v78, {sW}, v78
v_lshlrev_b32 v77, 8, v77
v_lshl_add_u32 v77, v78, 5, v77
v_and_b32 v78, 3, v0
v_lshl_add_u32 v77, v78, 3, v77
v_add_u32 v77, {L_UV}, v77
v_lshlrev_b32 v78, 3, v{vM8}
v_add_u32 v78, {L_ST2}, v78
v_lshlrev_b32 v79, 4, v{vG}
v_add_u32 v79, {L_ST2}, v79
""")
    a("s_waitcnt vmcnt(2)")
    WOP = 112
    for e in range(4):
        a(f"v_perm_b32 v{WOP+2*e}, v{WO+4+e}, v{WO+e}, {sLO}\nv_perm_b32 v{WOP+2*e+1}, v{WO+4+e}, v{WO+e}, {sHI}")
    a("s_waitcnt vmcnt(1)")
    for e in range(4):
        a(f"v_lshlrev_b32 v{88+2*e}, 16, v{80+e}\nv_and_b32 v{89+2*e}, {sMSK}, v{80+e}")
    for e in range(8): a(f"v_mul_f32 v{88+e}, v64, v{88+e}")
    a("s_waitcnt vmcnt(0)")
    stamp(11)
    for e in range(4):
        a(f"v_lshlrev_b32 v{96+2*e}, 16, v{84+e}\nv_and_b32 v{97+2*e}, {sMSK}, v{84+e}")
    for e in range(8): a(f"v_fmac_f32 v{88+e}, v68, v{96+e}")
    for c in range(4): a(f"v_permlane32_swap_b32 v{88+c}, v{92+c}")
    for c in range(4): a(f"v_add_f32 v{88+c}, v{88+c}, v{92+c}")
    for c in range(2): a(f"v_permlane16_swap_b32 v{88+c}, v{90+c}")
    for c in range(2): a(f"v_add_f32 v{88+c}, v{88+c}, v{90+c}")
    a(f"""
v_cvt_pk_bf16_f32 v88, v88, v89
ds_write_b32 v75, v88
s_waitcnt lgkmcnt(0)
s_barrier
ds_read_b128 v[80:83], v76
ds_read_b64_tr_b16 v[88:89], v77
ds_read_b64_tr_b16 v[90:91], v77 offset:4096
ds_read_b128 v[84:87], v76 offset:64
ds_read_b64_tr_b16 v[92:93], v77 offset:8192
ds_read_b64_tr_b16 v[94:95], v77 offset:12288
ds_read_b64 v[64:65], v78
ds_read_b128 v[68:71], v79
v_lshlrev_b32 v8, 3, v0
s_lshl_b32 {t0}, {sH}, 13
s_lshl_b32 {t1}, {sW}, 10
s_add_u32 {t1}, {t0}, {t1}
s_lshl_b32 {t2}, {sJ}, 7
s_add_u32 {t1}, {t1}, {t2}
s_add_u32 {t1}, {t1}, {CP}
s_lshl_b32 {t2}, {sJ}, 10
s_add_u32 {t0}, {t0}, {t2}
s_add_u32 {t0}, {t0}, {CP}
s_waitcnt lgkmcnt(5)
v_mfma_f32_16x16x32_bf16 v[96:99], v[80:83], v[88:91], 0
s_waitcnt lgkmcnt(2)
v_mfma_f32_16x16x32_bf16 v[96:99], v[84:87], v[92:95], v[96:99]
s_waitcnt lgkmcnt(0)
v_mov_b32 v66, v64
""")
    allred_lo8(66, "v_max_f32")
    a("""
v_sub_f32 v64, v64, v66
v_sub_f32 v68, v68, v66
v_sub_f32 v70, v70, v66
v_exp_f32 v64, v64
v_exp_f32 v68, v68
v_exp_f32 v70, v70
v_mul_f32 v64, v64, v65
""")
    allred_lo8(64, "v_add_f32")
    a("""
v_rcp_f32 v64, v64
v_add_f32 v96, v96, v97
v_add_f32 v98, v98, v99
v_mul_f32 v96, v96, v68
v_fmac_f32 v96, v98, v70
""")
    allred_hi(96, 97, "v_add_f32")
    a(f"""
v_mul_f32 v96, v96, v64
v_mov_b32 v97, v{vT}
s_mov_b64 exec, 0xffff
buffer_store_dwordx2 v[96:97], v8, {S(R_WS)}, {t1} offen sc1
s_mov_b64 exec, -1
""")
    stamp(12)
    a("v_mov_b32 v101, 0")
    Lsk = a.label("L_nof2")
    a(f"""
v_lshlrev_b32 v9, 7, v{vM8}
v_lshl_add_u32 v10, v{vR8}, 3, v9
v_lshl_add_u32 v9, v{vR8}, 4, v9
s_cmp_ge_u32 {sFG}, 28
s_cbranch_scc1 {Lsk}
s_lshl_b32 {t2}, {sFG}, 13
s_lshl_b32 {t3}, {sJ}, 10
s_add_u32 {t2}, {t2}, {t3}
s_add_u32 {t2}, {t2}, {FP}
""")
    gather([f"buffer_load_dwordx2 v[64:65], v10, {S(R_WS)}, {t2} offen sc1",
            f"buffer_load_dwordx2 v[66:67], v10, {S(R_WS)}, {t2} offen offset:64 sc1"], [65, 67], 68, "L_hf")
    allred_lo8(64, "v_add_f32"); allred_lo8(66, "v_add_f32")
    bfround(64, 64); bfround(66, 66)
    c1 = -2.0 * math.sqrt(2 / math.pi) * math.log2(math.e)
    a(f"""
v_mul_f32 v68, v64, v64
v_mov_b32 v69, 0x{f2u(c1):08x}
v_fmac_f32 v69, 0x{f2u(c1*0.044715):08x}, v68
v_mul_f32 v68, v69, v64
v_exp_f32 v68, v68
v_add_f32 v68, 1.0, v68
v_rcp_f32 v68, v68
v_mul_f32 v64, v64, v68
""")
    bfround(64, 64)
    a("v_mul_f32 v64, v64, v66")
    bfround(64, 64)
    for e in range(4):
        a(f"v_lshlrev_b32 v{72+2*e}, 16, v{WD+e}\nv_and_b32 v{73+2*e}, {sMSK}, v{WD+e}")
    for e in range(8): a(f"v_mul_f32 v{72+e}, v64, v{72+e}")
    rs8(72, 101)
    a(f"{Lsk}:")
    a(f"""
v_lshrrev_b32 v11, 1, v{vM8}
v_lshlrev_b32 v11, 15, v11
v_and_b32 v12, 1, v0
v_lshl_add_u32 v11, v12, 6, v11
v_lshl_add_u32 v11, v{vF8}, 3, v11
s_lshl_b32 {t2}, {sW}, 17
s_lshl_b32 {t3}, s2, 7
s_add_u32 {t2}, {t2}, {t3}
s_add_u32 {t2}, {t2}, {SP}
""")
    gather([f"buffer_load_dwordx4 v[64:67], v9, {S(R_WS)}, {t0} offen sc1"], [65, 67], 68, "L_h4")
    stamp(13)
    allred_lo8(64, "v_add_f32"); allred_lo8(66, "v_add_f32")
    a("v_cvt_pk_bf16_f32 v64, v64, v66")
    for c in range(8): a(f"v_dot2_f32_bf16 v{72+c}, v{WOP+c}, v64, 0")
    rs8(72, 100)
    a(f"""
v_cvt_pk_bf16_f32 v100, v100, v101
v_mov_b32 v101, v{vT}
buffer_store_dwordx2 v[100:101], v11, {S(R_WS)}, {t2} offen sc1
""")
    stamp(14)
    a(f"s_cmp_lt_u32 {sFG}, 28\ns_cbranch_scc1 L_fin")
    a(f"""
s_sub_u32 {t0}, {sFG}, 28
s_lshl_b32 {t0}, {t0}, 3
s_add_u32 {t0}, {t0}, {sJ}
s_lshl_b32 {t1}, {t0}, 15
s_lshl_b32 {t2}, {sW}, 10
s_add_u32 {t1}, {t1}, {t2}
s_add_u32 {t1}, {t1}, {SP}
s_add_u32 {t2}, {t1}, 8192
s_add_u32 {t3}, {t1}, 16384
s_add_u32 {t4}, {t1}, 24576
s_lshl_b32 {t0}, {t0}, 5
v_lshlrev_b32 v8, 1, v{vN}
v_add_u32 v8, {t0}, v8
global_load_ushort v12, v8, s[4:5]
v_bfe_u32 v9, v0, 4, 1
v_lshlrev_b32 v9, 9, v9
v_lshl_add_u32 v9, v{vM8}, 6, v9
v_lshrrev_b32 v10, 5, v0
v_lshl_add_u32 v9, v10, 5, v9
s_lshl_b32 {t5}, {sW}, 2
s_add_u32 {t5}, {t5}, {L_FIN}
v_add_u32 v9, {t5}, v9
v_lshlrev_b32 v10, 5, v{vN}
v_add_u32 v10, {L_FIN}, v10
""")
    gather([f"buffer_load_dwordx4 {V(64+4*k)}, v{vL16}, {S(R_WS)}, {[t1,t2,t3,t4][k]} offen sc1" for k in range(4)],
           [64 + 4 * k + e for k in range(4) for e in (1, 3)], 80, "L_h5")
    a(f"""
v_lshlrev_b32 v84, 16, v64
v_and_b32 v85, {sMSK}, v64
v_lshlrev_b32 v86, 16, v66
v_and_b32 v87, {sMSK}, v66
""")
    for k in range(1, 4):
        a(f"""
v_lshlrev_b32 v88, 16, v{64+4*k}
v_and_b32 v89, {sMSK}, v{64+4*k}
v_lshlrev_b32 v90, 16, v{66+4*k}
v_and_b32 v91, {sMSK}, v{66+4*k}
v_add_f32 v84, v84, v88
v_add_f32 v85, v85, v89
v_add_f32 v86, v86, v90
v_add_f32 v87, v87, v91
""")
    a("""
v_permlane32_swap_b32 v84, v86
v_permlane32_swap_b32 v85, v87
v_add_f32 v84, v84, v86
v_add_f32 v85, v85, v87
v_permlane16_swap_b32 v84, v85
v_add_f32 v84, v84, v85
""")
    dpp("v_add_f32", 84, 84, "row_ror:8")
    a(f"""
ds_write_b32 v9, v84
s_waitcnt lgkmcnt(0)
s_barrier
s_cmp_lg_u32 {sW}, 0
s_cbranch_scc1 L_fin
ds_read_b128 v[64:67], v10
ds_read_b128 v[68:71], v10 offset:16
ds_read_b128 v[72:75], v10 offset:512
ds_read_b128 v[76:79], v10 offset:528
s_waitcnt lgkmcnt(0)
""")
    for b in (64, 72):
        a(f"""
v_add_f32 v{b}, v{b}, v{b+1}
v_add_f32 v{b+2}, v{b+2}, v{b+3}
v_add_f32 v{b+4}, v{b+4}, v{b+5}
v_add_f32 v{b+6}, v{b+6}, v{b+7}
v_add_f32 v{b}, v{b}, v{b+2}
v_add_f32 v{b+4}, v{b+4}, v{b+6}
v_add_f32 v{b}, v{b}, v{b+4}
""")
    bfround(64, 64); bfround(72, 72)
    a(f"""
v_mul_f32 v73, 0x{f2u(-math.log2(math.e)):08x}, v72
v_exp_f32 v73, v73
v_add_f32 v73, 1.0, v73
v_rcp_f32 v73, v73
v_mul_f32 v72, v72, v73
""")
    bfround(72, 72)
    a("v_mul_f32 v64, v64, v72")
    bfround(64, 64)
    a(f"""
v_lshlrev_b32 v12, 16, v12
v_add_f32 v64, v64, v12
v_cvt_pk_bf16_f32 v64, v64, v64
s_mov_b64 exec, 0xffff
global_store_short v8, v64, s[24:25]
s_cmp_lg_u32 {t0}, 0
s_cbranch_scc1 L_fin0
s_mov_b64 exec, 1
v_mov_b32 v65, 0
buffer_store_dword v{vT}, v65, {S(R_WS)}, 0 offen sc1
L_fin0:
s_mov_b64 exec, -1
L_fin:
""")
    if DIAG:
        stamp(15)
        for k in range(16): a(f"v_mov_b32 v{64+k}, s{ST0+2*k}")
        a(f"""
s_lshl_b32 {t0}, s2, 3
s_add_u32 {t0}, {t0}, {sW}
s_lshl_b32 {t0}, {t0}, 6
s_add_u32 {t0}, {t0}, {STAMP}
v_mov_b32 v8, 0
s_mov_b64 exec, 1
""")
        for k in range(4): a(f"buffer_store_dwordx4 {V(64+4*k)}, v8, {S(R_WS)}, {t0} offen offset:{16*k}")
    a("L_end:\ns_endpgm")
    lines, n = hazard.fix(a.lines)
    body = "\n".join(lines) + "\n"
    return wrap_single(body, 256, 512, LDS_BYTES, 256), n

if __name__ == "__main__":
    name = sys.argv[1]
    opt = {}
    for kv in sys.argv[2:]:
        k, v = kv.split("=")
        opt[k] = int(v) if v.lstrip("-").isdigit() else v
    s, n = gen(opt)
    open(name, "w").write(s)
    print("wrote", name, "nops inserted", n, "lines", s.count("\n"))
```

```python
import sys, math, struct
from asmlib import *
import hazard

def f2u(x): return struct.unpack("<I", struct.pack("<f", x))[0]

STAMP = 0x2000000
KTAG = 0x9E3779B9
RS = 1056
L_P = 128 * RS
L_MX = L_P + 4096
L_ST2 = L_MX + 512
L_QS = L_ST2 + 64
L_HID = L_QS + 512
L_FIN = L_HID + 64
L_OR = L_FIN + 1024
L_Q = (L_OR + 2560 + 255) // 256 * 256
L_UV = L_Q
LDS_BYTES = L_Q + 16 * RS
assert LDS_BYTES <= 163840, LDS_BYTES

def gen(opt):
    SPREAD = opt.get("spread", 0)
    DIAG = opt.get("diag", 0)
    THR1 = opt.get("thr1", 6); THR2 = opt.get("thr2", 8); N1 = opt.get("n1", 4)
    NT = opt.get("nt", "nt")
    SPIN = opt.get("spin", 100000)
    PF = opt.get("pf", 1)
    UVAT = opt.get("uvat", 4)
    WOAT = opt.get("woat", "ba")
    HB = opt.get("hb", 0x41000)
    IB = 16384 + 384
    OH = opt.get("oh", 8 * IB)
    SB = opt.get("sb", 16384 + 192)
    QP = 0x10000; CP = QP + 0x1000; FP = QP + 0x2000; QA = QP + 0x3000
    assert HB >= 0x4000
    ML = 0x900000
    CN = QP + 0x3800
    CAN1 = opt.get("can1", 1)
    ZAT = opt.get("zat", "late")
    HINT = opt.get("hint", 200)
    OP = 0xA00000
    SP = 0x1400000
    assert QP + 32 * HB <= ML and OP + 32 * OH <= SP and SP + 64 * SB <= STAMP
    a = Asm()
    sW = "s3"
    sX, sIDX, sG, sJ, sH, sI, sFG, sTAG = "s30", "s31", "s32", "s33", "s34", "s35", "s36", "s37"
    sLO, sHI, sCNT = "s38", "s39", "s40"
    t0, t1, t2, t3, t4, t5 = "s41", "s42", "s43", "s44", "s45", "s46"
    u0, u1 = "s26", "s27"
    sMSK = "s47"
    R_WS, R_A, R_B, R_O, R_D = 48, 52, 56, 60, 64
    sM8, sM1 = "s68", "s69"
    sHB, sFB, sGB, sH8 = "s30", "s31", "s17", "s16"
    ST0 = 70
    def srd(d, p, n):
        a(f"s_mov_b32 s{d}, s{p}\ns_mov_b32 s{d+1}, s{p+1}\ns_mov_b32 s{d+2}, {n}\ns_mov_b32 s{d+3}, 0x00020000")
    def S(r): return f"s[{r}:{r+3}]"
    def V(r, n=4): return f"v[{r}:{r+n-1}]"
    def stamp(k):
        if DIAG: a(f"s_memrealtime s[{ST0+2*k}:{ST0+2*k+1}]\ns_waitcnt lgkmcnt(0)")
    vL16, vN, vG, vM8, vR8 = 1, 2, 3, 4, 5
    vT = 6; vT8 = 7
    XP = 16; PATL = 20; PATG = 24; WB = 32
    UVP = 32; WO = 48; WD = 56; WOP = 32
    QF = 64; AF = 128; TF = 192
    def allred_hi(v, tmp, op):
        a(f"v_mov_b32 v{tmp}, v{v}\nv_permlane16_swap_b32 v{v}, v{tmp}\n{op} v{v}, v{v}, v{tmp}")
        a(f"v_mov_b32 v{tmp}, v{v}\nv_permlane32_swap_b32 v{v}, v{tmp}\n{op} v{v}, v{v}, v{tmp}")
    def dpp(op, d, s, mode, bank="0xf"):
        a(f"{op}_dpp v{d}, v{s}, v{s} {mode} row_mask:0xf bank_mask:{bank}")
    def allred_lo8(vs, op):
        if isinstance(vs, int): vs = [vs]
        for m in ("quad_perm:[1,0,3,2]", "quad_perm:[2,3,0,1]", "row_half_mirror"):
            for v in vs: dpp(op, v, v, m)
    def wave_sum(v, tmp):
        allred_lo8(v, "v_add_f32"); dpp("v_add_f32", v, v, "row_mirror"); allred_hi(v, tmp, "v_add_f32")
    def rs8(acc, out):
        for c in range(4): a(f"v_permlane32_swap_b32 v{acc+c}, v{acc+c+4}")
        a(f"v_pk_add_f32 {V(acc,2)}, {V(acc,2)}, {V(acc+4,2)}\nv_pk_add_f32 {V(acc+2,2)}, {V(acc+2,2)}, {V(acc+6,2)}")
        for c in range(2): a(f"v_permlane16_swap_b32 v{acc+c}, v{acc+c+2}")
        a(f"v_pk_add_f32 {V(acc,2)}, {V(acc,2)}, {V(acc+2,2)}")
        dpp("v_add_f32", out, acc, "row_ror:8", "0x3"); dpp("v_add_f32", out, acc + 1, "row_ror:8", "0xc")
    def bfround(d, s):
        a(f"v_cvt_pk_bf16_f32 v{d}, v{s}, v{s}\nv_lshlrev_b32 v{d}, 16, v{d}")
    def gemv(W, P, acc, out, waits=None):
        for k in range(4):
            if waits: waits(k)
            for e in range(4):
                a(f"v_perm_b32 v{P+2*e}, v{W+8*k+4+e}, v{W+8*k+e}, {sLO}")
                a(f"v_perm_b32 v{P+2*e+1}, v{W+8*k+4+e}, v{W+8*k+e}, {sHI}")
            for c in range(8):
                a(f"v_dot2_f32_bf16 v{acc+c}, v{P+c}, v{XP+k}, {'0' if k == 0 else 'v%d' % (acc+c)}")
        rs8(acc, out)
    def tag8(v): a(f"v_and_or_b32 v{v}, v{v}, {sM8}, v{vT8}")
    def check(checks, bad):
        for gi, (mask, pairs) in enumerate(checks):
            b = bad + gi
            for d, e in pairs: a(f"v_xor_b32 v{d}, v{d}, v{e}")
            ds = [d for d, e in pairs]
            if len(ds) == 1: a(f"v_mov_b32 v{b}, v{ds[0]}")
            elif len(ds) == 2: a(f"v_or_b32 v{b}, v{ds[0]}, v{ds[1]}")
            else:
                a(f"v_or3_b32 v{b}, v{ds[0]}, v{ds[1]}, v{ds[2]}")
                k = 3
                while k < len(ds):
                    if k + 1 < len(ds): a(f"v_or3_b32 v{b}, v{ds[k]}, v{ds[k+1]}, v{b}"); k += 2
                    else: a(f"v_or_b32 v{b}, v{ds[k]}, v{b}"); k += 1
            if gi == 0:
                if mask is not None: a(f"v_and_b32 v{b}, {mask}, v{b}")
            else:
                if mask == "v15_ff": a(f"v_and_b32 v{b}, 0xff, v{b}\nv_or_b32 v{bad}, v{bad}, v{b}")
                elif mask is not None: a(f"v_and_or_b32 v{bad}, v{b}, {mask}, v{bad}")
                else: a(f"v_or_b32 v{bad}, v{bad}, v{b}")
        a(f"v_cmp_ne_u32 vcc, 0, v{bad}")
    def gather(loads, checks, bad, name, sel="lane", mid=None, issue=True):
        L = a.label(name); D = a.label(name + "d")
        a(f"s_mov_b32 {sCNT}, {SPIN}")
        if issue:
            for l in loads: a(l)
        if mid: mid()
        a(f"{L}:\ns_waitcnt vmcnt(0)")
        check(checks, bad)
        a(f"s_cbranch_vccz {D}\ns_sub_u32 {sCNT}, {sCNT}, 1\ns_cbranch_scc1 {D}")
        if sel == "quad": a("s_wqm_b64 exec, vcc")
        elif sel == "lane": a("s_mov_b64 exec, vcc")
        for l in loads: a(l)
        a(f"s_branch {L}\n{D}:")
        if sel != "wave": a("s_mov_b64 exec, -1")
    def hint(soff, target, name):
        L = a.label(name); D = a.label(name + "d")
        a(f"""
s_mov_b32 {sCNT}, {HINT}
s_mov_b64 exec, 1
v_mov_b32 v123, 0
{L}:
v_mov_b32 v122, 0
buffer_atomic_add v122, v123, {S(R_WS)}, {soff} offen sc0 sc1
s_sub_u32 {sCNT}, {sCNT}, 1
s_cbranch_scc1 {D}
s_waitcnt vmcnt(0)
v_cmp_gt_u32 vcc, {target}, v122
s_cbranch_vccnz {L}
{D}:
s_mov_b64 exec, -1
""")
    def mk_pat(dst, sel):
        a(f"""
v_and_b32 v{dst}, 1, v{sel}
v_lshlrev_b32 v{dst}, 16, v{dst}
v_and_b32 v{dst+2}, 2, v{sel}
v_lshlrev_b32 v{dst+2}, 15, v{dst+2}
v_or_b32 v{dst+2}, 1, v{dst+2}
v_mov_b32 v{dst+1}, {t4}
v_mov_b32 v{dst+3}, {t5}
""")
    def mk_tags():
        a(f"""
s_add_u32 {sTAG}, {sTAG}, {KTAG}
v_mov_b32 v{vT}, {sTAG}
s_and_b32 {t5}, {sTAG}, 0xff
v_mov_b32 v{vT8}, {t5}
s_and_b32 {t4}, {sTAG}, 3
s_mul_i32 {t4}, {t4}, 0x8001
s_and_b32 {t4}, {t4}, {sM1}
s_bfe_u32 {t5}, {sTAG}, 0x20002
s_mul_i32 {t5}, {t5}, 0x8001
s_and_b32 {t5}, {t5}, {sM1}
""")
        mk_pat(PATL, 0); mk_pat(PATG, vG)
    def consts():
        a(f"""
s_mov_b32 {sLO}, 0x05040100
s_mov_b32 {sHI}, 0x07060302
s_mov_b32 {sMSK}, 0xffff0000
s_mov_b32 {sM8}, 0xffffff00
s_mov_b32 {sM1}, 0x00010001
s_mov_b32 {sH8}, 0x8000
s_mul_i32 {sHB}, {sH}, {HB}
s_mul_i32 {sFB}, {sFG}, {HB}
s_mul_i32 {sGB}, {sG}, {16*HB}
""")
        if DIAG:
            for k in range(1, 16): a(f"s_mov_b32 s{ST0+2*k}, 0")
        srd(R_WS, 28, 0x10000000)

    stamp_entry = f"s_memrealtime s[{ST0}:{ST0+1}]" if DIAG else ""
    a(f"""
{stamp_entry}
s_cmp_ge_u32 s2, 256
s_cbranch_scc1 L_end
s_load_dwordx16 s[4:19], s[0:1], 0
s_load_dwordx8 s[20:27], s[0:1], 64
s_load_dwordx2 s[28:29], s[0:1], 96
v_lshrrev_b32 v1, 6, v0
v_and_b32 v0, 63, v0
v_readfirstlane_b32 {sW}, v1
v_lshlrev_b32 v{vL16}, 4, v0
v_and_b32 v{vN}, 15, v0
v_lshrrev_b32 v{vG}, 4, v0
v_and_b32 v{vM8}, 7, v0
v_lshrrev_b32 v{vR8}, 3, v0
s_and_b32 {sX}, s2, 7
s_lshr_b32 {sIDX}, s2, 3
s_lshr_b32 {sG}, {sIDX}, 4
s_and_b32 {sJ}, {sIDX}, 7
s_lshr_b32 {t0}, {sIDX}, 3
s_and_b32 {t1}, {t0}, 1
s_lshl_b32 {sH}, {sG}, 4
s_lshl_b32 {t2}, {sX}, 1
s_add_u32 {sH}, {sH}, {t2}
s_add_u32 {sH}, {sH}, {t1}
s_lshl_b32 {sI}, {sX}, 4
s_and_b32 {t1}, {sIDX}, 15
s_add_u32 {sI}, {sI}, {t1}
s_lshl_b32 {sFG}, {t0}, 3
s_add_u32 {sFG}, {sFG}, {sX}
v_lshlrev_b32 v64, 4, v{vR8}
s_lshl_b32 {t0}, {sJ}, 7
v_add_u32 v64, {t0}, v64
v_lshlrev_b32 v65, 16, v{vR8}
v_lshl_add_u32 v65, v{vM8}, 4, v65
s_lshl_b32 {t0}, {sJ}, 19
s_lshl_b32 {t1}, {sH}, 8
s_add_u32 {t2}, {t0}, {t1}
s_lshl_b32 {t1}, {sW}, 7
s_add_u32 {t0}, {t2}, {t1}
s_movk_i32 {t1}, 8192
s_mov_b32 s{R_A+2}, 4194304
s_mov_b32 s{R_A+3}, 0x00020000
s_cmp_ge_u32 {sW}, 2
s_waitcnt lgkmcnt(0)
s_mov_b64 s[{R_A}:{R_A+1}], s[8:9]
s_cbranch_scc1 L_not01
s_setprio 3
L_front:
global_load_dwordx4 v[8:11], v{vL16}, s[4:5]
global_load_dwordx4 v[12:15], v64, s[4:5]
""")
    for u in range(8):
        a(f"buffer_load_dwordx4 {V(WB+4*u)}, v65, {S(R_A)}, {t0} offen {NT}")
        if u < 7: a(f"s_add_u32 {t0}, {t0}, {t1}")
    a(f"""
s_load_dword {sTAG}, s[28:29], 0
s_cmp_ge_u32 {sW}, 2
s_cbranch_scc1 L_nb
s_barrier
L_nb:
""")
    UK = 128
    consts()
    srd(R_B, 10, 4194304)
    a(f"""
v_lshlrev_b32 v28, 13, v{vN}
v_lshl_add_u32 v28, v{vG}, 4, v28
s_lshl_b32 {t1}, {sW}, 18
s_add_u32 {u0}, {t2}, {t1}
s_add_u32 {u1}, {u0}, 131072
s_add_u32 {t1}, {sHB}, {QP}
s_add_u32 {t2}, {sFB}, {FP}
s_cmp_lt_u32 {sW}, 2
s_cselect_b32 {t3}, {t1}, {t2}
v_and_b32 v104, 31, v0
v_lshrrev_b32 v105, 5, v0
v_lshlrev_b32 v106, 11, v105
v_lshl_add_u32 v106, v104, 4, v106
s_lshl_b32 {t0}, {sJ}, 9
s_add_u32 {t0}, {t0}, {t3}
s_and_b32 {t1}, {sW}, 1
s_lshl_b32 {t1}, {t1}, 8
s_add_u32 {t0}, {t0}, {t1}
v_lshl_add_u32 v29, v0, 2, {t0}
s_add_u32 {t1}, {t1}, {L_QS}
v_and_b32 v107, 1, v104
v_lshlrev_b32 v107, 6, v107
v_lshl_add_u32 v107, v105, 5, v107
v_and_b32 v111, 14, v104
v_add_u32 v107, v111, v107
v_and_b32 v111, 16, v104
v_lshl_add_u32 v107, v111, 3, v107
v_add_u32 v107, {t1}, v107
v_lshlrev_b32 v108, 4, v{vG}
v_add_u32 v108, {t1}, v108
v_lshlrev_b32 v109, 5, v{vN}
v_lshl_add_u32 v109, v{vG}, 3, v109
v_lshrrev_b32 v110, 4, v109
s_lshl_b32 {t1}, {sJ}, 7
s_add_u32 {t0}, {sHB}, {t1}
s_lshl_b32 {t1}, {sW}, 6
s_add_u32 {t0}, {t0}, {t1}
s_add_u32 {t0}, {t0}, {QA}
v_add_u32 v109, {t0}, v109
s_waitcnt vmcnt(9)
""")
    for e in range(4):
        a(f"v_lshlrev_b32 v{64+2*e}, 16, v{8+e}\nv_and_b32 v{65+2*e}, {sMSK}, v{8+e}")
    a("""
v_pk_add_f32 v[72:73], v[64:65], v[66:67]
v_pk_add_f32 v[74:75], v[68:69], v[70:71]
v_pk_add_f32 v[72:73], v[72:73], v[74:75]
v_add_f32 v72, v72, v73
""")
    wave_sum(72, 73)
    a(f"v_mul_f32 v72, 0x{f2u(1/512):08x}, v72")
    for e in range(8): a(f"v_sub_f32 v{64+e}, v{64+e}, v72")
    a("v_mul_f32 v74, v64, v64\nv_mul_f32 v75, v65, v65")
    for e in range(2, 8): a(f"v_fmac_f32 v{74+(e&1)}, v{64+e}, v{64+e}")
    a("v_add_f32 v74, v74, v75")
    wave_sum(74, 73)
    a(f"v_mul_f32 v74, 0x{f2u(1/512):08x}, v74")
    bfround(74, 74)
    a(f"v_add_f32 v74, 0x{f2u(1e-5):08x}, v74")
    bfround(74, 74)
    a("v_sqrt_f32 v74, v74")
    bfround(74, 74)
    a("v_rcp_f32 v74, v74")
    bfround(72, 72)
    a("s_waitcnt vmcnt(8)")
    for e in range(4):
        a(f"v_lshlrev_b32 v{64+2*e}, 16, v{12+e}\nv_and_b32 v{65+2*e}, {sMSK}, v{12+e}")
    for e in range(8): a(f"v_sub_f32 v{64+e}, v{64+e}, v72")
    for e in range(4): a(f"v_cvt_pk_bf16_f32 v{12+e}, v{64+2*e}, v{65+2*e}")
    for e in range(4):
        a(f"v_lshlrev_b32 v{64+2*e}, 16, v{12+e}\nv_and_b32 v{65+2*e}, {sMSK}, v{12+e}")
    for e in range(8): a(f"v_mul_f32 v{64+e}, v{64+e}, v74")
    for e in range(4): a(f"v_cvt_pk_bf16_f32 v{XP+e}, v{64+2*e}, v{65+2*e}")
    a("s_waitcnt lgkmcnt(0)")
    mk_tags()
    mk_pat(120, 110)
    a(f"""
v_and_b32 v110, 1, v{vG}
v_cmp_eq_u32 vcc, 1, v110
v_cndmask_b32 v120, v120, v122, vcc
v_cndmask_b32 v121, v121, v123, vcc
""")
    gemv(WB, 64, 96, 30, waits=lambda k: a(f"s_waitcnt vmcnt({6-2*k})"))
    tag8(30)
    a(f"buffer_store_dword v30, v29, {S(R_WS)}, 0 offen sc1")
    a(f"s_cmp_ge_u32 {sW}, 2\ns_cbranch_scc1 L_w23")
    for t in range(2):
        for s_ in range(4):
            a(f"buffer_load_dwordx4 {V(UK+16*t+4*s_)}, v28, {S(R_B)}, {u0 if t == 0 else u1} offen offset:{64*s_} {NT}")
    stamp(2)
    if CAN1:
        a(f"""
s_mov_b32 {sCNT}, {HINT}
v_lshlrev_b32 v98, 8, v0
s_mov_b64 exec, 0xffff
L_can1:
v_mov_b32 v97, 0
buffer_atomic_add v97, v98, {S(R_WS)}, {t3} offen sc0 sc1
s_sub_u32 {sCNT}, {sCNT}, 1
s_cbranch_scc1 L_can1d
s_waitcnt vmcnt(0)
v_and_b32 v97, 0xff, v97
v_cmp_ne_u32 vcc, v97, v{vT8}
s_cbranch_vccz L_can1d
s_mov_b64 exec, vcc
s_branch L_can1
L_can1d:
s_mov_b64 exec, -1
""")
    else: a("s_waitcnt vmcnt(8)")
    stamp(3)
    G1 = 64
    gather([f"buffer_load_dwordx4 {V(G1+4*u)}, v106, {S(R_WS)}, {t3} offen offset:{u*512} sc1" for u in range(4)],
           [("0xff", [(G1 + k, vT8) for k in range(16)])], 96, "L_h1")
    stamp(4)
    for e in (0, 2): a(f"v_pk_add_f32 {V(G1+e,2)}, {V(G1+e,2)}, {V(G1+4+e,2)}\nv_pk_add_f32 {V(G1+8+e,2)}, {V(G1+8+e,2)}, {V(G1+12+e,2)}")
    for e in (0, 2): a(f"v_pk_add_f32 {V(G1+e,2)}, {V(G1+e,2)}, {V(G1+8+e,2)}")
    sc = (128 ** -0.5) * math.log2(math.e)
    a(f"""
v_permlane32_swap_b32 v{G1}, v{G1+2}
v_permlane32_swap_b32 v{G1+1}, v{G1+3}
v_pk_add_f32 {V(G1,2)}, {V(G1,2)}, {V(G1+2,2)}
v_mul_f32 v{G1}, 0x{f2u(sc):08x}, v{G1}
v_mul_f32 v{G1+1}, 0x{f2u(sc):08x}, v{G1+1}
v_cvt_pk_bf16_f32 v{G1}, v{G1}, v{G1+1}
ds_write_b16 v107, v{G1}
ds_write_b16_d16_hi v107, v{G1} offset:16
s_waitcnt lgkmcnt(0)
""")
    for s_ in range(4): a(f"ds_read_b128 {V(80+4*s_)}, v108 offset:{64*s_}")
    for s_ in range(4):
        a(f"s_waitcnt lgkmcnt({3-s_})")
        for t in range(2):
            a(f"v_mfma_f32_16x16x32_bf16 {V(112+4*t)}, {V(UK+16*t+4*s_)}, {V(80+4*s_)}, {'0' if s_ == 0 else V(112+4*t)}")
    a(f"""
s_mov_b32 exec_lo, 0x00020002
s_mov_b32 exec_hi, 0x00020002
v_mov_b32 v112, v116
v_mov_b32 v113, v117
v_mov_b32 v114, v118
v_mov_b32 v115, v119
s_mov_b32 exec_lo, 0x00030003
s_mov_b32 exec_hi, 0x00030003
v_add_u32 v112, 0x10000, v112
v_add_u32 v113, 0x10000, v113
v_add_u32 v114, 0x10000, v114
v_add_u32 v115, 0x10000, v115
v_perm_b32 v12, v113, v112, {sHI}
v_perm_b32 v13, v115, v114, {sHI}
v_bfi_b32 v12, {sM1}, v120, v12
v_bfi_b32 v13, {sM1}, v121, v13
buffer_store_dwordx2 v[12:13], v109, {S(R_WS)}, 0 offen sc1
s_mov_b64 exec, -1
""")
    stamp(5)
    a("s_branch L_b0")
    c1 = -2.0 * math.sqrt(2 / math.pi) * math.log2(math.e)
    a(f"""
L_w23:
s_cmp_eq_u32 {sW}, 2
s_cbranch_scc1 L_b0
s_and_b32 {t1}, s2, 31
s_mul_i32 {t1}, {t1}, {HB}
s_lshr_b32 {t0}, s2, 5
s_lshl_b32 {t0}, {t0}, 7
s_add_u32 {t0}, {t0}, {t1}
s_add_u32 {t0}, {t0}, {CN}
v_mov_b32 v64, 0
v_mov_b32 v65, 0
v_mov_b32 v66, 0
v_mov_b32 v67, 0
s_mov_b64 exec, 0xff
buffer_store_dwordx4 v[64:67], v{vL16}, {S(R_WS)}, {t0} offen sc1
s_mov_b64 exec, -1
s_branch L_b0
""")
    a(f"L_not01:\ns_cmp_ge_u32 {sW}, 4\ns_cbranch_scc1 L_loader")
    if PF:
        a(f"""
s_cmp_eq_u32 {sW}, 3
s_cbranch_scc1 L_w3
s_getpc_b64 s[{R_B}:{R_B+1}]
L_pc:
s_sub_u32 s{R_B}, s{R_B}, L_pc-{KN}
s_subb_u32 s{R_B+1}, s{R_B+1}, 0
v_lshlrev_b32 v8, 7, v0
global_load_dword v70, v8, s[{R_B}:{R_B+1}]
v_add_u32 v8, 8192, v8
v_min_u32 v8, L_end-{KN}, v8
global_load_dword v71, v8, s[{R_B}:{R_B+1}]
s_branch L_w23e
L_w3:
v_lshlrev_b32 v8, 21, v0
s_mov_b64 exec, 0x3
global_load_dword v70, v8, s[14:15]
s_mov_b64 exec, 0xffff
global_load_dword v71, v8, s[28:29] offset:256
s_mov_b64 exec, 0x1
global_load_dword v72, v8, s[22:23]
global_load_dword v73, v8, s[24:25]
s_mov_b64 exec, -1
L_w23e:
""")
    a(f"""
s_cmp_eq_u32 {sW}, 2
s_cselect_b64 s[{R_A}:{R_A+1}], s[18:19], s[20:21]
s_cmp_lt_u32 {sFG}, 28
s_cselect_b32 s{R_A+2}, 1835008, 0
v_mul_u32_u24 v65, {8*3584}, v{vR8}
v_lshl_add_u32 v65, v{vM8}, 4, v65
s_mul_i32 {t0}, {sJ}, {64*3584}
s_lshl_b32 {t1}, {sFG}, 7
s_add_u32 {t0}, {t0}, {t1}
s_movk_i32 {t1}, 3584
s_barrier
s_waitcnt vmcnt(0)
s_branch L_front
""")
    a("L_loader:")
    srd(R_A, 6, 16777216)
    srd(R_B, 12, 4194304)
    a(f"""
s_load_dword {sTAG}, s[28:29], 0
s_sub_u32 {t0}, {sW}, 4
s_lshl_b32 {t1}, {t0}, 17
s_add_u32 {u0}, {t2}, {t1}
s_add_u32 {u1}, {u0}, 65536
v_lshrrev_b32 v30, 1, v{vN}
v_xor_b32 v30, v30, v{vG}
v_lshlrev_b32 v30, 5, v30
v_and_b32 v31, 1, v0
v_lshl_add_u32 v30, v31, 4, v30
v_lshl_add_u32 v30, v{vG}, 13, v30
v_xor_b32 v31, 128, v30
v_add_u32 v31, 32768, v31
""")
    if SPREAD:
        a(f"""
s_lshl_b32 {t1}, {t0}, 4
s_add_u32 {t1}, {t1}, {sI}
s_and_b32 {t1}, {t1}, 127
s_xor_b32 {t3}, {t1}, 64
s_add_u32 {t3}, {t3}, 512
s_lshl_b32 {t2}, {t0}, 7
s_add_u32 {t1}, {t1}, {t2}
s_add_u32 {t3}, {t3}, {t2}
s_lshl_b32 {t1}, {t1}, 14
s_lshl_b32 {t3}, {t3}, 14
s_mul_i32 {t2}, {t0}, {16*RS}
""")
    else:
        a(f"""
s_lshl_b32 {t1}, {sI}, 17
s_lshl_b32 {t2}, {t0}, 14
s_add_u32 {t1}, {t1}, {t2}
s_add_u32 {t3}, {t1}, 65536
s_mul_i32 {t2}, {t0}, {16*RS}
""")
    a("s_barrier")
    assert UVAT <= 4
    for grp in range(8):
        thr = THR1 if grp < N1 else THR2
        if grp == UVAT:
            for k in range(4):
                a(f"buffer_load_dwordx4 {V(UVP+4*k)}, v{30+(k&1)}, {S(R_B)}, {u0 if k < 2 else u1} offen {NT}")
                if thr: a(f"s_waitcnt vmcnt({thr})")
        for r in range(4):
            a(f"s_add_u32 m0, {t2}, {32*r}")
            a(f"buffer_load_dwordx4 v{vL16}, {S(R_A)}, {t1} offen offset:{1024*r} {NT} lds")
            if thr: a(f"s_waitcnt vmcnt({thr})")
        if grp == 3: a(f"s_mov_b32 {t1}, {t3}\ns_add_u32 {t2}, {t2}, {52*RS}")
        elif grp < 7: a(f"s_add_u32 {t1}, {t1}, 4096\ns_add_u32 {t2}, {t2}, {4*RS}")
    consts()
    stamp(1)
    a("s_waitcnt vmcnt(16) lgkmcnt(0)")
    mk_tags()
    a("L_b0:")
    srd(R_O, 14, 4194304)
    srd(R_D, 22, 1835008)
    a(f"""
v_mul_u32_u24 v8, {RS}, v{vN}
v_lshl_add_u32 v8, v{vG}, 4, v8
s_mul_i32 {t0}, {sW}, {16*RS}
v_add_u32 v9, {t0}, v8
v_add_u32 v8, {L_Q}, v8
v_lshrrev_b32 v10, 2, v0
v_mul_u32_u24 v10, {RS}, v10
v_and_b32 v11, 3, v0
v_lshl_add_u32 v10, v11, 3, v10
s_lshl_b32 {t0}, {sW}, 7
v_add_u32 v10, {t0}, v10
v_add_u32 v11, {64*RS}, v10
s_mul_i32 {t3}, {sW}, {4*RS}
s_add_u32 {t3}, {t3}, {L_Q}
v_add_u32 v12, {t3}, v{vL16}
v_lshlrev_b32 v28, 11, v{vR8}
v_lshl_add_u32 v28, v{vM8}, 4, v28
v_lshlrev_b32 v29, 13, v{vR8}
v_lshl_add_u32 v29, v{vM8}, 4, v29
s_lshl_b32 {t2}, {sH}, 17
s_lshl_b32 {t3}, {sJ}, 14
s_add_u32 {t2}, {t2}, {t3}
s_lshl_b32 {t5}, {sW}, 7
s_add_u32 {u0}, {t2}, {t5}
s_lshl_b32 {t3}, {sFG}, 16
s_add_u32 {t5}, {t5}, {t3}
s_lshl_b32 {t3}, {sJ}, 10
s_add_u32 {u1}, {t5}, {t3}
v_lshlrev_b32 v60, 5, v{vN}
s_lshl_b32 {t0}, {sW}, 2
s_add_u32 {t0}, {t0}, {L_MX}
v_add_u32 v61, {t0}, v60
v_add_u32 v60, {L_MX}, v60
s_lshr_b32 {t0}, {sW}, 1
s_lshl_b32 {t0}, {t0}, 10
s_and_b32 {t1}, {sW}, 1
s_lshl_b32 {t1}, {t1}, 3
s_add_u32 {t0}, {t0}, {t1}
s_add_u32 {t0}, {t0}, {L_P}
v_add_u32 v62, {t0}, v{vL16}
v_add_u32 v63, {L_P}, v{vL16}
v_mul_u32_u24 v30, {OH}, v{vM8}
v_lshl_add_u32 v30, v{vG}, 4, v30
v_and_b32 v31, 8, v0
v_lshl_add_u32 v30, v31, 3, v30
s_mul_i32 {t3}, {sG}, {16*OH}
s_mul_i32 {t4}, {sW}, {IB}
s_add_u32 {t3}, {t3}, {t4}
s_lshl_b32 {t4}, {sI}, 7
s_add_u32 {t3}, {t3}, {t4}
s_add_u32 {t3}, {t3}, {OP}
v_add_u32 v30, {t3}, v30
v_add_u32 v31, {8*OH}, v30
s_mul_i32 {t0}, {sW}, {4*HB}
s_add_u32 {t0}, {t0}, {sGB}
s_add_u32 {t0}, {t0}, {QA}
s_add_u32 {t1}, {t0}, {HB}
s_add_u32 {t2}, {t1}, {HB}
s_add_u32 {t3}, {t2}, {HB}
s_cmp_ge_u32 {sW}, 4
s_barrier
""")
    def woloads():
        a(f"""
buffer_load_dwordx4 {V(WO)}, v28, {S(R_O)}, {u0} offen {NT}
buffer_load_dwordx4 {V(WO+4)}, v28, {S(R_O)}, {u0} offen offset:1024 {NT}
buffer_load_dwordx4 {V(WD)}, v29, {S(R_D)}, {u1} offen {NT}
""")
    def rdT(ks, T):
        base = "v10" if ks < 2 else "v11"
        off = (ks & 1) * 32 * RS + 32 * T
        r = TF + 16 * ks + 4 * T
        a(f"ds_read_b64_tr_b16 {V(r,2)}, {base} offset:{off}\nds_read_b64_tr_b16 {V(r+2,2)}, {base} offset:{off+16*RS}")
    G2 = 64
    h2loads = [f"buffer_load_dwordx4 {V(G2+4*k)}, v{vL16}, {S(R_WS)}, {[t0,t1,t2,t3][k]} offen sc1" for k in range(4)]
    a("s_cbranch_scc1 L_ng\ns_setprio 3")
    for l in h2loads: a(l)
    a("L_ng:")
    stamp(6)
    for ks in range(2):
        for T in range(4): rdT(ks, T)
        a("s_waitcnt lgkmcnt(7)")
    a("s_cbranch_scc0 L_nw\ns_waitcnt vmcnt(0)\nL_nw:")
    stamp(8)
    for s in range(8): a(f"ds_read_b128 {V(AF+4*s)}, v9 offset:{64*s}")
    a("s_waitcnt lgkmcnt(7)")
    for s in range(8, 16): a(f"ds_read_b128 {V(AF+4*s)}, v9 offset:{64*s}")
    a("s_cbranch_scc1 L_ba")
    gather(h2loads, [(sM1, [(G2 + 4 * k + e, PATL + e) for k in range(4) for e in range(4)])], 96, "L_h2g", sel="quad", issue=False)
    a("s_waitcnt lgkmcnt(8)")
    for k in range(4): a(f"ds_write_b128 v12, {V(G2+4*k)} offset:{k*RS}")
    a("s_setprio 0\nL_ba:")
    if WOAT == "ba": woloads()
    a("s_waitcnt lgkmcnt(0)\ns_barrier")
    stamp(7)
    PRE = 12
    SA = 12
    for s in range(PRE): a(f"ds_read_b128 {V(QF+4*s)}, v8 offset:{64*s}")
    for s in range(16):
        rem = min(16, s + PRE) - (s + 1)
        a(f"s_waitcnt lgkmcnt({rem})")
        a(f"v_mfma_f32_16x16x32_bf16 {V(SA)}, {V(AF+4*s)}, {V(QF+4*s)}, {'0' if s == 0 else V(SA)}")
        if s + PRE < 16: a(f"ds_read_b128 {V(QF+4*(s+PRE))}, v8 offset:{64*(s+PRE)}")
    for T in range(4): rdT(2, T)
    a(f"v_max3_f32 v66, v{SA}, v{SA+1}, v{SA+2}\nv_max_f32 v66, v66, v{SA+3}")
    allred_hi(66, 67, "v_max_f32")
    a("ds_write_b32 v61, v66")
    if WOAT == "b2": woloads()
    a(f"""
s_waitcnt lgkmcnt(0)
s_barrier
ds_read_b128 v[68:71], v60
ds_read_b128 v[72:75], v60 offset:16
""")
    for T in range(2): rdT(3, T)
    a(f"""
s_waitcnt lgkmcnt(4)
v_max3_f32 v66, v68, v69, v70
v_max3_f32 v67, v71, v72, v73
v_max3_f32 v66, v66, v74, v75
v_max_f32 v66, v66, v67
v_and_b32 v66, {sM8}, v66
""")
    for r in range(4): a(f"v_sub_f32 v{SA+r}, v{SA+r}, v66")
    for r in range(4): a(f"v_exp_f32 v{SA+r}, v{SA+r}")
    a(f"""
v_cvt_pk_bf16_f32 v68, v{SA}, v{SA+1}
v_cvt_pk_bf16_f32 v69, v{SA+2}, v{SA+3}
ds_write_b64 v62, v[68:69]
""")
    for T in range(2, 4): rdT(3, T)
    a("s_waitcnt lgkmcnt(4)\ns_barrier")
    PFR = 80
    for ks in range(4): a(f"ds_read_b128 {V(PFR+4*ks)}, v63 offset:{1024*ks}")
    OA = AF; LA = AF + 16; ONE = AF + 20
    for ks in range(4):
        a(f"s_waitcnt lgkmcnt({3-ks})")
        for T in range(4):
            a(f"v_mfma_f32_16x16x32_bf16 {V(OA+4*T)}, {V(TF+16*ks+4*T)}, {V(PFR+4*ks)}, {'0' if ks == 0 else V(OA+4*T)}")
    for T in range(4):
        a(f"v_cvt_pk_bf16_f32 v{96+2*T}, v{OA+4*T}, v{OA+4*T+1}\nv_cvt_pk_bf16_f32 v{97+2*T}, v{OA+4*T+2}, v{OA+4*T+3}")
        if T < 2:
            a(f"v_bfi_b32 v{104+2*T}, {sM1}, v{PATG+2*T}, v{96+2*T}\nv_bfi_b32 v{105+2*T}, {sM1}, v{PATG+2*T+1}, v{97+2*T}")
            a(f"v_bfi_b32 v{96+2*T}, {sM1}, v{PATG+2*T}, v{96+2*T}\nv_bfi_b32 v{97+2*T}, {sM1}, v{PATG+2*T+1}, v{97+2*T}")
        else:
            a(f"v_bfi_b32 v{96+2*T}, {sM1}, v{PATG+(2*T)%4}, v{96+2*T}\nv_bfi_b32 v{97+2*T}, {sM1}, v{PATG+(2*T+1)%4}, v{97+2*T}")
    for e in range(4): a(f"v_mov_b32_dpp v{96+e}, v{100+e} row_ror:8 row_mask:0xf bank_mask:0xc")
    a(f"buffer_store_dwordx4 v[96:99], v30, {S(R_WS)}, 0 offen sc1")
    for e in range(4): a(f"v_mov_b32_dpp v{100+e}, v{104+e} row_ror:8 row_mask:0xf bank_mask:0x3")
    a(f"buffer_store_dwordx4 v[100:103], v31, {S(R_WS)}, 0 offen sc1")
    stamp(9)
    a(f"s_cmp_ge_u32 {sW}, 4\ns_cbranch_scc1 L_uvw\ns_cmp_lg_u32 {sW}, 0\ns_cbranch_scc1 L_b4")
    for r in range(4): a(f"v_mov_b32 v{ONE+r}, 0x3f803f80")
    for ks in range(4):
        a(f"v_mfma_f32_16x16x32_bf16 {V(LA)}, {V(ONE)}, {V(PFR+4*ks)}, {'0' if ks == 0 else V(LA)}")
    a(f"""
v_lshlrev_b32 v75, 3, v0
s_lshl_b32 {t3}, {sG}, 14
s_lshl_b32 {t4}, {sI}, 7
s_add_u32 {t3}, {t3}, {t4}
s_add_u32 {t3}, {t3}, {ML}
v_or_b32 v108, v66, v{vT8}
v_mul_u32_u24 v76, {HB}, v0
v_mov_b32 v77, 1
s_lshl_b32 {t4}, {sG}, 6
s_and_b32 {t5}, s2, 7
s_lshl_b32 {t5}, {t5}, 3
s_add_u32 {t2}, {t4}, {t5}
s_and_b32 {t5}, {t2}, 31
s_mul_i32 {t5}, {t5}, {HB}
s_lshr_b32 {t4}, {t2}, 5
s_lshl_b32 {t4}, {t4}, 7
s_add_u32 {t4}, {t4}, {t5}
s_add_u32 {t4}, {t4}, {CN}
v_and_or_b32 v109, v{LA}, {sM8}, v{vT8}
s_mov_b64 exec, 0xffff
buffer_store_dwordx2 v[108:109], v75, {S(R_WS)}, {t3} offen sc1
s_mov_b64 exec, 0xff
s_barrier
buffer_atomic_add v77, v76, {S(R_WS)}, {t4} offen sc1
s_mov_b64 exec, -1
s_branch L_pc0
L_uvw:
s_lshl_b32 {t0}, {sW}, 12
s_add_u32 {t0}, {t0}, {L_UV - 4*4096}
v_add_u32 v9, {t0}, v{vL16}
""")
    a("s_barrier")
    for u in range(4): a(f"ds_write_b128 v9, {V(UVP+4*u)} offset:{1024*u}")
    a("s_branch L_pc0\nL_b4:\ns_barrier")
    a(f"""
L_pc0:
v_lshlrev_b32 v8, 7, v{vR8}
s_lshl_b32 {t0}, {sG}, 14
s_lshl_b32 {t1}, {sW}, 11
s_add_u32 {t0}, {t0}, {t1}
s_and_b32 {t1}, {sH}, 15
s_lshl_b32 {t1}, {t1}, 3
s_add_u32 {t0}, {t0}, {t1}
s_add_u32 {t0}, {t0}, {ML}
s_lshl_b32 {t2}, {sG}, 6
s_lshl_b32 {t1}, {sW}, 3
s_add_u32 {t2}, {t2}, {t1}
s_and_b32 {t1}, s2, 7
s_add_u32 {t2}, {t2}, {t1}
s_and_b32 {t1}, {t2}, 31
s_mul_i32 {t1}, {t1}, {HB}
s_lshr_b32 {t5}, {t2}, 5
s_lshl_b32 {t5}, {t5}, 7
s_add_u32 {t5}, {t5}, {t1}
s_add_u32 {t5}, {t5}, {CN}
s_mul_i32 {t1}, {sH}, {OH}
s_mul_i32 {t2}, {sJ}, {IB}
s_add_u32 {t1}, {t1}, {t2}
s_lshl_b32 {t2}, {sW}, 11
s_add_u32 {t1}, {t1}, {t2}
s_add_u32 {t1}, {t1}, {OP}
s_lshl_b32 {t2}, {sW}, 3
s_add_u32 {t2}, {t2}, {L_ST2}
v_mov_b32 v74, {t2}
v_bfe_u32 v75, v0, 3, 1
v_mul_u32_u24 v75, 160, v75
v_lshl_add_u32 v75, v{vM8}, 4, v75
v_lshl_add_u32 v75, v{vG}, 2, v75
s_mul_i32 {t2}, {sW}, 320
s_add_u32 {t2}, {t2}, {L_OR}
v_add_u32 v75, {t2}, v75
v_mul_u32_u24 v76, 160, v{vN}
v_lshl_add_u32 v76, v{vG}, 4, v76
v_add_u32 v76, {L_OR}, v76
v_lshrrev_b32 v77, 2, v0
v_and_b32 v78, 7, v77
v_xor_b32 v78, {sW}, v78
v_lshlrev_b32 v77, 8, v77
v_lshl_add_u32 v77, v78, 5, v77
v_and_b32 v78, 3, v0
v_lshl_add_u32 v77, v78, 3, v77
v_add_u32 v77, {L_UV}, v77
v_lshlrev_b32 v78, 3, v{vM8}
v_add_u32 v78, {L_ST2}, v78
v_lshlrev_b32 v79, 4, v{vG}
v_add_u32 v79, {L_ST2}, v79
v_mov_b32 v14, {sH8}
s_lshl_b32 {t2}, {sW}, 9
s_add_u32 {t2}, {sHB}, {t2}
s_lshl_b32 {t3}, {sJ}, 6
s_add_u32 {t2}, {t2}, {t3}
s_add_u32 {t2}, {t2}, {CP}
v_lshl_add_u32 v15, v0, 2, {t2}
s_lshl_b32 {t2}, {sJ}, 9
s_add_u32 {t2}, {sHB}, {t2}
s_add_u32 {t2}, {t2}, {CP}
v_lshlrev_b32 v9, 6, v{vM8}
v_lshl_add_u32 v9, v{vR8}, 3, v9
v_mul_u32_u24 v11, {SB}, v{vR8}
v_lshl_add_u32 v11, v{vM8}, 3, v11
s_mul_i32 {t3}, {sW}, {8*SB}
s_lshl_b32 {t4}, s2, 6
s_add_u32 {t3}, {t3}, {t4}
s_add_u32 {t3}, {t3}, {SP}
s_waitcnt lgkmcnt(0)
""")
    a(f"""
v_lshlrev_b32 v10, 9, v{vM8}
v_lshl_add_u32 v10, v{vR8}, 2, v10
s_lshl_b32 {t4}, {sJ}, 5
s_add_u32 {t4}, {sFB}, {t4}
s_add_u32 {t4}, {t4}, {FP}
""")
    gather([f"buffer_load_dword v124, v10, {S(R_WS)}, {t4} offen sc1",
            f"buffer_load_dword v126, v10, {S(R_WS)}, {t4} offen offset:256 sc1"], [("0xff", [(124, vT8), (126, vT8)])], 68, "L_hf", sel="wave")
    hint(t5, 16, "L_c3")
    stamp(10)
    def ffn2():
        allred_lo8([124, 126], "v_add_f32")
        bfround(124, 124); bfround(126, 126)
        a(f"""
v_mul_f32 v125, v124, v124
v_mov_b32 v127, 0x{f2u(c1):08x}
v_fmac_f32 v127, 0x{f2u(c1*0.044715):08x}, v125
v_mul_f32 v125, v127, v124
v_exp_f32 v125, v125
v_add_f32 v125, 1.0, v125
v_rcp_f32 v125, v125
v_mul_f32 v124, v124, v125
""")
        bfround(124, 124)
        a("v_mul_f32 v124, v124, v126")
        bfround(13, 124)
        for e in range(4):
            a(f"v_lshlrev_b32 v{112+2*e}, 16, v{WD+e}\nv_and_b32 v{113+2*e}, {sMSK}, v{WD+e}")
        for e in range(8): a(f"v_mul_f32 v{112+e}, v13, v{112+e}")
        rs8(112, 121)
        for e in range(4):
            a(f"v_perm_b32 v{WOP+2*e}, v{WO+4+e}, v{WO+e}, {sLO}\nv_perm_b32 v{WOP+2*e+1}, v{WO+4+e}, v{WO+e}, {sHI}")
        tag8(121)
    gather([f"buffer_load_dwordx2 v[64:65], v8, {S(R_WS)}, {t0} offen sc1",
            f"buffer_load_dwordx2 v[68:69], v8, {S(R_WS)}, {t0} offen offset:1024 sc1",
            f"buffer_load_dwordx4 v[80:83], v{vL16}, {S(R_WS)}, {t1} offen sc1",
            f"buffer_load_dwordx4 v[84:87], v{vL16}, {S(R_WS)}, {t1} offen offset:1024 sc1"],
           [(sM1, [(80 + k, PATL + (k & 3)) for k in range(8)]), ("v15_ff", [(64, vT8), (65, vT8), (68, vT8), (69, vT8)])], 72, "L_h3", sel="wave",
           mid=(ffn2 if WOAT != "h3" else None))
    if WOAT == "h3": woloads()
    stamp(11)
    def unp(d, s):
        a(f"v_lshl_or_b32 v{d}, v{s}, 16, v14\nv_and_or_b32 v{d+1}, v{s}, {sMSK}, v14")
    a("v_max_f32 v72, v64, v68")
    for e in range(2): unp(88 + 2 * e, 80 + e)
    dpp("v_max_f32", 72, 72, "row_ror:8")
    a("v_mov_b32 v73, v72")
    for e in range(2, 4): unp(88 + 2 * e, 80 + e)
    a("v_permlane16_swap_b32 v72, v73\nv_max_f32 v72, v72, v73\nv_mov_b32 v73, v72")
    for e in range(2): unp(96 + 2 * e, 84 + e)
    a("v_permlane32_swap_b32 v72, v73\nv_max_f32 v72, v72, v73")
    a("v_sub_f32 v64, v64, v72\nv_sub_f32 v68, v68, v72\nv_exp_f32 v64, v64\nv_exp_f32 v68, v68")
    for e in range(2, 4): unp(96 + 2 * e, 84 + e)
    a("v_mul_f32 v73, v64, v65\nv_fmac_f32 v73, v68, v69\nv_mov_b32 v65, v64\nv_mov_b32 v69, v68")
    for e in range(0, 8, 2): a(f"v_pk_mul_f32 v[{88+e}:{89+e}], v[64:65], v[{88+e}:{89+e}]")
    for e in range(0, 8, 2): a(f"v_pk_fma_f32 v[{88+e}:{89+e}], v[68:69], v[{96+e}:{97+e}], v[{88+e}:{89+e}]")
    for c in range(4): a(f"v_permlane32_swap_b32 v{88+c}, v{92+c}")
    dpp("v_add_f32", 73, 73, "row_ror:8")
    a("v_pk_add_f32 v[88:89], v[88:89], v[92:93]\nv_pk_add_f32 v[90:91], v[90:91], v[94:95]")
    a("v_mov_b32 v65, v73")
    for c in range(2): a(f"v_permlane16_swap_b32 v{88+c}, v{90+c}")
    a("v_permlane16_swap_b32 v73, v65")
    a("v_pk_add_f32 v[88:89], v[88:89], v[90:91]")
    a(f"""
v_add_f32 v73, v73, v65
v_cvt_pk_bf16_f32 v88, v88, v89
v_mov_b32 v65, v73
ds_write_b32 v75, v88
v_permlane32_swap_b32 v73, v65
v_add_f32 v73, v73, v65
ds_write_b64 v74, v[72:73]
s_waitcnt lgkmcnt(0)
s_barrier
ds_read_b64 v[64:65], v78
ds_read_b128 v[80:83], v76
ds_read_b64_tr_b16 v[88:89], v77
ds_read_b64_tr_b16 v[90:91], v77 offset:4096
ds_read_b128 v[84:87], v76 offset:64
ds_read_b64_tr_b16 v[92:93], v77 offset:8192
ds_read_b64_tr_b16 v[94:95], v77 offset:12288
ds_read_b128 v[68:71], v79
s_waitcnt lgkmcnt(7)
""")
    a("v_max_f32_dpp v66, v64, v64 quad_perm:[1,0,3,2] row_mask:0xf bank_mask:0xf")
    a("s_waitcnt lgkmcnt(4)\nv_mfma_f32_16x16x32_bf16 v[96:99], v[80:83], v[88:91], 0")
    dpp("v_max_f32", 66, 66, "quad_perm:[2,3,0,1]")
    a("s_waitcnt lgkmcnt(1)\nv_mfma_f32_16x16x32_bf16 v[96:99], v[84:87], v[92:95], v[96:99]")
    dpp("v_max_f32", 66, 66, "row_half_mirror")
    a("""
s_waitcnt lgkmcnt(0)
v_sub_f32 v64, v64, v66
v_sub_f32 v68, v68, v66
v_sub_f32 v70, v70, v66
v_exp_f32 v64, v64
v_exp_f32 v68, v68
v_exp_f32 v70, v70
v_mul_f32 v64, v64, v65
v_add_f32 v96, v96, v97
v_add_f32 v98, v98, v99
""")
    dpp("v_add_f32", 64, 64, "quad_perm:[1,0,3,2]")
    a("v_mul_f32 v96, v96, v68\nv_fmac_f32 v96, v98, v70")
    dpp("v_add_f32", 64, 64, "quad_perm:[2,3,0,1]")
    a("v_mov_b32 v97, v96")
    dpp("v_add_f32", 64, 64, "row_half_mirror")
    a("v_permlane16_swap_b32 v96, v97\nv_rcp_f32 v64, v64\nv_add_f32 v96, v96, v97\nv_mov_b32 v97, v96\nv_permlane32_swap_b32 v96, v97\nv_add_f32 v96, v96, v97")
    a("v_mul_f32 v96, v96, v64")
    tag8(96)
    a(f"""
s_mov_b64 exec, 0xffff
buffer_store_dword v96, v15, {S(R_WS)}, 0 offen sc1
s_mov_b64 exec, -1
""")
    stamp(12)
    a("s_waitcnt vmcnt(0)")
    gather([f"buffer_load_dwordx2 v[104:105], v9, {S(R_WS)}, {t2} offen sc1"], [("0xff", [(104, vT8), (105, vT8)])], 68, "L_h4", sel="wave",
           mid=(ffn2 if WOAT == "h3" else None))
    stamp(13)
    allred_lo8([104, 105], "v_add_f32")
    a("v_cvt_pk_bf16_f32 v64, v104, v105")
    for c in range(8): a(f"v_dot2_f32_bf16 v{72+c}, v{WOP+c}, v64, 0")
    rs8(72, 120)
    tag8(120)
    a(f"buffer_store_dwordx2 v[120:121], v11, {S(R_WS)}, {t3} offen sc1")
    stamp(14)
    a(f"""
s_lshr_b32 {t4}, s2, 4
s_and_b32 {t4}, {t4}, 7
s_lshl_b32 {t4}, {t4}, 3
s_add_u32 {t0}, {t4}, 128
s_and_b32 {t5}, {t0}, 31
s_mul_i32 {t5}, {t5}, {HB}
s_lshr_b32 {t4}, {t0}, 5
s_lshl_b32 {t4}, {t4}, 7
s_add_u32 {t4}, {t4}, {t5}
s_add_u32 {t4}, {t4}, {CN}
v_mul_u32_u24 v76, {HB}, v0
v_mov_b32 v77, 1
s_cmp_lg_u32 {sW}, 0
s_barrier
s_cbranch_scc1 L_na5
s_mov_b64 exec, 0xff
buffer_atomic_add v77, v76, {S(R_WS)}, {t4} offen sc1
s_mov_b64 exec, -1
L_na5:
""")
    a(f"s_cmp_lt_u32 {sFG}, 24\ns_cbranch_scc1 L_fin")
    a(f"""
s_sub_u32 {t0}, {sFG}, 24
s_lshl_b32 {t0}, {t0}, 3
s_add_u32 {t0}, {t0}, {sJ}
s_mul_i32 {t1}, {t0}, {SB}
s_lshl_b32 {t2}, {sW}, 10
s_add_u32 {t1}, {t1}, {t2}
s_add_u32 {t1}, {t1}, {SP}
s_add_u32 {t2}, {t1}, 8192
s_sub_u32 {t0}, {sFG}, 24
s_lshl_b32 {t0}, {t0}, 6
s_add_u32 {t0}, {t0}, {sJ}
s_lshl_b32 {t0}, {t0}, 1
v_lshlrev_b32 v8, 4, v{vM8}
v_add_u32 v8, {t0}, v8
global_load_ushort v12, v8, s[4:5]
v_bfe_u32 v9, v0, 4, 1
v_lshlrev_b32 v9, 8, v9
v_and_b32 v10, 3, v0
v_lshl_add_u32 v9, v10, 6, v9
v_lshrrev_b32 v10, 5, v0
v_lshl_add_u32 v9, v10, 5, v9
s_lshl_b32 {t5}, {sW}, 2
s_add_u32 {t5}, {t5}, {L_FIN}
v_add_u32 v9, {t5}, v9
v_lshlrev_b32 v10, 5, v{vM8}
v_add_u32 v10, {L_FIN}, v10
s_lshl_b32 {t4}, {sW}, 3
s_and_b32 {t5}, s2, 7
s_add_u32 {t4}, {t4}, {t5}
s_add_u32 {t3}, {t4}, 128
s_and_b32 {t5}, {t3}, 31
s_mul_i32 {t5}, {t5}, {HB}
s_lshr_b32 {t4}, {t3}, 5
s_lshl_b32 {t4}, {t4}, 7
s_add_u32 {t4}, {t4}, {t5}
s_add_u32 {t4}, {t4}, {CN}
""")
    hint(t4, 32, "L_c5")
    gather([f"buffer_load_dwordx4 {V(64+4*k)}, v{vL16}, {S(R_WS)}, {[t1,t2][k]} offen sc1" for k in range(2)],
           [("0xff", [(64 + k, vT8) for k in range(8)])], 80, "L_h5")
    stamp(1)
    a("""
v_pk_add_f32 v[64:65], v[64:65], v[68:69]
v_pk_add_f32 v[66:67], v[66:67], v[70:71]
v_permlane32_swap_b32 v64, v66
v_permlane32_swap_b32 v65, v67
v_pk_add_f32 v[64:65], v[64:65], v[66:67]
v_permlane16_swap_b32 v64, v65
v_add_f32 v64, v64, v65
""")
    dpp("v_add_f32", 64, 64, "row_ror:8"); dpp("v_add_f32", 64, 64, "row_ror:4")
    a(f"""
ds_write_b32 v9, v64
s_waitcnt lgkmcnt(0)
s_barrier
s_cmp_lg_u32 {sW}, 0
s_cbranch_scc1 L_fin
ds_read_b128 v[72:75], v10 offset:256
ds_read_b128 v[76:79], v10 offset:272
ds_read_b128 v[64:67], v10
ds_read_b128 v[68:71], v10 offset:16
s_waitcnt lgkmcnt(2)
v_pk_add_f32 v[72:73], v[72:73], v[74:75]
v_pk_add_f32 v[76:77], v[76:77], v[78:79]
v_pk_add_f32 v[72:73], v[72:73], v[76:77]
v_add_f32 v72, v72, v73
""")
    bfround(72, 72)
    a(f"""
v_mul_f32 v73, 0x{f2u(-math.log2(math.e)):08x}, v72
v_exp_f32 v73, v73
s_waitcnt lgkmcnt(0)
v_pk_add_f32 v[64:65], v[64:65], v[66:67]
v_pk_add_f32 v[68:69], v[68:69], v[70:71]
v_add_f32 v73, 1.0, v73
v_rcp_f32 v73, v73
v_pk_add_f32 v[64:65], v[64:65], v[68:69]
v_add_f32 v64, v64, v65
v_mul_f32 v72, v72, v73
v_cvt_pk_bf16_f32 v64, v64, v72
v_lshlrev_b32 v65, 16, v64
v_and_b32 v64, {sMSK}, v64
v_mul_f32 v64, v64, v65
""")
    bfround(64, 64)
    a(f"""
v_lshlrev_b32 v12, 16, v12
v_add_f32 v64, v64, v12
v_cvt_pk_bf16_f32 v64, v64, v64
s_mov_b64 exec, 0xff
global_store_short v8, v64, s[24:25]
s_cmp_lg_u32 {t0}, 0
s_cbranch_scc1 L_fin0
s_mov_b64 exec, 1
v_mov_b32 v65, 0
buffer_store_dword v{vT}, v65, {S(R_WS)}, 0 offen sc1
L_fin0:
s_mov_b64 exec, -1
L_fin:
""")
    if DIAG:
        stamp(15)
        for k in range(16): a(f"v_mov_b32 v{64+k}, s{ST0+2*k}")
        a(f"""
s_lshl_b32 {t0}, s2, 3
s_add_u32 {t0}, {t0}, {sW}
s_lshl_b32 {t0}, {t0}, 6
s_add_u32 {t0}, {t0}, {STAMP}
v_mov_b32 v8, 0
s_mov_b64 exec, 1
""")
        for k in range(4): a(f"buffer_store_dwordx4 {V(64+4*k)}, v8, {S(R_WS)}, {t0} offen offset:{16*k}")
    a("L_end:\ns_endpgm")
    lines, n = hazard.fix(a.lines)
    body = "\n".join(lines) + "\n"
    return wrap_single(body, 256, 512, LDS_BYTES, 256), n

if __name__ == "__main__":
    name = sys.argv[1]
    opt = {}
    for kv in sys.argv[2:]:
        k, v = kv.split("=")
        try: opt[k] = int(v, 0)
        except ValueError: opt[k] = v
    s, n = gen(opt)
    open(name, "w").write(s)
    print("wrote", name, "nops inserted", n, "lines", s.count("\n"))
```

```python
import sys, math, struct
from asmlib import *
import hazard

def f2u(x): return struct.unpack("<I", struct.pack("<f", x))[0]

STAMP = 0x2000000
KTAG = 0x9E3779B9
RS = 1056
L_P = 128 * RS
L_MX = L_P + 4096
L_ST2 = L_MX + 512
L_QS = L_ST2 + 64
L_HID = L_QS + 512
L_FIN = L_HID + 64
L_OR = L_FIN + 1024
L_Q = (L_OR + 2560 + 255) // 256 * 256
L_UV = L_Q
LDS_BYTES = L_Q + 16 * RS
assert LDS_BYTES <= 163840, LDS_BYTES

def gen(opt):
    SPREAD = opt.get("spread", 0)
    DIAG = opt.get("diag", 0)
    THR1 = opt.get("thr1", 6); THR2 = opt.get("thr2", 8); N1 = opt.get("n1", 4)
    NT = opt.get("nt", "nt")
    SPIN = opt.get("spin", 100000)
    PF = opt.get("pf", 1)
    UVAT = opt.get("uvat", 4)
    WOAT = opt.get("woat", "ba")
    HB = opt.get("hb", 0x41000)
    IB = 16384 + 384
    OH = opt.get("oh", 8 * IB)
    SB = opt.get("sb", 16384 + 192)
    QP = 0x10000; CP = QP + 0x1000; FP = QP + 0x2000; QA = QP + 0x3000
    assert HB >= 0x4000
    ML = 0x900000
    CN = QP + 0x3800
    CAN1 = opt.get("can1", 1)
    ZAT = opt.get("zat", "late")
    HINT = opt.get("hint", 200)
    OP = 0xA00000
    SP = 0x1400000
    assert QP + 32 * HB <= ML and OP + 32 * OH <= SP and SP + 64 * SB <= STAMP
    a = Asm()
    sW = "s3"
    sX, sIDX, sG, sJ, sH, sI, sFG, sTAG = "s30", "s31", "s32", "s33", "s34", "s35", "s36", "s37"
    sLO, sHI, sCNT = "s38", "s39", "s40"
    t0, t1, t2, t3, t4, t5 = "s41", "s42", "s43", "s44", "s45", "s46"
    u0, u1 = "s26", "s27"
    sMSK = "s47"
    R_WS, R_A, R_B, R_O, R_D = 48, 52, 56, 60, 64
    sM8, sM1 = "s68", "s69"
    sHB, sFB, sGB, sH8 = "s30", "s31", "s17", "s16"
    ST0 = 70
    def srd(d, p, n):
        a(f"s_mov_b32 s{d}, s{p}\ns_mov_b32 s{d+1}, s{p+1}\ns_mov_b32 s{d+2}, {n}\ns_mov_b32 s{d+3}, 0x00020000")
    def S(r): return f"s[{r}:{r+3}]"
    def V(r, n=4): return f"v[{r}:{r+n-1}]"
    def stamp(k):
        if DIAG: a(f"s_memrealtime s[{ST0+2*k}:{ST0+2*k+1}]\ns_waitcnt lgkmcnt(0)")
    vL16, vN, vG, vM8, vR8 = 1, 2, 3, 4, 5
    vT = 6; vT8 = 7
    XP = 16; PATL = 20; PATG = 24; WB = 32
    UVP = 32; WO = 48; WD = 56; WOP = 32
    QF = 64; AF = 128; TF = 192
    def allred_hi(v, tmp, op):
        a(f"v_mov_b32 v{tmp}, v{v}\nv_permlane16_swap_b32 v{v}, v{tmp}\n{op} v{v}, v{v}, v{tmp}")
        a(f"v_mov_b32 v{tmp}, v{v}\nv_permlane32_swap_b32 v{v}, v{tmp}\n{op} v{v}, v{v}, v{tmp}")
    def dpp(op, d, s, mode, bank="0xf"):
        a(f"{op}_dpp v{d}, v{s}, v{s} {mode} row_mask:0xf bank_mask:{bank}")
    def allred_lo8(vs, op):
        if isinstance(vs, int): vs = [vs]
        for m in ("quad_perm:[1,0,3,2]", "quad_perm:[2,3,0,1]", "row_half_mirror"):
            for v in vs: dpp(op, v, v, m)
    def wave_sum(v, tmp):
        allred_lo8(v, "v_add_f32"); dpp("v_add_f32", v, v, "row_mirror"); allred_hi(v, tmp, "v_add_f32")
    def rs8(acc, out):
        for c in range(4): a(f"v_permlane32_swap_b32 v{acc+c}, v{acc+c+4}")
        a(f"v_pk_add_f32 {V(acc,2)}, {V(acc,2)}, {V(acc+4,2)}\nv_pk_add_f32 {V(acc+2,2)}, {V(acc+2,2)}, {V(acc+6,2)}")
        for c in range(2): a(f"v_permlane16_swap_b32 v{acc+c}, v{acc+c+2}")
        a(f"v_pk_add_f32 {V(acc,2)}, {V(acc,2)}, {V(acc+2,2)}")
        dpp("v_add_f32", out, acc, "row_ror:8", "0x3"); dpp("v_add_f32", out, acc + 1, "row_ror:8", "0xc")
    def bfround(d, s):
        a(f"v_cvt_pk_bf16_f32 v{d}, v{s}, v{s}\nv_lshlrev_b32 v{d}, 16, v{d}")
    def gemv(W, P, acc, out, waits=None):
        for k in range(4):
            if waits: waits(k)
            for e in range(4):
                a(f"v_perm_b32 v{P+2*e}, v{W+8*k+4+e}, v{W+8*k+e}, {sLO}")
                a(f"v_perm_b32 v{P+2*e+1}, v{W+8*k+4+e}, v{W+8*k+e}, {sHI}")
            for c in range(8):
                a(f"v_dot2_f32_bf16 v{acc+c}, v{P+c}, v{XP+k}, {'0' if k == 0 else 'v%d' % (acc+c)}")
        rs8(acc, out)
    def tag8(v): a(f"v_and_or_b32 v{v}, v{v}, {sM8}, v{vT8}")
    def check(checks, bad):
        for gi, (mask, pairs) in enumerate(checks):
            b = bad + gi
            for d, e in pairs: a(f"v_xor_b32 v{d}, v{d}, v{e}")
            ds = [d for d, e in pairs]
            if len(ds) == 1: a(f"v_mov_b32 v{b}, v{ds[0]}")
            elif len(ds) == 2: a(f"v_or_b32 v{b}, v{ds[0]}, v{ds[1]}")
            else:
                a(f"v_or3_b32 v{b}, v{ds[0]}, v{ds[1]}, v{ds[2]}")
                k = 3
                while k < len(ds):
                    if k + 1 < len(ds): a(f"v_or3_b32 v{b}, v{ds[k]}, v{ds[k+1]}, v{b}"); k += 2
                    else: a(f"v_or_b32 v{b}, v{ds[k]}, v{b}"); k += 1
            if gi == 0:
                if mask is not None: a(f"v_and_b32 v{b}, {mask}, v{b}")
            else:
                if mask == "v15_ff": a(f"v_and_b32 v{b}, 0xff, v{b}\nv_or_b32 v{bad}, v{bad}, v{b}")
                elif mask is not None: a(f"v_and_or_b32 v{bad}, v{b}, {mask}, v{bad}")
                else: a(f"v_or_b32 v{bad}, v{bad}, v{b}")
        a(f"v_cmp_ne_u32 vcc, 0, v{bad}")
    def gather(loads, checks, bad, name, sel="lane", mid=None, issue=True):
        L = a.label(name); D = a.label(name + "d")
        a(f"s_mov_b32 {sCNT}, {SPIN}")
        if issue:
            for l in loads: a(l)
        if mid: mid()
        a(f"{L}:\ns_waitcnt vmcnt(0)")
        check(checks, bad)
        a(f"s_cbranch_vccz {D}\ns_sub_u32 {sCNT}, {sCNT}, 1\ns_cbranch_scc1 {D}")
        if sel == "quad": a("s_wqm_b64 exec, vcc")
        elif sel == "lane": a("s_mov_b64 exec, vcc")
        for l in loads: a(l)
        a(f"s_branch {L}\n{D}:")
        if sel != "wave": a("s_mov_b64 exec, -1")
    def hint(soff, target, name):
        L = a.label(name); D = a.label(name + "d")
        a(f"""
s_mov_b32 {sCNT}, {HINT}
s_mov_b64 exec, 1
v_mov_b32 v123, 0
{L}:
v_mov_b32 v122, 0
buffer_atomic_add v122, v123, {S(R_WS)}, {soff} offen sc0 sc1
s_sub_u32 {sCNT}, {sCNT}, 1
s_cbranch_scc1 {D}
s_waitcnt vmcnt(0)
v_cmp_gt_u32 vcc, {target}, v122
s_cbranch_vccnz {L}
{D}:
s_mov_b64 exec, -1
""")
    def mk_pat(dst, sel):
        a(f"""
v_and_b32 v{dst}, 1, v{sel}
v_lshlrev_b32 v{dst}, 16, v{dst}
v_and_b32 v{dst+2}, 2, v{sel}
v_lshlrev_b32 v{dst+2}, 15, v{dst+2}
v_or_b32 v{dst+2}, 1, v{dst+2}
v_mov_b32 v{dst+1}, {t4}
v_mov_b32 v{dst+3}, {t5}
""")
    def mk_tags():
        a(f"""
s_add_u32 {sTAG}, {sTAG}, {KTAG}
v_mov_b32 v{vT}, {sTAG}
s_and_b32 {t5}, {sTAG}, 0xff
v_mov_b32 v{vT8}, {t5}
s_and_b32 {t4}, {sTAG}, 3
s_mul_i32 {t4}, {t4}, 0x8001
s_and_b32 {t4}, {t4}, {sM1}
s_bfe_u32 {t5}, {sTAG}, 0x20002
s_mul_i32 {t5}, {t5}, 0x8001
s_and_b32 {t5}, {t5}, {sM1}
""")
        mk_pat(PATL, 0); mk_pat(PATG, vG)
    def consts():
        a(f"""
s_mov_b32 {sLO}, 0x05040100
s_mov_b32 {sHI}, 0x07060302
s_mov_b32 {sMSK}, 0xffff0000
s_mov_b32 {sM8}, 0xffffff00
s_mov_b32 {sM1}, 0x00010001
s_mov_b32 {sH8}, 0x8000
s_mul_i32 {sHB}, {sH}, {HB}
s_mul_i32 {sFB}, {sFG}, {HB}
s_mul_i32 {sGB}, {sG}, {16*HB}
""")
        if DIAG:
            for k in range(1, 16): a(f"s_mov_b32 s{ST0+2*k}, 0")
        srd(R_WS, 28, 0x10000000)

    stamp_entry = f"s_memrealtime s[{ST0}:{ST0+1}]" if DIAG else ""
    a(f"""
{stamp_entry}
s_cmp_ge_u32 s2, 256
s_cbranch_scc1 L_end
s_load_dwordx16 s[4:19], s[0:1], 0
s_load_dwordx8 s[20:27], s[0:1], 64
s_load_dwordx2 s[28:29], s[0:1], 96
v_lshrrev_b32 v1, 6, v0
v_and_b32 v0, 63, v0
v_readfirstlane_b32 {sW}, v1
v_lshlrev_b32 v{vL16}, 4, v0
v_and_b32 v{vN}, 15, v0
v_lshrrev_b32 v{vG}, 4, v0
v_and_b32 v{vM8}, 7, v0
v_lshrrev_b32 v{vR8}, 3, v0
s_and_b32 {sX}, s2, 7
s_lshr_b32 {sIDX}, s2, 3
s_lshr_b32 {sG}, {sIDX}, 4
s_and_b32 {sJ}, {sIDX}, 7
s_lshr_b32 {t0}, {sIDX}, 3
s_and_b32 {t1}, {t0}, 1
s_lshl_b32 {sH}, {sG}, 4
s_lshl_b32 {t2}, {sX}, 1
s_add_u32 {sH}, {sH}, {t2}
s_add_u32 {sH}, {sH}, {t1}
s_lshl_b32 {sI}, {sX}, 4
s_and_b32 {t1}, {sIDX}, 15
s_add_u32 {sI}, {sI}, {t1}
s_lshl_b32 {sFG}, {t0}, 3
s_add_u32 {sFG}, {sFG}, {sX}
v_lshlrev_b32 v64, 4, v{vR8}
s_lshl_b32 {t0}, {sJ}, 7
v_add_u32 v64, {t0}, v64
v_lshlrev_b32 v65, 16, v{vR8}
v_lshl_add_u32 v65, v{vM8}, 4, v65
s_lshl_b32 {t0}, {sJ}, 19
s_lshl_b32 {t1}, {sH}, 8
s_add_u32 {t2}, {t0}, {t1}
s_lshl_b32 {t1}, {sW}, 7
s_add_u32 {t0}, {t2}, {t1}
s_movk_i32 {t1}, 8192
s_mov_b32 s{R_A+2}, 4194304
s_mov_b32 s{R_A+3}, 0x00020000
s_cmp_ge_u32 {sW}, 2
s_waitcnt lgkmcnt(0)
s_mov_b64 s[{R_A}:{R_A+1}], s[8:9]
s_cbranch_scc1 L_not01
s_setprio 3
L_front:
global_load_dwordx4 v[8:11], v{vL16}, s[4:5]
global_load_dwordx4 v[12:15], v64, s[4:5]
""")
    for u in range(8):
        a(f"buffer_load_dwordx4 {V(WB+4*u)}, v65, {S(R_A)}, {t0} offen {NT}")
        if u < 7: a(f"s_add_u32 {t0}, {t0}, {t1}")
    a(f"""
s_load_dword {sTAG}, s[28:29], 0
s_cmp_ge_u32 {sW}, 2
s_cbranch_scc1 L_nb
s_barrier
L_nb:
""")
    UK = 128
    consts()
    srd(R_B, 10, 4194304)
    a(f"""
v_lshlrev_b32 v28, 13, v{vN}
v_lshl_add_u32 v28, v{vG}, 4, v28
s_lshl_b32 {t1}, {sW}, 18
s_add_u32 {u0}, {t2}, {t1}
s_add_u32 {u1}, {u0}, 131072
s_add_u32 {t1}, {sHB}, {QP}
s_add_u32 {t2}, {sFB}, {FP}
s_cmp_lt_u32 {sW}, 2
s_cselect_b32 {t3}, {t1}, {t2}
v_and_b32 v104, 31, v0
v_lshrrev_b32 v105, 5, v0
v_lshlrev_b32 v106, 11, v105
v_lshl_add_u32 v106, v104, 4, v106
s_lshl_b32 {t0}, {sJ}, 9
s_add_u32 {t0}, {t0}, {t3}
s_and_b32 {t1}, {sW}, 1
s_lshl_b32 {t1}, {t1}, 8
s_add_u32 {t0}, {t0}, {t1}
v_lshl_add_u32 v29, v0, 2, {t0}
s_add_u32 {t1}, {t1}, {L_QS}
v_and_b32 v107, 1, v104
v_lshlrev_b32 v107, 6, v107
v_lshl_add_u32 v107, v105, 5, v107
v_and_b32 v111, 14, v104
v_add_u32 v107, v111, v107
v_and_b32 v111, 16, v104
v_lshl_add_u32 v107, v111, 3, v107
v_add_u32 v107, {t1}, v107
v_lshlrev_b32 v108, 4, v{vG}
v_add_u32 v108, {t1}, v108
v_lshlrev_b32 v109, 5, v{vN}
v_lshl_add_u32 v109, v{vG}, 3, v109
v_lshrrev_b32 v110, 4, v109
s_lshl_b32 {t1}, {sJ}, 7
s_add_u32 {t0}, {sHB}, {t1}
s_lshl_b32 {t1}, {sW}, 6
s_add_u32 {t0}, {t0}, {t1}
s_add_u32 {t0}, {t0}, {QA}
v_add_u32 v109, {t0}, v109
s_waitcnt vmcnt(9)
""")
    for e in range(4):
        a(f"v_lshlrev_b32 v{64+2*e}, 16, v{8+e}\nv_and_b32 v{65+2*e}, {sMSK}, v{8+e}")
    a("""
v_pk_add_f32 v[72:73], v[64:65], v[66:67]
v_pk_add_f32 v[74:75], v[68:69], v[70:71]
v_pk_add_f32 v[72:73], v[72:73], v[74:75]
v_add_f32 v72, v72, v73
""")
    wave_sum(72, 73)
    a(f"v_mul_f32 v72, 0x{f2u(1/512):08x}, v72")
    for e in range(8): a(f"v_sub_f32 v{64+e}, v{64+e}, v72")
    a("v_mul_f32 v74, v64, v64\nv_mul_f32 v75, v65, v65")
    for e in range(2, 8): a(f"v_fmac_f32 v{74+(e&1)}, v{64+e}, v{64+e}")
    a("v_add_f32 v74, v74, v75")
    wave_sum(74, 73)
    a(f"v_mul_f32 v74, 0x{f2u(1/512):08x}, v74")
    bfround(74, 74)
    a(f"v_add_f32 v74, 0x{f2u(1e-5):08x}, v74")
    bfround(74, 74)
    a("v_sqrt_f32 v74, v74")
    bfround(74, 74)
    a("v_rcp_f32 v74, v74")
    bfround(72, 72)
    a("s_waitcnt vmcnt(8)")
    for e in range(4):
        a(f"v_lshlrev_b32 v{64+2*e}, 16, v{12+e}\nv_and_b32 v{65+2*e}, {sMSK}, v{12+e}")
    for e in range(8): a(f"v_sub_f32 v{64+e}, v{64+e}, v72")
    for e in range(4): a(f"v_cvt_pk_bf16_f32 v{12+e}, v{64+2*e}, v{65+2*e}")
    for e in range(4):
        a(f"v_lshlrev_b32 v{64+2*e}, 16, v{12+e}\nv_and_b32 v{65+2*e}, {sMSK}, v{12+e}")
    for e in range(8): a(f"v_mul_f32 v{64+e}, v{64+e}, v74")
    for e in range(4): a(f"v_cvt_pk_bf16_f32 v{XP+e}, v{64+2*e}, v{65+2*e}")
    a("s_waitcnt lgkmcnt(0)")
    mk_tags()
    mk_pat(120, 110)
    a(f"""
v_and_b32 v110, 1, v{vG}
v_cmp_eq_u32 vcc, 1, v110
v_cndmask_b32 v120, v120, v122, vcc
v_cndmask_b32 v121, v121, v123, vcc
""")
    gemv(WB, 64, 96, 30, waits=lambda k: a(f"s_waitcnt vmcnt({6-2*k})"))
    tag8(30)
    a(f"buffer_store_dword v30, v29, {S(R_WS)}, 0 offen sc1")
    a(f"s_cmp_ge_u32 {sW}, 2\ns_cbranch_scc1 L_w23")
    for t in range(2):
        for s_ in range(4):
            a(f"buffer_load_dwordx4 {V(UK+16*t+4*s_)}, v28, {S(R_B)}, {u0 if t == 0 else u1} offen offset:{64*s_} {NT}")
    stamp(2)
    if CAN1:
        a(f"""
s_mov_b32 {sCNT}, {HINT}
v_lshlrev_b32 v98, 8, v0
s_mov_b64 exec, 0xffff
L_can1:
v_mov_b32 v97, 0
buffer_atomic_add v97, v98, {S(R_WS)}, {t3} offen sc0 sc1
s_sub_u32 {sCNT}, {sCNT}, 1
s_cbranch_scc1 L_can1d
s_waitcnt vmcnt(0)
v_and_b32 v97, 0xff, v97
v_cmp_ne_u32 vcc, v97, v{vT8}
s_cbranch_vccz L_can1d
s_mov_b64 exec, vcc
s_branch L_can1
L_can1d:
s_mov_b64 exec, -1
""")
    else: a("s_waitcnt vmcnt(8)")
    stamp(3)
    G1 = 64
    gather([f"buffer_load_dwordx4 {V(G1+4*u)}, v106, {S(R_WS)}, {t3} offen offset:{u*512} sc1" for u in range(4)],
           [("0xff", [(G1 + k, vT8) for k in range(16)])], 96, "L_h1")
    stamp(4)
    for e in (0, 2): a(f"v_pk_add_f32 {V(G1+e,2)}, {V(G1+e,2)}, {V(G1+4+e,2)}\nv_pk_add_f32 {V(G1+8+e,2)}, {V(G1+8+e,2)}, {V(G1+12+e,2)}")
    for e in (0, 2): a(f"v_pk_add_f32 {V(G1+e,2)}, {V(G1+e,2)}, {V(G1+8+e,2)}")
    sc = (128 ** -0.5) * math.log2(math.e)
    a(f"""
v_permlane32_swap_b32 v{G1}, v{G1+2}
v_permlane32_swap_b32 v{G1+1}, v{G1+3}
v_pk_add_f32 {V(G1,2)}, {V(G1,2)}, {V(G1+2,2)}
v_mul_f32 v{G1}, 0x{f2u(sc):08x}, v{G1}
v_mul_f32 v{G1+1}, 0x{f2u(sc):08x}, v{G1+1}
v_cvt_pk_bf16_f32 v{G1}, v{G1}, v{G1+1}
ds_write_b16 v107, v{G1}
ds_write_b16_d16_hi v107, v{G1} offset:16
s_waitcnt lgkmcnt(0)
""")
    for s_ in range(4): a(f"ds_read_b128 {V(80+4*s_)}, v108 offset:{64*s_}")
    for s_ in range(4):
        a(f"s_waitcnt lgkmcnt({3-s_})")
        for t in range(2):
            a(f"v_mfma_f32_16x16x32_bf16 {V(112+4*t)}, {V(UK+16*t+4*s_)}, {V(80+4*s_)}, {'0' if s_ == 0 else V(112+4*t)}")
    a(f"""
s_mov_b32 exec_lo, 0x00020002
s_mov_b32 exec_hi, 0x00020002
v_mov_b32 v112, v116
v_mov_b32 v113, v117
v_mov_b32 v114, v118
v_mov_b32 v115, v119
s_mov_b32 exec_lo, 0x00030003
s_mov_b32 exec_hi, 0x00030003
v_add_u32 v112, 0x10000, v112
v_add_u32 v113, 0x10000, v113
v_add_u32 v114, 0x10000, v114
v_add_u32 v115, 0x10000, v115
v_perm_b32 v12, v113, v112, {sHI}
v_perm_b32 v13, v115, v114, {sHI}
v_bfi_b32 v12, {sM1}, v120, v12
v_bfi_b32 v13, {sM1}, v121, v13
buffer_store_dwordx2 v[12:13], v109, {S(R_WS)}, 0 offen sc1
s_mov_b64 exec, -1
""")
    stamp(5)
    a("s_branch L_b0")
    c1 = -2.0 * math.sqrt(2 / math.pi) * math.log2(math.e)
    a(f"""
L_w23:
s_cmp_eq_u32 {sW}, 2
s_cbranch_scc1 L_b0
s_and_b32 {t1}, s2, 31
s_mul_i32 {t1}, {t1}, {HB}
s_lshr_b32 {t0}, s2, 5
s_lshl_b32 {t0}, {t0}, 7
s_add_u32 {t0}, {t0}, {t1}
s_add_u32 {t0}, {t0}, {CN}
v_mov_b32 v64, 0
v_mov_b32 v65, 0
v_mov_b32 v66, 0
v_mov_b32 v67, 0
s_mov_b64 exec, 0xff
buffer_store_dwordx4 v[64:67], v{vL16}, {S(R_WS)}, {t0} offen sc1
s_mov_b64 exec, -1
s_branch L_b0
""")
    a(f"L_not01:\ns_cmp_ge_u32 {sW}, 4\ns_cbranch_scc1 L_loader")
    if PF:
        a(f"""
s_cmp_eq_u32 {sW}, 3
s_cbranch_scc1 L_w3
s_getpc_b64 s[{R_B}:{R_B+1}]
L_pc:
s_sub_u32 s{R_B}, s{R_B}, L_pc-{KN}
s_subb_u32 s{R_B+1}, s{R_B+1}, 0
v_lshlrev_b32 v8, 7, v0
global_load_dword v70, v8, s[{R_B}:{R_B+1}]
v_add_u32 v8, 8192, v8
v_min_u32 v8, L_end-{KN}, v8
global_load_dword v71, v8, s[{R_B}:{R_B+1}]
s_branch L_w23e
L_w3:
v_lshlrev_b32 v8, 21, v0
s_mov_b64 exec, 0x3
global_load_dword v70, v8, s[14:15]
s_mov_b64 exec, 0xffff
global_load_dword v71, v8, s[28:29] offset:256
s_mov_b64 exec, 0x1
global_load_dword v72, v8, s[22:23]
global_load_dword v73, v8, s[24:25]
s_mov_b64 exec, -1
L_w23e:
""")
    a(f"""
s_cmp_eq_u32 {sW}, 2
s_cselect_b64 s[{R_A}:{R_A+1}], s[18:19], s[20:21]
s_cmp_lt_u32 {sFG}, 28
s_cselect_b32 s{R_A+2}, 1835008, 0
v_mul_u32_u24 v65, {8*3584}, v{vR8}
v_lshl_add_u32 v65, v{vM8}, 4, v65
s_mul_i32 {t0}, {sJ}, {64*3584}
s_lshl_b32 {t1}, {sFG}, 7
s_add_u32 {t0}, {t0}, {t1}
s_movk_i32 {t1}, 3584
s_barrier
s_waitcnt vmcnt(0)
s_branch L_front
""")
    a("L_loader:")
    srd(R_A, 6, 16777216)
    srd(R_B, 12, 4194304)
    a(f"""
s_load_dword {sTAG}, s[28:29], 0
s_sub_u32 {t0}, {sW}, 4
s_lshl_b32 {t1}, {t0}, 17
s_add_u32 {u0}, {t2}, {t1}
s_add_u32 {u1}, {u0}, 65536
v_lshrrev_b32 v30, 1, v{vN}
v_xor_b32 v30, v30, v{vG}
v_lshlrev_b32 v30, 5, v30
v_and_b32 v31, 1, v0
v_lshl_add_u32 v30, v31, 4, v30
v_lshl_add_u32 v30, v{vG}, 13, v30
v_xor_b32 v31, 128, v30
v_add_u32 v31, 32768, v31
""")
    if SPREAD:
        a(f"""
s_lshl_b32 {t1}, {t0}, 4
s_add_u32 {t1}, {t1}, {sI}
s_and_b32 {t1}, {t1}, 127
s_xor_b32 {t3}, {t1}, 64
s_add_u32 {t3}, {t3}, 512
s_lshl_b32 {t2}, {t0}, 7
s_add_u32 {t1}, {t1}, {t2}
s_add_u32 {t3}, {t3}, {t2}
s_lshl_b32 {t1}, {t1}, 14
s_lshl_b32 {t3}, {t3}, 14
s_mul_i32 {t2}, {t0}, {16*RS}
""")
    else:
        a(f"""
s_lshl_b32 {t1}, {sI}, 17
s_lshl_b32 {t2}, {t0}, 14
s_add_u32 {t1}, {t1}, {t2}
s_add_u32 {t3}, {t1}, 65536
s_mul_i32 {t2}, {t0}, {16*RS}
""")
    a("s_barrier")
    assert UVAT <= 4
    for grp in range(8):
        thr = THR1 if grp < N1 else THR2
        if grp == UVAT:
            for k in range(4):
                a(f"buffer_load_dwordx4 {V(UVP+4*k)}, v{30+(k&1)}, {S(R_B)}, {u0 if k < 2 else u1} offen {NT}")
                if thr: a(f"s_waitcnt vmcnt({thr})")
        for r in range(4):
            a(f"s_add_u32 m0, {t2}, {32*r}")
            a(f"buffer_load_dwordx4 v{vL16}, {S(R_A)}, {t1} offen offset:{1024*r} {NT} lds")
            if thr: a(f"s_waitcnt vmcnt({thr})")
        if grp == 3: a(f"s_mov_b32 {t1}, {t3}\ns_add_u32 {t2}, {t2}, {52*RS}")
        elif grp < 7: a(f"s_add_u32 {t1}, {t1}, 4096\ns_add_u32 {t2}, {t2}, {4*RS}")
    consts()
    stamp(1)
    a("s_waitcnt vmcnt(16) lgkmcnt(0)")
    mk_tags()
    a("L_b0:")
    srd(R_O, 14, 4194304)
    srd(R_D, 22, 1835008)
    a(f"""
v_mul_u32_u24 v8, {RS}, v{vN}
v_lshl_add_u32 v8, v{vG}, 4, v8
s_mul_i32 {t0}, {sW}, {16*RS}
v_add_u32 v9, {t0}, v8
v_add_u32 v8, {L_Q}, v8
v_lshrrev_b32 v10, 2, v0
v_mul_u32_u24 v10, {RS}, v10
v_and_b32 v11, 3, v0
v_lshl_add_u32 v10, v11, 3, v10
s_lshl_b32 {t0}, {sW}, 7
v_add_u32 v10, {t0}, v10
v_add_u32 v11, {64*RS}, v10
s_mul_i32 {t3}, {sW}, {4*RS}
s_add_u32 {t3}, {t3}, {L_Q}
v_add_u32 v12, {t3}, v{vL16}
v_lshlrev_b32 v28, 11, v{vR8}
v_lshl_add_u32 v28, v{vM8}, 4, v28
v_lshlrev_b32 v29, 13, v{vR8}
v_lshl_add_u32 v29, v{vM8}, 4, v29
s_lshl_b32 {t2}, {sH}, 17
s_lshl_b32 {t3}, {sJ}, 14
s_add_u32 {t2}, {t2}, {t3}
s_lshl_b32 {t5}, {sW}, 7
s_add_u32 {u0}, {t2}, {t5}
s_lshl_b32 {t3}, {sFG}, 16
s_add_u32 {t5}, {t5}, {t3}
s_lshl_b32 {t3}, {sJ}, 10
s_add_u32 {u1}, {t5}, {t3}
v_lshlrev_b32 v60, 5, v{vN}
s_lshl_b32 {t0}, {sW}, 2
s_add_u32 {t0}, {t0}, {L_MX}
v_add_u32 v61, {t0}, v60
v_add_u32 v60, {L_MX}, v60
s_lshr_b32 {t0}, {sW}, 1
s_lshl_b32 {t0}, {t0}, 10
s_and_b32 {t1}, {sW}, 1
s_lshl_b32 {t1}, {t1}, 3
s_add_u32 {t0}, {t0}, {t1}
s_add_u32 {t0}, {t0}, {L_P}
v_add_u32 v62, {t0}, v{vL16}
v_add_u32 v63, {L_P}, v{vL16}
v_mul_u32_u24 v30, {OH}, v{vM8}
v_lshl_add_u32 v30, v{vG}, 4, v30
v_and_b32 v31, 8, v0
v_lshl_add_u32 v30, v31, 3, v30
s_mul_i32 {t3}, {sG}, {16*OH}
s_mul_i32 {t4}, {sW}, {IB}
s_add_u32 {t3}, {t3}, {t4}
s_lshl_b32 {t4}, {sI}, 7
s_add_u32 {t3}, {t3}, {t4}
s_add_u32 {t3}, {t3}, {OP}
v_add_u32 v30, {t3}, v30
v_add_u32 v31, {8*OH}, v30
s_mul_i32 {t0}, {sW}, {4*HB}
s_add_u32 {t0}, {t0}, {sGB}
s_add_u32 {t0}, {t0}, {QA}
s_add_u32 {t1}, {t0}, {HB}
s_add_u32 {t2}, {t1}, {HB}
s_add_u32 {t3}, {t2}, {HB}
s_cmp_ge_u32 {sW}, 4
s_barrier
""")
    def woloads():
        a(f"""
buffer_load_dwordx4 {V(WO)}, v28, {S(R_O)}, {u0} offen {NT}
buffer_load_dwordx4 {V(WO+4)}, v28, {S(R_O)}, {u0} offen offset:1024 {NT}
buffer_load_dwordx4 {V(WD)}, v29, {S(R_D)}, {u1} offen {NT}
""")
    def rdT(ks, T):
        base = "v10" if ks < 2 else "v11"
        off = (ks & 1) * 32 * RS + 32 * T
        r = TF + 16 * ks + 4 * T
        a(f"ds_read_b64_tr_b16 {V(r,2)}, {base} offset:{off}\nds_read_b64_tr_b16 {V(r+2,2)}, {base} offset:{off+16*RS}")
    G2 = 64
    h2loads = [f"buffer_load_dwordx4 {V(G2+4*k)}, v{vL16}, {S(R_WS)}, {[t0,t1,t2,t3][k]} offen sc1" for k in range(4)]
    a("s_cbranch_scc1 L_ng\ns_setprio 3")
    for l in h2loads: a(l)
    a("L_ng:")
    stamp(6)
    for ks in range(2):
        for T in range(4): rdT(ks, T)
        a("s_waitcnt lgkmcnt(7)")
    a("s_cbranch_scc0 L_nw\ns_waitcnt vmcnt(0)\nL_nw:")
    stamp(8)
    for s in range(8): a(f"ds_read_b128 {V(AF+4*s)}, v9 offset:{64*s}")
    a("s_waitcnt lgkmcnt(7)")
    for s in range(8, 16): a(f"ds_read_b128 {V(AF+4*s)}, v9 offset:{64*s}")
    a("s_cbranch_scc1 L_ba")
    gather(h2loads, [(sM1, [(G2 + 4 * k + e, PATL + e) for k in range(4) for e in range(4)])], 96, "L_h2g", sel="quad", issue=False)
    a("s_waitcnt lgkmcnt(8)")
    for k in range(4): a(f"ds_write_b128 v12, {V(G2+4*k)} offset:{k*RS}")
    a("s_setprio 0\nL_ba:")
    if WOAT == "ba": woloads()
    a("s_waitcnt lgkmcnt(0)\ns_barrier")
    stamp(7)
    PRE = 12
    SA = 12
    for s in range(PRE): a(f"ds_read_b128 {V(QF+4*s)}, v8 offset:{64*s}")
    for s in range(16):
        rem = min(16, s + PRE) - (s + 1)
        a(f"s_waitcnt lgkmcnt({rem})")
        a(f"v_mfma_f32_16x16x32_bf16 {V(SA)}, {V(AF+4*s)}, {V(QF+4*s)}, {'0' if s == 0 else V(SA)}")
        if s + PRE < 16: a(f"ds_read_b128 {V(QF+4*(s+PRE))}, v8 offset:{64*(s+PRE)}")
    for T in range(4): rdT(2, T)
    a(f"v_max3_f32 v66, v{SA}, v{SA+1}, v{SA+2}\nv_max_f32 v66, v66, v{SA+3}")
    allred_hi(66, 67, "v_max_f32")
    a("ds_write_b32 v61, v66")
    if WOAT == "b2": woloads()
    a(f"""
s_waitcnt lgkmcnt(0)
s_barrier
ds_read_b128 v[68:71], v60
ds_read_b128 v[72:75], v60 offset:16
""")
    for T in range(2): rdT(3, T)
    a(f"""
s_waitcnt lgkmcnt(4)
v_max3_f32 v66, v68, v69, v70
v_max3_f32 v67, v71, v72, v73
v_max3_f32 v66, v66, v74, v75
v_max_f32 v66, v66, v67
v_and_b32 v66, {sM8}, v66
""")
    for r in range(4): a(f"v_sub_f32 v{SA+r}, v{SA+r}, v66")
    for r in range(4): a(f"v_exp_f32 v{SA+r}, v{SA+r}")
    a(f"""
v_cvt_pk_bf16_f32 v68, v{SA}, v{SA+1}
v_cvt_pk_bf16_f32 v69, v{SA+2}, v{SA+3}
ds_write_b64 v62, v[68:69]
""")
    for T in range(2, 4): rdT(3, T)
    a("s_waitcnt lgkmcnt(4)\ns_barrier")
    PFR = 80
    for ks in range(4): a(f"ds_read_b128 {V(PFR+4*ks)}, v63 offset:{1024*ks}")
    OA = AF; LA = AF + 16; ONE = AF + 20
    for ks in range(4):
        a(f"s_waitcnt lgkmcnt({3-ks})")
        for T in range(4):
            a(f"v_mfma_f32_16x16x32_bf16 {V(OA+4*T)}, {V(TF+16*ks+4*T)}, {V(PFR+4*ks)}, {'0' if ks == 0 else V(OA+4*T)}")
    for T in range(4):
        a(f"v_cvt_pk_bf16_f32 v{96+2*T}, v{OA+4*T}, v{OA+4*T+1}\nv_cvt_pk_bf16_f32 v{97+2*T}, v{OA+4*T+2}, v{OA+4*T+3}")
        if T < 2:
            a(f"v_bfi_b32 v{104+2*T}, {sM1}, v{PATG+2*T}, v{96+2*T}\nv_bfi_b32 v{105+2*T}, {sM1}, v{PATG+2*T+1}, v{97+2*T}")
            a(f"v_bfi_b32 v{96+2*T}, {sM1}, v{PATG+2*T}, v{96+2*T}\nv_bfi_b32 v{97+2*T}, {sM1}, v{PATG+2*T+1}, v{97+2*T}")
        else:
            a(f"v_bfi_b32 v{96+2*T}, {sM1}, v{PATG+(2*T)%4}, v{96+2*T}\nv_bfi_b32 v{97+2*T}, {sM1}, v{PATG+(2*T+1)%4}, v{97+2*T}")
    for e in range(4): a(f"v_mov_b32_dpp v{96+e}, v{100+e} row_ror:8 row_mask:0xf bank_mask:0xc")
    a(f"buffer_store_dwordx4 v[96:99], v30, {S(R_WS)}, 0 offen sc1")
    for e in range(4): a(f"v_mov_b32_dpp v{100+e}, v{104+e} row_ror:8 row_mask:0xf bank_mask:0x3")
    a(f"buffer_store_dwordx4 v[100:103], v31, {S(R_WS)}, 0 offen sc1")
    stamp(9)
    a(f"s_cmp_ge_u32 {sW}, 4\ns_cbranch_scc1 L_uvw\ns_cmp_lg_u32 {sW}, 0\ns_cbranch_scc1 L_b4")
    for r in range(4): a(f"v_mov_b32 v{ONE+r}, 0x3f803f80")
    for ks in range(4):
        a(f"v_mfma_f32_16x16x32_bf16 {V(LA)}, {V(ONE)}, {V(PFR+4*ks)}, {'0' if ks == 0 else V(LA)}")
    a(f"""
v_lshlrev_b32 v75, 3, v0
s_lshl_b32 {t3}, {sG}, 14
s_lshl_b32 {t4}, {sI}, 7
s_add_u32 {t3}, {t3}, {t4}
s_add_u32 {t3}, {t3}, {ML}
v_or_b32 v108, v66, v{vT8}
v_mul_u32_u24 v76, {HB}, v0
v_mov_b32 v77, 1
s_lshl_b32 {t4}, {sG}, 6
s_and_b32 {t5}, s2, 7
s_lshl_b32 {t5}, {t5}, 3
s_add_u32 {t2}, {t4}, {t5}
s_and_b32 {t5}, {t2}, 31
s_mul_i32 {t5}, {t5}, {HB}
s_lshr_b32 {t4}, {t2}, 5
s_lshl_b32 {t4}, {t4}, 7
s_add_u32 {t4}, {t4}, {t5}
s_add_u32 {t4}, {t4}, {CN}
v_and_or_b32 v109, v{LA}, {sM8}, v{vT8}
s_mov_b64 exec, 0xffff
buffer_store_dwordx2 v[108:109], v75, {S(R_WS)}, {t3} offen sc1
s_mov_b64 exec, 0xff
s_barrier
buffer_atomic_add v77, v76, {S(R_WS)}, {t4} offen sc1
s_mov_b64 exec, -1
s_branch L_pc0
L_uvw:
s_lshl_b32 {t0}, {sW}, 12
s_add_u32 {t0}, {t0}, {L_UV - 4*4096}
v_add_u32 v9, {t0}, v{vL16}
""")
    a("s_barrier")
    for u in range(4): a(f"ds_write_b128 v9, {V(UVP+4*u)} offset:{1024*u}")
    a("s_branch L_pc0\nL_b4:\ns_barrier")
    a(f"""
L_pc0:
v_lshlrev_b32 v8, 7, v{vR8}
s_lshl_b32 {t0}, {sG}, 14
s_lshl_b32 {t1}, {sW}, 11
s_add_u32 {t0}, {t0}, {t1}
s_and_b32 {t1}, {sH}, 15
s_lshl_b32 {t1}, {t1}, 3
s_add_u32 {t0}, {t0}, {t1}
s_add_u32 {t0}, {t0}, {ML}
s_lshl_b32 {t2}, {sG}, 6
s_lshl_b32 {t1}, {sW}, 3
s_add_u32 {t2}, {t2}, {t1}
s_and_b32 {t1}, s2, 7
s_add_u32 {t2}, {t2}, {t1}
s_and_b32 {t1}, {t2}, 31
s_mul_i32 {t1}, {t1}, {HB}
s_lshr_b32 {t5}, {t2}, 5
s_lshl_b32 {t5}, {t5}, 7
s_add_u32 {t5}, {t5}, {t1}
s_add_u32 {t5}, {t5}, {CN}
s_mul_i32 {t1}, {sH}, {OH}
s_mul_i32 {t2}, {sJ}, {IB}
s_add_u32 {t1}, {t1}, {t2}
s_lshl_b32 {t2}, {sW}, 11
s_add_u32 {t1}, {t1}, {t2}
s_add_u32 {t1}, {t1}, {OP}
s_lshl_b32 {t2}, {sW}, 3
s_add_u32 {t2}, {t2}, {L_ST2}
v_mov_b32 v74, {t2}
v_bfe_u32 v75, v0, 3, 1
v_mul_u32_u24 v75, 160, v75
v_lshl_add_u32 v75, v{vM8}, 4, v75
v_lshl_add_u32 v75, v{vG}, 2, v75
s_mul_i32 {t2}, {sW}, 320
s_add_u32 {t2}, {t2}, {L_OR}
v_add_u32 v75, {t2}, v75
v_mul_u32_u24 v76, 160, v{vN}
v_lshl_add_u32 v76, v{vG}, 4, v76
v_add_u32 v76, {L_OR}, v76
v_lshrrev_b32 v77, 2, v0
v_and_b32 v78, 7, v77
v_xor_b32 v78, {sW}, v78
v_lshlrev_b32 v77, 8, v77
v_lshl_add_u32 v77, v78, 5, v77
v_and_b32 v78, 3, v0
v_lshl_add_u32 v77, v78, 3, v77
v_add_u32 v77, {L_UV}, v77
v_lshlrev_b32 v78, 3, v{vM8}
v_add_u32 v78, {L_ST2}, v78
v_lshlrev_b32 v79, 4, v{vG}
v_add_u32 v79, {L_ST2}, v79
v_mov_b32 v14, {sH8}
s_lshl_b32 {t2}, {sW}, 9
s_add_u32 {t2}, {sHB}, {t2}
s_lshl_b32 {t3}, {sJ}, 6
s_add_u32 {t2}, {t2}, {t3}
s_add_u32 {t2}, {t2}, {CP}
v_lshl_add_u32 v15, v0, 2, {t2}
s_lshl_b32 {t2}, {sJ}, 9
s_add_u32 {t2}, {sHB}, {t2}
s_add_u32 {t2}, {t2}, {CP}
v_lshlrev_b32 v9, 6, v{vM8}
v_lshl_add_u32 v9, v{vR8}, 3, v9
v_mul_u32_u24 v11, {SB}, v{vR8}
v_lshl_add_u32 v11, v{vM8}, 3, v11
s_mul_i32 {t3}, {sW}, {8*SB}
s_lshl_b32 {t4}, s2, 6
s_add_u32 {t3}, {t3}, {t4}
s_add_u32 {t3}, {t3}, {SP}
s_waitcnt lgkmcnt(0)
""")
    a(f"""
v_lshlrev_b32 v10, 9, v{vM8}
v_lshl_add_u32 v10, v{vR8}, 2, v10
s_lshl_b32 {t4}, {sJ}, 5
s_add_u32 {t4}, {sFB}, {t4}
s_add_u32 {t4}, {t4}, {FP}
""")
    gather([f"buffer_load_dword v124, v10, {S(R_WS)}, {t4} offen sc1",
            f"buffer_load_dword v126, v10, {S(R_WS)}, {t4} offen offset:256 sc1"], [("0xff", [(124, vT8), (126, vT8)])], 68, "L_hf", sel="wave")
    hint(t5, 16, "L_c3")
    stamp(10)
    def ffn2():
        allred_lo8([124, 126], "v_add_f32")
        bfround(124, 124); bfround(126, 126)
        a(f"""
v_mul_f32 v125, v124, v124
v_mov_b32 v127, 0x{f2u(c1):08x}
v_fmac_f32 v127, 0x{f2u(c1*0.044715):08x}, v125
v_mul_f32 v125, v127, v124
v_exp_f32 v125, v125
v_add_f32 v125, 1.0, v125
v_rcp_f32 v125, v125
v_mul_f32 v124, v124, v125
""")
        bfround(124, 124)
        a("v_mul_f32 v124, v124, v126")
        bfround(13, 124)
        for e in range(4):
            a(f"v_lshlrev_b32 v{112+2*e}, 16, v{WD+e}\nv_and_b32 v{113+2*e}, {sMSK}, v{WD+e}")
        for e in range(8): a(f"v_mul_f32 v{112+e}, v13, v{112+e}")
        rs8(112, 121)
        for e in range(4):
            a(f"v_perm_b32 v{WOP+2*e}, v{WO+4+e}, v{WO+e}, {sLO}\nv_perm_b32 v{WOP+2*e+1}, v{WO+4+e}, v{WO+e}, {sHI}")
        tag8(121)
    gather([f"buffer_load_dwordx2 v[64:65], v8, {S(R_WS)}, {t0} offen sc1",
            f"buffer_load_dwordx2 v[68:69], v8, {S(R_WS)}, {t0} offen offset:1024 sc1",
            f"buffer_load_dwordx4 v[80:83], v{vL16}, {S(R_WS)}, {t1} offen sc1",
            f"buffer_load_dwordx4 v[84:87], v{vL16}, {S(R_WS)}, {t1} offen offset:1024 sc1"],
           [(sM1, [(80 + k, PATL + (k & 3)) for k in range(8)]), ("v15_ff", [(64, vT8), (65, vT8), (68, vT8), (69, vT8)])], 72, "L_h3", sel="wave",
           mid=(ffn2 if WOAT != "h3" else None))
    if WOAT == "h3": woloads()
    stamp(11)
    def unp(d, s):
        a(f"v_lshl_or_b32 v{d}, v{s}, 16, v14\nv_and_or_b32 v{d+1}, v{s}, {sMSK}, v14")
    a("v_max_f32 v72, v64, v68")
    for e in range(2): unp(88 + 2 * e, 80 + e)
    dpp("v_max_f32", 72, 72, "row_ror:8")
    a("v_mov_b32 v73, v72")
    for e in range(2, 4): unp(88 + 2 * e, 80 + e)
    a("v_permlane16_swap_b32 v72, v73\nv_max_f32 v72, v72, v73\nv_mov_b32 v73, v72")
    for e in range(2): unp(96 + 2 * e, 84 + e)
    a("v_permlane32_swap_b32 v72, v73\nv_max_f32 v72, v72, v73")
    a("v_sub_f32 v64, v64, v72\nv_sub_f32 v68, v68, v72\nv_exp_f32 v64, v64\nv_exp_f32 v68, v68")
    for e in range(2, 4): unp(96 + 2 * e, 84 + e)
    a("v_mul_f32 v73, v64, v65\nv_fmac_f32 v73, v68, v69\nv_mov_b32 v65, v64\nv_mov_b32 v69, v68")
    for e in range(0, 8, 2): a(f"v_pk_mul_f32 v[{88+e}:{89+e}], v[64:65], v[{88+e}:{89+e}]")
    for e in range(0, 8, 2): a(f"v_pk_fma_f32 v[{88+e}:{89+e}], v[68:69], v[{96+e}:{97+e}], v[{88+e}:{89+e}]")
    for c in range(4): a(f"v_permlane32_swap_b32 v{88+c}, v{92+c}")
    dpp("v_add_f32", 73, 73, "row_ror:8")
    a("v_pk_add_f32 v[88:89], v[88:89], v[92:93]\nv_pk_add_f32 v[90:91], v[90:91], v[94:95]")
    a("v_mov_b32 v65, v73")
    for c in range(2): a(f"v_permlane16_swap_b32 v{88+c}, v{90+c}")
    a("v_permlane16_swap_b32 v73, v65")
    a("v_pk_add_f32 v[88:89], v[88:89], v[90:91]")
    a(f"""
v_add_f32 v73, v73, v65
v_cvt_pk_bf16_f32 v88, v88, v89
v_mov_b32 v65, v73
ds_write_b32 v75, v88
v_permlane32_swap_b32 v73, v65
v_add_f32 v73, v73, v65
ds_write_b64 v74, v[72:73]
s_waitcnt lgkmcnt(0)
s_barrier
ds_read_b64 v[64:65], v78
ds_read_b128 v[80:83], v76
ds_read_b64_tr_b16 v[88:89], v77
ds_read_b64_tr_b16 v[90:91], v77 offset:4096
ds_read_b128 v[84:87], v76 offset:64
ds_read_b64_tr_b16 v[92:93], v77 offset:8192
ds_read_b64_tr_b16 v[94:95], v77 offset:12288
ds_read_b128 v[68:71], v79
s_waitcnt lgkmcnt(7)
""")
    a("v_max_f32_dpp v66, v64, v64 quad_perm:[1,0,3,2] row_mask:0xf bank_mask:0xf")
    a("s_waitcnt lgkmcnt(4)\nv_mfma_f32_16x16x32_bf16 v[96:99], v[80:83], v[88:91], 0")
    dpp("v_max_f32", 66, 66, "quad_perm:[2,3,0,1]")
    a("s_waitcnt lgkmcnt(1)\nv_mfma_f32_16x16x32_bf16 v[96:99], v[84:87], v[92:95], v[96:99]")
    dpp("v_max_f32", 66, 66, "row_half_mirror")
    a("""
s_waitcnt lgkmcnt(0)
v_sub_f32 v64, v64, v66
v_sub_f32 v68, v68, v66
v_sub_f32 v70, v70, v66
v_exp_f32 v64, v64
v_exp_f32 v68, v68
v_exp_f32 v70, v70
v_mul_f32 v64, v64, v65
v_add_f32 v96, v96, v97
v_add_f32 v98, v98, v99
""")
    dpp("v_add_f32", 64, 64, "quad_perm:[1,0,3,2]")
    a("v_mul_f32 v96, v96, v68\nv_fmac_f32 v96, v98, v70")
    dpp("v_add_f32", 64, 64, "quad_perm:[2,3,0,1]")
    a("v_mov_b32 v97, v96")
    dpp("v_add_f32", 64, 64, "row_half_mirror")
    a("v_permlane16_swap_b32 v96, v97\nv_rcp_f32 v64, v64\nv_add_f32 v96, v96, v97\nv_mov_b32 v97, v96\nv_permlane32_swap_b32 v96, v97\nv_add_f32 v96, v96, v97")
    a("v_mul_f32 v96, v96, v64")
    tag8(96)
    a(f"""
s_mov_b64 exec, 0xffff
buffer_store_dword v96, v15, {S(R_WS)}, 0 offen sc1
s_mov_b64 exec, -1
""")
    stamp(12)
    a("s_waitcnt vmcnt(0)")
    gather([f"buffer_load_dwordx2 v[104:105], v9, {S(R_WS)}, {t2} offen sc1"], [("0xff", [(104, vT8), (105, vT8)])], 68, "L_h4", sel="wave",
           mid=(ffn2 if WOAT == "h3" else None))
    stamp(13)
    allred_lo8([104, 105], "v_add_f32")
    a("v_cvt_pk_bf16_f32 v64, v104, v105")
    for c in range(8): a(f"v_dot2_f32_bf16 v{72+c}, v{WOP+c}, v64, 0")
    rs8(72, 120)
    tag8(120)
    a(f"buffer_store_dwordx2 v[120:121], v11, {S(R_WS)}, {t3} offen sc1")
    stamp(14)
    a(f"""
s_lshr_b32 {t4}, s2, 4
s_and_b32 {t4}, {t4}, 7
s_lshl_b32 {t4}, {t4}, 3
s_add_u32 {t0}, {t4}, 128
s_and_b32 {t5}, {t0}, 31
s_mul_i32 {t5}, {t5}, {HB}
s_lshr_b32 {t4}, {t0}, 5
s_lshl_b32 {t4}, {t4}, 7
s_add_u32 {t4}, {t4}, {t5}
s_add_u32 {t4}, {t4}, {CN}
v_mul_u32_u24 v76, {HB}, v0
v_mov_b32 v77, 1
s_cmp_lg_u32 {sW}, 0
s_barrier
s_cbranch_scc1 L_na5
s_mov_b64 exec, 0xff
buffer_atomic_add v77, v76, {S(R_WS)}, {t4} offen sc1
s_mov_b64 exec, -1
L_na5:
""")
    a(f"s_cmp_lt_u32 {sFG}, 24\ns_cbranch_scc1 L_fin")
    a(f"""
s_sub_u32 {t0}, {sFG}, 24
s_lshl_b32 {t0}, {t0}, 3
s_add_u32 {t0}, {t0}, {sJ}
s_mul_i32 {t1}, {t0}, {SB}
s_lshl_b32 {t2}, {sW}, 10
s_add_u32 {t1}, {t1}, {t2}
s_add_u32 {t1}, {t1}, {SP}
s_add_u32 {t2}, {t1}, 8192
s_sub_u32 {t0}, {sFG}, 24
s_lshl_b32 {t0}, {t0}, 6
s_add_u32 {t0}, {t0}, {sJ}
s_lshl_b32 {t0}, {t0}, 1
v_lshlrev_b32 v8, 4, v{vM8}
v_add_u32 v8, {t0}, v8
global_load_ushort v12, v8, s[4:5]
v_bfe_u32 v9, v0, 4, 1
v_lshlrev_b32 v9, 8, v9
v_and_b32 v10, 3, v0
v_lshl_add_u32 v9, v10, 6, v9
v_lshrrev_b32 v10, 5, v0
v_lshl_add_u32 v9, v10, 5, v9
s_lshl_b32 {t5}, {sW}, 2
s_add_u32 {t5}, {t5}, {L_FIN}
v_add_u32 v9, {t5}, v9
v_lshlrev_b32 v10, 5, v{vM8}
v_add_u32 v10, {L_FIN}, v10
s_lshl_b32 {t4}, {sW}, 3
s_and_b32 {t5}, s2, 7
s_add_u32 {t4}, {t4}, {t5}
s_add_u32 {t3}, {t4}, 128
s_and_b32 {t5}, {t3}, 31
s_mul_i32 {t5}, {t5}, {HB}
s_lshr_b32 {t4}, {t3}, 5
s_lshl_b32 {t4}, {t4}, 7
s_add_u32 {t4}, {t4}, {t5}
s_add_u32 {t4}, {t4}, {CN}
""")
    hint(t4, 32, "L_c5")
    gather([f"buffer_load_dwordx4 {V(64+4*k)}, v{vL16}, {S(R_WS)}, {[t1,t2][k]} offen sc1" for k in range(2)],
           [("0xff", [(64 + k, vT8) for k in range(8)])], 80, "L_h5")
    stamp(1)
    a("""
v_pk_add_f32 v[64:65], v[64:65], v[68:69]
v_pk_add_f32 v[66:67], v[66:67], v[70:71]
v_permlane32_swap_b32 v64, v66
v_permlane32_swap_b32 v65, v67
v_pk_add_f32 v[64:65], v[64:65], v[66:67]
v_permlane16_swap_b32 v64, v65
v_add_f32 v64, v64, v65
""")
    dpp("v_add_f32", 64, 64, "row_ror:8"); dpp("v_add_f32", 64, 64, "row_ror:4")
    a(f"""
ds_write_b32 v9, v64
s_waitcnt lgkmcnt(0)
s_barrier
s_cmp_lg_u32 {sW}, 0
s_cbranch_scc1 L_fin
ds_read_b128 v[72:75], v10 offset:256
ds_read_b128 v[76:79], v10 offset:272
ds_read_b128 v[64:67], v10
ds_read_b128 v[68:71], v10 offset:16
s_waitcnt lgkmcnt(2)
v_pk_add_f32 v[72:73], v[72:73], v[74:75]
v_pk_add_f32 v[76:77], v[76:77], v[78:79]
v_pk_add_f32 v[72:73], v[72:73], v[76:77]
v_add_f32 v72, v72, v73
""")
    bfround(72, 72)
    a(f"""
v_mul_f32 v73, 0x{f2u(-math.log2(math.e)):08x}, v72
v_exp_f32 v73, v73
s_waitcnt lgkmcnt(0)
v_pk_add_f32 v[64:65], v[64:65], v[66:67]
v_pk_add_f32 v[68:69], v[68:69], v[70:71]
v_add_f32 v73, 1.0, v73
v_rcp_f32 v73, v73
v_pk_add_f32 v[64:65], v[64:65], v[68:69]
v_add_f32 v64, v64, v65
v_mul_f32 v72, v72, v73
v_cvt_pk_bf16_f32 v64, v64, v72
v_lshlrev_b32 v65, 16, v64
v_and_b32 v64, {sMSK}, v64
v_mul_f32 v64, v64, v65
""")
    bfround(64, 64)
    a(f"""
v_lshlrev_b32 v12, 16, v12
v_add_f32 v64, v64, v12
v_cvt_pk_bf16_f32 v64, v64, v64
s_mov_b64 exec, 0xff
global_store_short v8, v64, s[24:25]
s_cmp_lg_u32 {t0}, 0
s_cbranch_scc1 L_fin0
s_mov_b64 exec, 1
v_mov_b32 v65, 0
buffer_store_dword v{vT}, v65, {S(R_WS)}, 0 offen sc1
L_fin0:
s_mov_b64 exec, -1
L_fin:
""")
    if DIAG:
        stamp(15)
        for k in range(16): a(f"v_mov_b32 v{64+k}, s{ST0+2*k}")
        a(f"""
s_lshl_b32 {t0}, s2, 3
s_add_u32 {t0}, {t0}, {sW}
s_lshl_b32 {t0}, {t0}, 6
s_add_u32 {t0}, {t0}, {STAMP}
v_mov_b32 v8, 0
s_mov_b64 exec, 1
""")
        for k in range(4): a(f"buffer_store_dwordx4 {V(64+4*k)}, v8, {S(R_WS)}, {t0} offen offset:{16*k}")
        if opt.get("dbg", -1) >= 0:
            a(f"s_lshl_b32 {t0}, s2, 3\ns_add_u32 {t0}, {t0}, {sW}\ns_cmp_lg_u32 {t0}, {opt['dbg']}\ns_cbranch_scc1 L_end\ns_load_dwordx2 s[26:27], s[0:1], 88\ns_waitcnt lgkmcnt(0)")
            for k in range(1, 16): a(f"v_sub_u32 v{64+k}, v{64+k}, v64")
            for k in range(4): a(f"global_store_dwordx4 v8, {V(64+4*k)}, s[26:27] offset:{16*k}")
    a("L_end:\ns_endpgm")
    lines, n = hazard.fix(a.lines)
    body = "\n".join(lines) + "\n"
    return wrap_single(body, 256, 512, LDS_BYTES, 256), n

if __name__ == "__main__":
    name = sys.argv[1]
    opt = {}
    for kv in sys.argv[2:]:
        k, v = kv.split("=")
        try: opt[k] = int(v, 0)
        except ValueError: opt[k] = v
    s, n = gen(opt)
    open(name, "w").write(s)
    print("wrote", name, "nops inserted", n, "lines", s.count("\n"))
```

```python
import sys, math, struct
from asmlib import *
import hazard

def f2u(x): return struct.unpack("<I", struct.pack("<f", x))[0]

STAMP = 0x2000000
KTAG = 0x9E3779B9
RS = 1056
L_P = 128 * RS
L_MX = L_P + 4096
L_ST2 = L_MX + 512
L_QS = L_ST2 + 64
L_XN = L_QS + 512
L_HS = L_XN + 128
L_FIN = L_HS + 64
L_OR = L_FIN + 1024
L_Q = (L_OR + 2560 + 255) // 256 * 256
L_UV = L_Q
LDS_BYTES = L_Q + 16 * RS
assert LDS_BYTES <= 163840, LDS_BYTES

def gen(opt):
    SPREAD = opt.get("spread", 0)
    DIAG = opt.get("diag", 0)
    THR = opt.get("thr", 8)
    N0 = opt.get("n0", 0); N3 = opt.get("n3", 8); UKE = opt.get("uke", 1)
    REL = opt.get("rel", "iss")
    NT = opt.get("nt", "nt")
    NTC = opt.get("ntc", NT)
    if NT == "-": NT = ""
    if NTC == "-": NTC = ""
    SPIN = opt.get("spin", 100000)
    HINT = opt.get("hint", 200)
    T1AT = opt.get("t1at", "s")
    WOAT = opt.get("woat", "h3")
    H4C = opt.get("h4c", 1)
    H2C = opt.get("h2c", 0)
    HB = opt.get("hb", 0x41000)
    IB = 16384 + 384
    OH = 8 * IB
    SB = 16384 + 192
    QP = 0x10000; CP = QP + 0x1000; FP = QP + 0x4000; QA = QP + 0x3000
    CN = QP + 0x3800
    CN4 = QP + 0x3C00
    ML = 0x900000
    OP = 0xA00000
    SP = 0x1400000
    assert HB >= 0x6000 and QP + 32 * HB <= ML and OP + 32 * OH <= SP and SP + 64 * SB <= STAMP
    a = Asm()
    sW = "s3"
    sX, sIDX, sG, sJ, sH, sI, sFG, sTAG = "s30", "s31", "s32", "s33", "s34", "s35", "s36", "s37"
    sLO, sHI, sCNT = "s38", "s39", "s40"
    t0, t1, t2, t3, t4, t5 = "s41", "s42", "s43", "s44", "s45", "s46"
    u0, u1 = "s26", "s27"
    w0_, w1_ = "s6", "s7"
    sMSK = "s47"
    R_WS, R_A, R_B, R_O, R_D = 48, 52, 56, 60, 64
    sM8, sM1 = "s68", "s69"
    sHB, sFB, sGB, sH8 = "s30", "s31", "s17", "s16"
    ST0 = 70
    def srd(d, p, n):
        a(f"s_mov_b32 s{d}, s{p}\ns_mov_b32 s{d+1}, s{p+1}\ns_mov_b32 s{d+2}, {n}\ns_mov_b32 s{d+3}, 0x00020000")
    def S(r): return f"s[{r}:{r+3}]"
    def V(r, n=4): return f"v[{r}:{r+n-1}]"
    def stamp2(k):
        if DIAG == 2: a(f"s_memrealtime s[{ST0+2*k}:{ST0+2*k+1}]\ns_waitcnt lgkmcnt(0)")
    def stamp(k):
        if DIAG == 2 and 1 <= k <= 8: return
        if DIAG: a(f"s_memrealtime s[{ST0+2*k}:{ST0+2*k+1}]\ns_waitcnt lgkmcnt(0)")
    vL16, vN, vG, vM8, vR8 = 1, 2, 3, 4, 5
    vT8 = 7
    XP = 16; PATL = 20; PATG = 24; WB = 32
    QF = 64; AF = 128; TF = 192
    WO = 112; WD = 120; WOP = 160
    def allred_hi(v, tmp, op):
        a(f"v_mov_b32 v{tmp}, v{v}\nv_permlane16_swap_b32 v{v}, v{tmp}\n{op} v{v}, v{v}, v{tmp}")
        a(f"v_mov_b32 v{tmp}, v{v}\nv_permlane32_swap_b32 v{v}, v{tmp}\n{op} v{v}, v{v}, v{tmp}")
    def dpp(op, d, s, mode, bank="0xf"):
        a(f"{op}_dpp v{d}, v{s}, v{s} {mode} row_mask:0xf bank_mask:{bank}")
    def allred_lo8(vs, op):
        if isinstance(vs, int): vs = [vs]
        for m in ("quad_perm:[1,0,3,2]", "quad_perm:[2,3,0,1]", "row_half_mirror"):
            for v in vs: dpp(op, v, v, m)
    def wave_sum(v, tmp):
        allred_lo8(v, "v_add_f32"); dpp("v_add_f32", v, v, "row_mirror"); allred_hi(v, tmp, "v_add_f32")
    def rs8(acc, out):
        for c in range(4): a(f"v_permlane32_swap_b32 v{acc+c}, v{acc+c+4}")
        a(f"v_pk_add_f32 {V(acc,2)}, {V(acc,2)}, {V(acc+4,2)}\nv_pk_add_f32 {V(acc+2,2)}, {V(acc+2,2)}, {V(acc+6,2)}")
        for c in range(2): a(f"v_permlane16_swap_b32 v{acc+c}, v{acc+c+2}")
        a(f"v_pk_add_f32 {V(acc,2)}, {V(acc,2)}, {V(acc+2,2)}")
        dpp("v_add_f32", out, acc, "row_ror:8", "0x3"); dpp("v_add_f32", out, acc + 1, "row_ror:8", "0xc")
    def bfround(d, s):
        a(f"v_cvt_pk_bf16_f32 v{d}, v{s}, v{s}\nv_lshlrev_b32 v{d}, 16, v{d}")
    def gemv(W, P, acc, out, waits=None, nk=4):
        for k in range(nk):
            if waits: waits(k)
            for e in range(4):
                a(f"v_perm_b32 v{P+2*e}, v{W+8*k+4+e}, v{W+8*k+e}, {sLO}")
                a(f"v_perm_b32 v{P+2*e+1}, v{W+8*k+4+e}, v{W+8*k+e}, {sHI}")
            for c in range(8):
                a(f"v_dot2_f32_bf16 v{acc+c}, v{P+c}, v{XP+k}, {'0' if k == 0 else 'v%d' % (acc+c)}")
        rs8(acc, out)
    def tag8(v): a(f"v_and_or_b32 v{v}, v{v}, {sM8}, v{vT8}")
    def check(checks, bad):
        for gi, (mask, pairs) in enumerate(checks):
            b = bad + gi
            for d, e in pairs: a(f"v_xor_b32 v{d}, v{d}, v{e}")
            ds = [d for d, e in pairs]
            if len(ds) == 2: a(f"v_or_b32 v{b}, v{ds[0]}, v{ds[1]}")
            else:
                a(f"v_or3_b32 v{b}, v{ds[0]}, v{ds[1]}, v{ds[2]}")
                k = 3
                while k < len(ds):
                    if k + 1 < len(ds): a(f"v_or3_b32 v{b}, v{ds[k]}, v{ds[k+1]}, v{b}"); k += 2
                    else: a(f"v_or_b32 v{b}, v{ds[k]}, v{b}"); k += 1
            if gi == 0: a(f"v_and_b32 v{b}, {mask}, v{b}")
            else: a(f"v_and_or_b32 v{bad}, v{b}, {mask}, v{bad}")
        a(f"v_cmp_ne_u32 vcc, 0, v{bad}")
    def gather(loads, checks, bad, name, sel="lane", mid=None, issue=True):
        L = a.label(name); D = a.label(name + "d")
        if issue:
            for l in loads: a(l)
        if mid: mid()
        a(f"s_mov_b32 {sCNT}, {SPIN}")
        a(f"{L}:\ns_waitcnt vmcnt(0)")
        check(checks, bad)
        a(f"s_cbranch_vccz {D}\ns_sub_u32 {sCNT}, {sCNT}, 1\ns_cbranch_scc1 {D}")
        if sel == "quad": a("s_wqm_b64 exec, vcc")
        elif sel == "lane": a("s_mov_b64 exec, vcc")
        for l in loads: a(l)
        a(f"s_branch {L}\n{D}:")
        if sel != "wave": a("s_mov_b64 exec, -1")
    def hint(soff, target, name):
        L = a.label(name); D = a.label(name + "d")
        a(f"""
s_mov_b32 {sCNT}, {HINT}
s_mov_b64 exec, 1
{L}:
v_mov_b32 v126, 0
buffer_atomic_add v126, off, {S(R_WS)}, {soff} sc0 sc1
s_sub_u32 {sCNT}, {sCNT}, 1
s_cbranch_scc1 {D}
s_waitcnt vmcnt(0)
v_cmp_gt_u32 vcc, {target}, v126
s_cbranch_vccnz {L}
{D}:
s_mov_b64 exec, -1
""")
    def cnaddr(dst, k, tmp):
        a(f"s_and_b32 {tmp}, {k}, 31\ns_mul_i32 {tmp}, {tmp}, {HB}\ns_lshr_b32 {dst}, {k}, 5\ns_lshl_b32 {dst}, {dst}, 7\ns_add_u32 {dst}, {dst}, {tmp}\ns_add_u32 {dst}, {dst}, {CN}")
    def mk_pat(dst, sel):
        a(f"""
v_and_b32 v{dst}, 1, v{sel}
v_lshlrev_b32 v{dst}, 16, v{dst}
v_and_b32 v{dst+2}, 2, v{sel}
v_lshlrev_b32 v{dst+2}, 15, v{dst+2}
v_or_b32 v{dst+2}, 1, v{dst+2}
v_mov_b32 v{dst+1}, {t4}
v_mov_b32 v{dst+3}, {t5}
""")
    def mk_tags():
        a(f"""
s_add_u32 {sTAG}, {sTAG}, {KTAG}
s_and_b32 {t5}, {sTAG}, 0xff
v_mov_b32 v{vT8}, {t5}
s_and_b32 {t4}, {sTAG}, 3
s_mul_i32 {t4}, {t4}, 0x8001
s_and_b32 {t4}, {t4}, {sM1}
s_bfe_u32 {t5}, {sTAG}, 0x20002
s_mul_i32 {t5}, {t5}, 0x8001
s_and_b32 {t5}, {t5}, {sM1}
""")
        mk_pat(PATL, 0); mk_pat(PATG, vG)
    def consts():
        a(f"""
s_mov_b32 {sLO}, 0x05040100
s_mov_b32 {sHI}, 0x07060302
s_mov_b32 {sMSK}, 0xffff0000
s_mov_b32 {sM8}, 0xffffff00
s_mov_b32 {sM1}, 0x00010001
s_mov_b32 {sH8}, 0x8000
s_mul_i32 {sHB}, {sH}, {HB}
s_mul_i32 {sFB}, {sFG}, {HB}
s_mul_i32 {sGB}, {sG}, {16*HB}
""")
        if DIAG:
            for k in range(1, 16): a(f"s_mov_b32 s{ST0+2*k}, 0")
        srd(R_WS, 28, 0x10000000)

    stamp_entry = f"s_memrealtime s[{ST0}:{ST0+1}]" if DIAG else ""
    a(f"""
{stamp_entry}
s_getpc_b64 s[{R_B}:{R_B+1}]
L_pc:
v_subrev_u32 v8, 256, v0
v_lshlrev_b32 v8, 6, v8
v_cmp_gt_u32 vcc, L_end-L_pc, v8
s_and_saveexec_b64 s[4:5], vcc
s_cbranch_execz L_npf
global_load_dword v9, v8, s[{R_B}:{R_B+1}]
L_npf:
s_mov_b64 exec, s[4:5]
s_cmp_ge_u32 s2, 256
s_cbranch_scc1 L_end
s_load_dwordx16 s[4:19], s[0:1], 0
s_load_dwordx8 s[20:27], s[0:1], 64
s_load_dwordx2 s[28:29], s[0:1], 96
v_lshrrev_b32 v1, 6, v0
v_and_b32 v0, 63, v0
v_readfirstlane_b32 {sW}, v1
v_lshlrev_b32 v{vL16}, 4, v0
v_mov_b32 v19, 0
v_and_b32 v{vN}, 15, v0
v_lshrrev_b32 v{vG}, 4, v0
v_and_b32 v{vM8}, 7, v0
v_lshrrev_b32 v{vR8}, 3, v0
s_and_b32 {sX}, s2, 7
s_lshr_b32 {sIDX}, s2, 3
s_lshr_b32 {sG}, {sIDX}, 4
s_and_b32 {sJ}, {sIDX}, 7
s_lshr_b32 {t0}, {sIDX}, 3
s_and_b32 {t1}, {t0}, 1
s_lshl_b32 {sH}, {sG}, 4
s_lshl_b32 {t2}, {sX}, 1
s_add_u32 {sH}, {sH}, {t2}
s_add_u32 {sH}, {sH}, {t1}
s_lshl_b32 {sI}, {sX}, 4
s_and_b32 {t1}, {sIDX}, 15
s_add_u32 {sI}, {sI}, {t1}
s_lshl_b32 {sFG}, {t0}, 3
s_add_u32 {sFG}, {sFG}, {sX}
v_lshlrev_b32 v64, 4, v{vR8}
s_lshl_b32 {t0}, {sJ}, 7
v_add_u32 v64, {t0}, v64
v_lshlrev_b32 v65, 16, v{vR8}
v_lshl_add_u32 v65, v{vM8}, 4, v65
s_lshl_b32 {t0}, {sJ}, 19
s_lshl_b32 {t1}, {sH}, 8
s_add_u32 {t2}, {t0}, {t1}
s_lshl_b32 {t1}, {sW}, 7
s_add_u32 {t0}, {t2}, {t1}
s_mov_b32 s{R_A+2}, 4194304
s_mov_b32 s{R_A+3}, 0x00020000
s_cmp_ge_u32 {sW}, 2
s_waitcnt lgkmcnt(0)
s_cbranch_scc1 L_not01
s_mov_b64 s[{R_A}:{R_A+1}], s[8:9]
s_setprio 3
global_load_dwordx4 v[8:11], v{vL16}, s[4:5]
global_load_dwordx4 v[12:15], v64, s[4:5]
""")
    for u in range(8):
        a(f"buffer_load_dwordx4 {V(WB+4*u)}, v65, {S(R_A)}, {t0} offen {NT}")
        if u < 7: a(f"s_add_u32 {t0}, {t0}, 8192")
    a(f"s_load_dword {sTAG}, s[28:29], 0")
    if N0: a("s_barrier")
    UK = 128
    consts()
    a(f"""
s_add_u32 {t3}, {sHB}, {QP}
s_lshl_b32 {t0}, {sJ}, 9
s_add_u32 {t0}, {t0}, {t3}
s_lshl_b32 {t1}, {sW}, 8
s_add_u32 {t0}, {t0}, {t1}
v_lshl_add_u32 v29, v0, 2, {t0}
s_waitcnt vmcnt(9)
""")
    for e in range(4):
        a(f"v_lshlrev_b32 v{64+2*e}, 16, v{8+e}\nv_and_b32 v{65+2*e}, {sMSK}, v{8+e}")
    a("""
v_pk_add_f32 v[72:73], v[64:65], v[66:67]
v_pk_add_f32 v[74:75], v[68:69], v[70:71]
v_pk_add_f32 v[72:73], v[72:73], v[74:75]
v_add_f32 v72, v72, v73
""")
    wave_sum(72, 73)
    a(f"v_mul_f32 v72, 0x{f2u(1/512):08x}, v72")
    for e in range(8): a(f"v_sub_f32 v{64+e}, v{64+e}, v72")
    a("v_mul_f32 v74, v64, v64\nv_mul_f32 v75, v65, v65")
    for e in range(2, 8): a(f"v_fmac_f32 v{74+(e&1)}, v{64+e}, v{64+e}")
    a("v_add_f32 v74, v74, v75")
    wave_sum(74, 73)
    a(f"v_mul_f32 v74, 0x{f2u(1/512):08x}, v74")
    bfround(74, 74)
    a(f"v_add_f32 v74, 0x{f2u(1e-5):08x}, v74")
    bfround(74, 74)
    a("v_sqrt_f32 v74, v74")
    bfround(74, 74)
    a("v_rcp_f32 v74, v74")
    bfround(72, 72)
    a("s_waitcnt vmcnt(8)")
    for e in range(4):
        a(f"v_lshlrev_b32 v{64+2*e}, 16, v{12+e}\nv_and_b32 v{65+2*e}, {sMSK}, v{12+e}")
    for e in range(8): a(f"v_sub_f32 v{64+e}, v{64+e}, v72")
    for e in range(4): a(f"v_cvt_pk_bf16_f32 v{12+e}, v{64+2*e}, v{65+2*e}")
    for e in range(4):
        a(f"v_lshlrev_b32 v{64+2*e}, 16, v{12+e}\nv_and_b32 v{65+2*e}, {sMSK}, v{12+e}")
    for e in range(8): a(f"v_mul_f32 v{64+e}, v{64+e}, v74")
    for e in range(4): a(f"v_cvt_pk_bf16_f32 v{XP+e}, v{64+2*e}, v{65+2*e}")
    a(f"""
s_waitcnt lgkmcnt(0)
s_add_u32 {t5}, {sTAG}, {KTAG}
s_and_b32 {t5}, {t5}, 0xff
v_mov_b32 v{vT8}, {t5}
""")
    def ukloads():
        srd(R_B, 10, 4194304)
        a(f"""
v_lshlrev_b32 v28, 13, v{vN}
v_lshl_add_u32 v28, v{vG}, 4, v28
s_lshl_b32 {t1}, {sW}, 18
s_add_u32 {u0}, {t2}, {t1}
s_add_u32 {u1}, {u0}, 131072
""")
        for t in range(2):
            for s_ in range(4):
                a(f"buffer_load_dwordx4 {V(UK+16*t+4*s_)}, v28, {S(R_B)}, {u0 if t == 0 else u1} offen offset:{64*s_} {NT}")
    if UKE: ukloads()
    stamp(1)
    gemv(WB, 64, 96, 30, waits=lambda k: a(f"s_waitcnt vmcnt({6-2*k+8*UKE})"))
    tag8(30)
    a(f"buffer_store_dword v30, v29, {S(R_WS)}, 0 offen sc1")
    if not UKE: ukloads()
    a(f"v_lshlrev_b32 v104, 4, v{vR8}\nv_add_u32 v104, {L_XN}, v104\nds_write_b128 v104, {V(XP)}")
    a(f"""
v_and_b32 v104, 31, v0
v_lshrrev_b32 v105, 5, v0
v_lshlrev_b32 v106, 11, v105
v_lshl_add_u32 v106, v104, 4, v106
""")
    def setup2():
        a(f"""
s_lshl_b32 {t1}, {sW}, 8
s_add_u32 {t1}, {t1}, {L_QS}
v_and_b32 v107, 1, v104
v_lshlrev_b32 v107, 6, v107
v_lshl_add_u32 v107, v105, 5, v107
v_and_b32 v111, 14, v104
v_add_u32 v107, v111, v107
v_and_b32 v111, 16, v104
v_lshl_add_u32 v107, v111, 3, v107
v_add_u32 v107, {t1}, v107
v_lshlrev_b32 v108, 4, v{vG}
v_add_u32 v108, {t1}, v108
v_lshlrev_b32 v109, 5, v{vN}
v_lshl_add_u32 v109, v{vG}, 3, v109
v_lshrrev_b32 v110, 4, v109
s_lshl_b32 {t1}, {sJ}, 7
s_add_u32 {t0}, {sHB}, {t1}
s_lshl_b32 {t1}, {sW}, 6
s_add_u32 {t0}, {t0}, {t1}
s_add_u32 {t0}, {t0}, {QA}
v_add_u32 v109, {t0}, v109
""")
        mk_tags()
        mk_pat(120, 110)
        a(f"""
v_and_b32 v110, 1, v{vG}
v_cmp_eq_u32 vcc, 1, v110
v_cndmask_b32 v120, v120, v122, vcc
v_cndmask_b32 v121, v121, v123, vcc
s_lshl_b32 {t0}, {sG}, 5
s_and_b32 {t1}, s2, 6
s_lshl_b32 {t1}, {t1}, 2
s_add_u32 {t0}, {t0}, {t1}
s_add_u32 {t0}, {t0}, 192
v_mul_u32_u24 v110, {HB}, v0
v_mov_b32 v111, 1
""")
        cnaddr(u0, t0, t1)
    stamp(2)
    if REL == "pub": a("s_barrier")
    a(f"s_waitcnt vmcnt({0 if UKE else 8})")
    stamp(3)
    G1 = 64
    gather([f"buffer_load_dwordx4 {V(G1+4*u)}, v106, {S(R_WS)}, {t3} offen offset:{u*512} sc1" for u in range(4)],
           [("0xff", [(G1 + k, vT8) for k in range(16)])], 96, "L_h1", mid=lambda: (a("s_barrier") if REL == "iss" else None, setup2()))
    if REL == "h1": a("s_barrier")
    stamp(4)
    for e in (0, 2): a(f"v_pk_add_f32 {V(G1+e,2)}, {V(G1+e,2)}, {V(G1+4+e,2)}\nv_pk_add_f32 {V(G1+8+e,2)}, {V(G1+8+e,2)}, {V(G1+12+e,2)}")
    for e in (0, 2): a(f"v_pk_add_f32 {V(G1+e,2)}, {V(G1+e,2)}, {V(G1+8+e,2)}")
    sc = (128 ** -0.5) * math.log2(math.e)
    a(f"""
v_permlane32_swap_b32 v{G1}, v{G1+2}
v_permlane32_swap_b32 v{G1+1}, v{G1+3}
v_pk_add_f32 {V(G1,2)}, {V(G1,2)}, {V(G1+2,2)}
v_mul_f32 v{G1}, 0x{f2u(sc):08x}, v{G1}
v_mul_f32 v{G1+1}, 0x{f2u(sc):08x}, v{G1+1}
v_cvt_pk_bf16_f32 v{G1}, v{G1}, v{G1+1}
ds_write_b16 v107, v{G1}
ds_write_b16_d16_hi v107, v{G1} offset:16
s_waitcnt lgkmcnt(0)
""")
    for s_ in range(4): a(f"ds_read_b128 {V(80+4*s_)}, v108 offset:{64*s_}")
    for s_ in range(4):
        a(f"s_waitcnt lgkmcnt({3-s_})")
        for t in range(2):
            a(f"v_mfma_f32_16x16x32_bf16 {V(112+4*t)}, {V(UK+16*t+4*s_)}, {V(80+4*s_)}, {'0' if s_ == 0 else V(112+4*t)}")
    a(f"""
s_mov_b32 exec_lo, 0x00020002
s_mov_b32 exec_hi, 0x00020002
v_mov_b32 v112, v116
v_mov_b32 v113, v117
v_mov_b32 v114, v118
v_mov_b32 v115, v119
s_mov_b32 exec_lo, 0x00030003
s_mov_b32 exec_hi, 0x00030003
v_add_u32 v112, 0x10000, v112
v_add_u32 v113, 0x10000, v113
v_add_u32 v114, 0x10000, v114
v_add_u32 v115, 0x10000, v115
v_perm_b32 v12, v113, v112, {sHI}
v_perm_b32 v13, v115, v114, {sHI}
v_bfi_b32 v12, {sM1}, v120, v12
v_bfi_b32 v13, {sM1}, v121, v13
buffer_store_dwordx2 v[12:13], v109, {S(R_WS)}, 0 offen sc1
""")
    if H2C: a(f"s_mov_b64 exec, 0xff\nbuffer_atomic_add v111, v110, {S(R_WS)}, {u0} offen sc1")
    a("s_mov_b64 exec, -1")
    stamp(5)
    a("s_branch L_b0")
    a(f"L_not01:\ns_load_dword {sTAG}, s[28:29], 0")
    a(f"s_cmp_ge_u32 {sW}, 4\ns_cbranch_scc1 L_loader")
    consts()
    a(f"""
s_cmp_eq_u32 {sW}, 3
s_cbranch_scc1 L_w3
s_lshl_b32 {t0}, {sJ}, 7
s_add_u32 {t0}, {t0}, {sHB}
s_add_u32 {t0}, {t0}, {CN4}
s_branch L_w23e
L_w3:
v_lshlrev_b32 v8, 21, v0
s_mov_b64 exec, 0x3
global_load_dword v70, v8, s[14:15]
global_load_dword v74, v8, s[12:13]
s_mov_b64 exec, 0xffff
global_load_dword v71, v8, s[28:29] offset:256
s_mov_b64 exec, 0xff
global_load_dword v75, v8, s[6:7]
s_mov_b64 exec, 0x1
global_load_dword v72, v8, s[22:23]
global_load_dword v73, v8, s[24:25]
global_load_dword v76, v8, s[18:19]
global_load_dword v77, v8, s[20:21]
s_mov_b64 exec, -1
""")
    cnaddr(t0, "s2", t1)
    a("L_w23e:")
    if N0: a("s_barrier")
    a(f"""
v_mov_b32 v64, 0
v_mov_b32 v65, 0
v_mov_b32 v66, 0
v_mov_b32 v67, 0
s_waitcnt vmcnt(0) lgkmcnt(0)
s_mov_b64 exec, 0xff
buffer_store_dwordx4 v[64:67], v{vL16}, {S(R_WS)}, {t0} offen sc1
s_mov_b64 exec, -1
""")
    mk_tags()
    a("s_setprio 3\ns_barrier\ns_branch L_b0")
    a("L_loader:")
    srd(R_A, 6, 16777216)
    consts()
    a("s_waitcnt lgkmcnt(0)")
    mk_tags()
    GUAT = opt.get("guat", 4)
    a(f"""
s_mul_i32 {u1}, {sJ}, {64*3584}
s_lshl_b32 {t3}, {sFG}, 7
s_add_u32 {u1}, {u1}, {t3}
s_and_b32 {t1}, {sW}, 1
s_mul_i32 {t1}, {t1}, {32*3584}
s_add_u32 {u1}, {u1}, {t1}
s_cmp_lt_u32 {sFG}, 28
s_cselect_b32 s{R_B+2}, 1835008, 0
s_bitcmp0_b32 {sW}, 1
s_cselect_b64 s[{R_B}:{R_B+1}], s[18:19], s[20:21]
s_mov_b32 s{R_B+3}, 0x00020000
v_mul_u32_u24 v13, {4*3584}, v{vR8}
v_lshl_add_u32 v13, v{vM8}, 4, v13
v_add_u32 v14, 7168, v13
s_sub_u32 {t0}, {sW}, 4
""")
    if SPREAD:
        a(f"""
s_lshl_b32 {t1}, {t0}, 4
s_add_u32 {t1}, {t1}, {sI}
s_and_b32 {t1}, {t1}, 127
s_xor_b32 {t3}, {t1}, 64
s_add_u32 {t3}, {t3}, 512
s_lshl_b32 {t2}, {t0}, 7
s_add_u32 {t1}, {t1}, {t2}
s_add_u32 {t3}, {t3}, {t2}
s_lshl_b32 {t1}, {t1}, 14
s_lshl_b32 {t3}, {t3}, 14
s_mul_i32 {t2}, {t0}, {16*RS}
""")
    else:
        a(f"""
s_lshl_b32 {t1}, {sI}, 17
s_lshl_b32 {t2}, {t0}, 14
s_add_u32 {t1}, {t1}, {t2}
s_add_u32 {t3}, {t1}, 65536
s_mul_i32 {t2}, {t0}, {16*RS}
""")
    if N0: a("s_barrier")
    for grp in range(8):
        if grp == N0: a("s_barrier")
        if grp == GUAT:
            for k in range(4):
                a(f"buffer_load_dwordx4 {V(WB+16+4*k)}, v{13+(k>>1)}, {S(R_B)}, {u1} offen offset:{3584*(k&1)} {NT}")
                if THR: a(f"s_waitcnt vmcnt({THR})")
        for r in range(4):
            a(f"s_add_u32 m0, {t2}, {32*r}")
            a(f"buffer_load_dwordx4 v{vL16}, {S(R_A)}, {t1} offen offset:{1024*r} {NTC} lds")
            if THR: a(f"s_waitcnt vmcnt({THR})")
        if grp == 3: a(f"s_mov_b32 {t1}, {t3}\ns_add_u32 {t2}, {t2}, {52*RS}")
        elif grp < 7: a(f"s_add_u32 {t1}, {t1}, 4096\ns_add_u32 {t2}, {t2}, {4*RS}")
    stamp(1)
    a("s_waitcnt vmcnt(16)")
    a("L_b0:")
    srd(R_O, 14, 4194304)
    srd(R_D, 22, 1835008)
    srd(R_A, 12, 4194304)
    a(f"""
v_mul_u32_u24 v8, {RS}, v{vN}
v_lshl_add_u32 v8, v{vG}, 4, v8
s_mul_i32 {t0}, {sW}, {16*RS}
v_add_u32 v9, {t0}, v8
v_add_u32 v8, {L_Q}, v8
v_lshrrev_b32 v10, 2, v0
v_mul_u32_u24 v10, {RS}, v10
v_and_b32 v11, 3, v0
v_lshl_add_u32 v10, v11, 3, v10
s_lshl_b32 {t0}, {sW}, 7
v_add_u32 v10, {t0}, v10
v_add_u32 v11, {64*RS}, v10
s_lshl_b32 {t0}, {sJ}, 19
s_lshl_b32 {t1}, {sH}, 8
s_add_u32 {t0}, {t0}, {t1}
s_and_b32 {t1}, {sW}, 3
s_lshl_b32 {t1}, {t1}, 17
s_add_u32 {u0}, {t0}, {t1}
s_lshl_b32 {t1}, {sJ}, 10
s_add_u32 {u1}, {sFB}, {t1}
s_and_b32 {t1}, {sW}, 3
s_lshl_b32 {t1}, {t1}, 8
s_add_u32 {u1}, {u1}, {t1}
s_add_u32 {u1}, {u1}, {FP}
s_and_b32 {t1}, {sW}, 1
s_lshl_b32 {t1}, {t1}, 6
s_add_u32 {t1}, {t1}, {L_XN}
v_lshl_add_u32 v15, v{vR8}, 3, {t1}
v_lshlrev_b32 v13, 11, v{vR8}
v_lshl_add_u32 v13, v{vM8}, 4, v13
v_lshlrev_b32 v14, 13, v{vR8}
v_lshl_add_u32 v14, v{vM8}, 4, v14
v_lshrrev_b32 v28, 1, v{vN}
v_xor_b32 v28, v28, v{vG}
v_lshlrev_b32 v28, 5, v28
v_and_b32 v29, 1, v0
v_lshl_add_u32 v28, v29, 4, v28
v_lshl_add_u32 v28, v{vG}, 13, v28
v_xor_b32 v29, 128, v28
v_add_u32 v29, 32768, v29
v_mul_u32_u24 v30, {OH}, v{vM8}
v_lshl_add_u32 v30, v{vG}, 4, v30
v_and_b32 v31, 8, v0
v_lshl_add_u32 v30, v31, 3, v30
s_mul_i32 {t3}, {sG}, {16*OH}
s_mul_i32 {t4}, {sW}, {IB}
s_add_u32 {t3}, {t3}, {t4}
s_lshl_b32 {t4}, {sI}, 7
s_add_u32 {t3}, {t3}, {t4}
s_add_u32 {t3}, {t3}, {OP}
v_add_u32 v30, {t3}, v30
v_add_u32 v31, {8*OH}, v30
v_lshlrev_b32 v6, 5, v{vN}
v_add_u32 v6, {L_MX}, v6
s_lshl_b32 {t2}, {sH}, 17
s_lshl_b32 {t3}, {sJ}, 14
s_add_u32 {t2}, {t2}, {t3}
s_lshl_b32 {t5}, {sW}, 7
s_add_u32 {w0_}, {t2}, {t5}
s_lshl_b32 {t3}, {sFG}, 16
s_add_u32 {t5}, {t5}, {t3}
s_lshl_b32 {t3}, {sJ}, 10
s_add_u32 {w1_}, {t5}, {t3}
s_mul_i32 {t3}, {sW}, {4*RS}
s_add_u32 {t3}, {t3}, {L_Q}
v_add_u32 v12, {t3}, v{vL16}
s_mul_i32 {t0}, {sW}, {4*HB}
s_add_u32 {t0}, {t0}, {sGB}
s_add_u32 {t0}, {t0}, {QA}
s_add_u32 {t1}, {t0}, {HB}
s_add_u32 {t2}, {t1}, {HB}
s_add_u32 {t3}, {t2}, {HB}
s_add_u32 {t4}, {u0}, 65536
s_cmp_ge_u32 {sW}, 4
""")
    wol = [f"buffer_load_dwordx4 {V(WO)}, v13, {S(R_O)}, {w0_} offen {NT}", f"buffer_load_dwordx4 {V(WO+4)}, v13, {S(R_O)}, {w0_} offen offset:1024 {NT}",
           f"buffer_load_dwordx4 {V(WD)}, v14, {S(R_D)}, {w1_} offen {NT}"]
    WO03 = opt.get("wo03", "b0")
    if WO03 == "b0":
        a("s_cbranch_scc1 L_nwo")
        for l in wol: a(l)
        a("L_nwo:")
    a("s_waitcnt lgkmcnt(0)\ns_barrier")
    def rdT(ks, T):
        base = "v10" if ks < 2 else "v11"
        off = (ks & 1) * 32 * RS + 32 * T
        r = TF + 16 * ks + 4 * T
        a(f"ds_read_b64_tr_b16 {V(r,2)}, {base} offset:{off}\nds_read_b64_tr_b16 {V(r+2,2)}, {base} offset:{off+16*RS}")
    G2 = 64
    h2loads = [f"buffer_load_dwordx4 {V(G2+4*k)}, v{vL16}, {S(R_WS)}, {[t0,t1,t2,t3][k]} offen sc1" for k in range(4)]
    a("s_cbranch_scc1 L_ng")
    for l in h2loads: a(l)
    a("L_ng:")
    stamp(6)
    for ks in range(2):
        for T in range(4): rdT(ks, T)
        a("s_waitcnt lgkmcnt(7)")
    a("s_cbranch_scc0 L_nw")
    T1T = opt.get("t1t", THR)
    a(f"ds_read_b64 {V(XP,2)}, v15")
    tl = [f"buffer_load_dwordx4 {V(WB+4*k)}, v{28+(k&1)}, {S(R_A)}, {u0 if k < 2 else t4} offen {NT}" for k in range(4)] + wol
    for l in tl[:4]:
        if T1T: a(f"s_waitcnt vmcnt({T1T-1})")
        a(l)
    a("s_waitcnt lgkmcnt(0)")
    gemv(WB + 16, 64, 72, 18, nk=2)
    tag8(18)
    a("v_lshlrev_b32 v19, 2, v0")
    for l in tl[4:]:
        if T1T: a(f"s_waitcnt vmcnt({T1T-1})")
        a(l)
    a("s_waitcnt vmcnt(7)\nL_nw:")
    stamp(8)
    for s in range(8): a(f"ds_read_b128 {V(AF+4*s)}, v9 offset:{64*s}")
    a("s_waitcnt lgkmcnt(7)")
    for s in range(8, 16): a(f"ds_read_b128 {V(AF+4*s)}, v9 offset:{64*s}")
    a(f"s_cbranch_scc0 L_g2\nbuffer_store_dword v18, v19, {S(R_WS)}, {u1} offen sc1\ns_branch L_ba\nL_g2:")
    gather(h2loads, [(sM1, [(G2 + 4 * k + e, PATL + e) for k in range(4) for e in range(4)])], 96, "L_h2g", sel="quad", issue=False)
    a("s_waitcnt lgkmcnt(8)")
    for k in range(4): a(f"ds_write_b128 v12, {V(G2+4*k)} offset:{k*RS}")
    if WO03 == "ba":
        for l in wol: a(l)
    a(f"""
s_setprio 0
L_ba:
s_lshl_b32 {t2}, {sW}, 2
s_lshr_b32 {t0}, {sW}, 1
s_lshl_b32 {t0}, {t0}, 10
s_and_b32 {t1}, {sW}, 1
s_lshl_b32 {t1}, {t1}, 3
s_add_u32 {t0}, {t0}, {t1}
s_add_u32 {t3}, {t0}, {L_P}
s_waitcnt lgkmcnt(0)
s_barrier
""")
    stamp(7)
    PRE = 12
    SA = 12
    for s in range(PRE): a(f"ds_read_b128 {V(QF+4*s)}, v8 offset:{64*s}")
    for s in range(16):
        rem = min(16, s + PRE) - (s + 1)
        a(f"s_waitcnt lgkmcnt({rem})")
        a(f"v_mfma_f32_16x16x32_bf16 {V(SA)}, {V(AF+4*s)}, {V(QF+4*(s%12))}, {'0' if s == 0 else V(SA)}")
        if s + PRE < 16: a(f"ds_read_b128 {V(QF+4*((s+PRE)%12))}, v8 offset:{64*(s+PRE)}")
    for T in range(4): rdT(2, T)
    a(f"""
v_add_u32 v64, {t2}, v6
v_add_u32 v65, {t3}, v{vL16}
v_add_u32 v76, {L_P}, v{vL16}
v_max3_f32 v66, v{SA}, v{SA+1}, v{SA+2}
v_max_f32 v66, v66, v{SA+3}
""")
    allred_hi(66, 67, "v_max_f32")
    a("ds_write_b32 v64, v66")
    a(f"""
s_waitcnt lgkmcnt(0)
s_barrier
ds_read_b128 v[68:71], v6
ds_read_b128 v[72:75], v6 offset:16
""")
    for T in range(2): rdT(3, T)
    a(f"""
s_waitcnt lgkmcnt(4)
v_max3_f32 v66, v68, v69, v70
v_max3_f32 v67, v71, v72, v73
v_max3_f32 v66, v66, v74, v75
v_max_f32 v66, v66, v67
v_and_b32 v66, {sM8}, v66
""")
    for r in range(4): a(f"v_sub_f32 v{SA+r}, v{SA+r}, v66")
    for r in range(4): a(f"v_exp_f32 v{SA+r}, v{SA+r}")
    a(f"""
v_cvt_pk_bf16_f32 v68, v{SA}, v{SA+1}
v_cvt_pk_bf16_f32 v69, v{SA+2}, v{SA+3}
ds_write_b64 v65, v[68:69]
""")
    for T in range(2, 4): rdT(3, T)
    a("s_waitcnt lgkmcnt(4)\ns_barrier")
    PFR = 80
    for ks in range(4): a(f"ds_read_b128 {V(PFR+4*ks)}, v76 offset:{1024*ks}")
    OA = AF; LA = AF + 16; ONE = AF + 20
    for ks in range(4):
        a(f"s_waitcnt lgkmcnt({3-ks})")
        for T in range(4):
            a(f"v_mfma_f32_16x16x32_bf16 {V(OA+4*T)}, {V(TF+16*ks+4*T)}, {V(PFR+4*ks)}, {'0' if ks == 0 else V(OA+4*T)}")
    for T in range(4):
        a(f"v_cvt_pk_bf16_f32 v{96+2*T}, v{OA+4*T}, v{OA+4*T+1}\nv_cvt_pk_bf16_f32 v{97+2*T}, v{OA+4*T+2}, v{OA+4*T+3}")
        if T < 2:
            a(f"v_bfi_b32 v{104+2*T}, {sM1}, v{PATG+2*T}, v{96+2*T}\nv_bfi_b32 v{105+2*T}, {sM1}, v{PATG+2*T+1}, v{97+2*T}")
        a(f"v_bfi_b32 v{96+2*T}, {sM1}, v{PATG+(2*T)%4}, v{96+2*T}\nv_bfi_b32 v{97+2*T}, {sM1}, v{PATG+(2*T+1)%4}, v{97+2*T}")
    for e in range(4): a(f"v_mov_b32_dpp v{96+e}, v{100+e} row_ror:8 row_mask:0xf bank_mask:0xc")
    a(f"buffer_store_dwordx4 v[96:99], v30, {S(R_WS)}, 0 offen sc1")
    for e in range(4): a(f"v_mov_b32_dpp v{100+e}, v{104+e} row_ror:8 row_mask:0xf bank_mask:0x3")
    a(f"buffer_store_dwordx4 v[100:103], v31, {S(R_WS)}, 0 offen sc1")
    stamp(9)
    a(f"s_cmp_lg_u32 {sW}, 2\ns_cbranch_scc1 L_b4")
    for r in range(4): a(f"v_mov_b32 v{ONE+r}, 0x3f803f80")
    for ks in range(4):
        a(f"v_mfma_f32_16x16x32_bf16 {V(LA)}, {V(ONE)}, {V(PFR+4*ks)}, {'0' if ks == 0 else V(LA)}")
    a(f"""
v_lshlrev_b32 v75, 3, v0
s_lshl_b32 {t3}, {sG}, 14
s_lshl_b32 {t4}, {sI}, 7
s_add_u32 {t3}, {t3}, {t4}
s_add_u32 {t3}, {t3}, {ML}
v_or_b32 v108, v66, v{vT8}
v_mul_u32_u24 v76, {HB}, v0
v_mov_b32 v77, 1
s_lshl_b32 {t4}, {sG}, 6
s_and_b32 {t5}, s2, 7
s_lshl_b32 {t5}, {t5}, 3
s_add_u32 {t2}, {t4}, {t5}
""")
    cnaddr(t4, t2, t5)
    a(f"""
v_and_or_b32 v109, v{LA}, {sM8}, v{vT8}
s_mov_b64 exec, 0xffff
buffer_store_dwordx2 v[108:109], v75, {S(R_WS)}, {t3} offen sc1
s_mov_b64 exec, 0xff
s_barrier
buffer_atomic_add v77, v76, {S(R_WS)}, {t4} offen sc1
s_mov_b64 exec, -1
s_branch L_b4e
L_b4:
s_barrier
L_b4e:
""")
    stamp2(1)
    a(f"""
s_cmp_lt_u32 {sW}, 4
s_cbranch_scc1 L_pc0
s_lshl_b32 {t0}, {sW}, 12
s_add_u32 {t0}, {t0}, {L_UV - 4*4096}
v_add_u32 v9, {t0}, v{vL16}
s_waitcnt vmcnt(6)
""")
    for u in range(4): a(f"ds_write_b128 v9, {V(WB+4*u)} offset:{1024*u}")
    a(f"""
L_pc0:
s_lshl_b32 {t2}, {sG}, 6
s_lshl_b32 {t1}, {sW}, 3
s_add_u32 {t2}, {t2}, {t1}
s_and_b32 {t1}, s2, 7
s_add_u32 {t2}, {t2}, {t1}
""")
    cnaddr(t5, t2, t1)
    a(f"""
v_lshlrev_b32 v8, 7, v{vR8}
s_lshl_b32 {t0}, {sG}, 14
s_lshl_b32 {t1}, {sW}, 11
s_add_u32 {t0}, {t0}, {t1}
s_and_b32 {t1}, {sH}, 15
s_lshl_b32 {t1}, {t1}, 3
s_add_u32 {t0}, {t0}, {t1}
s_add_u32 {t0}, {t0}, {ML}
s_mul_i32 {t1}, {sH}, {OH}
s_mul_i32 {t2}, {sJ}, {IB}
s_add_u32 {t1}, {t1}, {t2}
s_lshl_b32 {t2}, {sW}, 11
s_add_u32 {t1}, {t1}, {t2}
s_add_u32 {t1}, {t1}, {OP}
""")
    stamp2(2)
    hint(t5, 16, "L_c3")
    stamp(10)
    hfloads = [f"buffer_load_dword v{104+k}, v10, {S(R_WS)}, {t4} offen offset:{256*k} sc1" for k in range(4)]
    def mid3():
        a(f"""
s_lshl_b32 {t2}, {sW}, 3
s_add_u32 {t2}, {t2}, {L_ST2}
v_mov_b32 v74, {t2}
v_bfe_u32 v75, v0, 3, 1
v_mul_u32_u24 v75, 160, v75
v_lshl_add_u32 v75, v{vM8}, 4, v75
v_lshl_add_u32 v75, v{vG}, 2, v75
s_mul_i32 {t2}, {sW}, 320
s_add_u32 {t2}, {t2}, {L_OR}
v_add_u32 v75, {t2}, v75
v_mul_u32_u24 v76, 160, v{vN}
v_lshl_add_u32 v76, v{vG}, 4, v76
v_add_u32 v76, {L_OR}, v76
v_lshrrev_b32 v77, 2, v0
v_and_b32 v78, 7, v77
v_xor_b32 v78, {sW}, v78
v_lshlrev_b32 v77, 8, v77
v_lshl_add_u32 v77, v78, 5, v77
v_and_b32 v78, 3, v0
v_lshl_add_u32 v77, v78, 3, v77
v_add_u32 v77, {L_UV}, v77
v_lshlrev_b32 v78, 3, v{vM8}
v_add_u32 v78, {L_ST2}, v78
v_lshlrev_b32 v79, 4, v{vG}
v_add_u32 v79, {L_ST2}, v79
v_mov_b32 v14, {sH8}
s_lshl_b32 {t2}, {sW}, 9
s_add_u32 {t2}, {sHB}, {t2}
s_lshl_b32 {t3}, {sJ}, 6
s_add_u32 {t2}, {t2}, {t3}
s_add_u32 {t2}, {t2}, {CP}
v_lshl_add_u32 v15, v0, 2, {t2}
s_lshl_b32 {t2}, {sJ}, 9
s_add_u32 {t2}, {sHB}, {t2}
s_add_u32 {t2}, {t2}, {CP}
v_lshlrev_b32 v9, 6, v{vM8}
v_lshl_add_u32 v9, v{vR8}, 3, v9
v_mul_u32_u24 v11, {SB}, v{vR8}
v_lshl_add_u32 v11, v{vM8}, 3, v11
s_mul_i32 {t3}, {sW}, {8*SB}
s_lshl_b32 {t4}, s2, 6
s_add_u32 {t3}, {t3}, {t4}
s_add_u32 {t3}, {t3}, {SP}
v_lshlrev_b32 v10, 10, v{vM8}
v_lshl_add_u32 v10, v{vR8}, 2, v10
s_lshl_b32 {t4}, {sJ}, 5
s_add_u32 {t4}, {sFB}, {t4}
s_add_u32 {t4}, {t4}, {FP}
s_lshl_b32 {u0}, {sW}, 7
s_add_u32 {u0}, {u0}, {sHB}
s_add_u32 {u0}, {u0}, {CN4}
s_lshl_b32 {u1}, {sJ}, 7
s_add_u32 {u1}, {u1}, {sHB}
s_add_u32 {u1}, {u1}, {CN4}
v_mov_b32 v12, 1
v_lshlrev_b32 v13, 3, v{vR8}
v_add_u32 v13, {L_HS}, v13
s_and_b32 {t5}, s2, 7
s_cmp_lg_u32 {t5}, {sW}
s_cbranch_scc1 L_nhf
""")
        gather(hfloads, [("0xff", [(104 + k, vT8) for k in range(4)])], 108, "L_hf", sel="wave")
        a("v_add_f32 v104, v104, v105\nv_add_f32 v105, v106, v107")
        allred_lo8([104, 105], "v_add_f32")
        a("ds_write_b64 v13, v[104:105]\nL_nhf:")
    gather([f"buffer_load_dwordx2 v[64:65], v8, {S(R_WS)}, {t0} offen sc1",
            f"buffer_load_dwordx2 v[68:69], v8, {S(R_WS)}, {t0} offen offset:1024 sc1",
            f"buffer_load_dwordx4 v[80:83], v{vL16}, {S(R_WS)}, {t1} offen sc1",
            f"buffer_load_dwordx4 v[84:87], v{vL16}, {S(R_WS)}, {t1} offen offset:1024 sc1"],
           [("0xff", [(64, vT8), (65, vT8), (68, vT8), (69, vT8)]), (sM1, [(80 + k, PATL + (k & 3)) for k in range(8)])], 72, "L_h3", sel="wave", mid=mid3)
    stamp(11)
    def unp(d, s):
        a(f"v_lshl_or_b32 v{d}, v{s}, 16, v14\nv_and_or_b32 v{d+1}, v{s}, {sMSK}, v14")
    a("v_max_f32 v72, v64, v68")
    for e in range(2): unp(88 + 2 * e, 80 + e)
    dpp("v_max_f32", 72, 72, "row_ror:8")
    a("v_mov_b32 v73, v72")
    for e in range(2, 4): unp(88 + 2 * e, 80 + e)
    a("v_permlane16_swap_b32 v72, v73\nv_max_f32 v72, v72, v73\nv_mov_b32 v73, v72")
    for e in range(2): unp(96 + 2 * e, 84 + e)
    a("v_permlane32_swap_b32 v72, v73\nv_max_f32 v72, v72, v73")
    a("v_sub_f32 v64, v64, v72\nv_sub_f32 v68, v68, v72\nv_exp_f32 v64, v64\nv_exp_f32 v68, v68")
    for e in range(2, 4): unp(96 + 2 * e, 84 + e)
    a("v_mul_f32 v73, v64, v65\nv_fmac_f32 v73, v68, v69\nv_mov_b32 v65, v64\nv_mov_b32 v69, v68")
    for e in range(0, 8, 2): a(f"v_pk_mul_f32 v[{88+e}:{89+e}], v[64:65], v[{88+e}:{89+e}]")
    for e in range(0, 8, 2): a(f"v_pk_fma_f32 v[{88+e}:{89+e}], v[68:69], v[{96+e}:{97+e}], v[{88+e}:{89+e}]")
    dpp("v_add_f32", 73, 73, "row_ror:8")
    for c in range(4): a(f"v_permlane32_swap_b32 v{88+c}, v{92+c}")
    a("v_mov_b32 v65, v73")
    a("v_pk_add_f32 v[88:89], v[88:89], v[92:93]\nv_pk_add_f32 v[90:91], v[90:91], v[94:95]")
    a("v_permlane16_swap_b32 v73, v65")
    for c in range(2): a(f"v_permlane16_swap_b32 v{88+c}, v{90+c}")
    a("v_add_f32 v73, v73, v65")
    a("v_pk_add_f32 v[88:89], v[88:89], v[90:91]")
    a(f"""
v_mov_b32 v65, v73
v_cvt_pk_bf16_f32 v88, v88, v89
ds_write_b32 v75, v88
v_permlane32_swap_b32 v73, v65
v_add_f32 v73, v73, v65
ds_write_b64 v74, v[72:73]
s_waitcnt lgkmcnt(0)
""")
    stamp2(3)
    a("s_barrier")
    stamp2(4)
    a(f"""
ds_read_b64 v[64:65], v78
ds_read_b128 v[80:83], v76
ds_read_b64_tr_b16 v[88:89], v77
ds_read_b64_tr_b16 v[90:91], v77 offset:4096
ds_read_b128 v[84:87], v76 offset:64
ds_read_b64_tr_b16 v[92:93], v77 offset:8192
ds_read_b64_tr_b16 v[94:95], v77 offset:12288
ds_read_b128 v[68:71], v79
""")
    a("ds_read_b64 v[124:125], v13\ns_waitcnt lgkmcnt(8)")
    a("v_max_f32_dpp v66, v64, v64 quad_perm:[1,0,3,2] row_mask:0xf bank_mask:0xf")
    a("s_waitcnt lgkmcnt(5)\nv_mfma_f32_16x16x32_bf16 v[96:99], v[80:83], v[88:91], 0")
    dpp("v_max_f32", 66, 66, "quad_perm:[2,3,0,1]")
    a("s_waitcnt lgkmcnt(2)\nv_mfma_f32_16x16x32_bf16 v[96:99], v[84:87], v[92:95], v[96:99]")
    dpp("v_max_f32", 66, 66, "row_half_mirror")
    a("""
s_waitcnt lgkmcnt(0)
v_sub_f32 v64, v64, v66
v_sub_f32 v68, v68, v66
v_sub_f32 v70, v70, v66
v_exp_f32 v64, v64
v_exp_f32 v68, v68
v_exp_f32 v70, v70
v_mul_f32 v64, v64, v65
v_add_f32 v96, v96, v97
v_add_f32 v98, v98, v99
""")
    dpp("v_add_f32", 64, 64, "quad_perm:[1,0,3,2]")
    a("v_mul_f32 v96, v96, v68\nv_fmac_f32 v96, v98, v70")
    dpp("v_add_f32", 64, 64, "quad_perm:[2,3,0,1]")
    a("v_mov_b32 v97, v96")
    dpp("v_add_f32", 64, 64, "row_half_mirror")
    a("v_permlane16_swap_b32 v96, v97\nv_rcp_f32 v64, v64\nv_add_f32 v96, v96, v97\nv_mov_b32 v97, v96\nv_permlane32_swap_b32 v96, v97\nv_add_f32 v96, v96, v97")
    a("v_mul_f32 v96, v96, v64")
    tag8(96)
    a(f"""
s_mov_b64 exec, 0xffff
buffer_store_dword v96, v15, {S(R_WS)}, 0 offen sc1
""")
    if H4C: a(f"s_mov_b64 exec, 1\nbuffer_atomic_add v12, off, {S(R_WS)}, {u0} sc1")
    a("s_mov_b64 exec, -1")
    stamp(12)
    c1 = -2.0 * math.sqrt(2 / math.pi) * math.log2(math.e)
    def ffn2():
        a(f"""
v_cvt_pk_bf16_f32 v124, v124, v125
v_and_b32 v125, {sMSK}, v124
v_lshlrev_b32 v124, 16, v124
v_mul_f32 v100, v124, v124
v_mov_b32 v101, 0x{f2u(c1):08x}
v_fmac_f32 v101, 0x{f2u(c1*0.044715):08x}, v100
v_mul_f32 v100, v101, v124
v_exp_f32 v100, v100
v_add_f32 v100, 1.0, v100
v_rcp_f32 v100, v100
v_mul_f32 v124, v124, v100
""")
        bfround(124, 124)
        a("v_mul_f32 v124, v124, v125")
        bfround(13, 124)
        for e in range(4):
            a(f"v_lshlrev_b32 v{80+2*e}, 16, v{WD+e}\nv_and_b32 v{81+2*e}, {sMSK}, v{WD+e}")
        for e in range(8): a(f"v_mul_f32 v{80+e}, v13, v{80+e}")
        rs8(80, 125)
        for e in range(4):
            a(f"v_perm_b32 v{WOP+2*e}, v{WO+4+e}, v{WO+e}, {sLO}\nv_perm_b32 v{WOP+2*e+1}, v{WO+4+e}, v{WO+e}, {sHI}")
        tag8(125)
        a(f"""
s_lshr_b32 {t4}, s2, 4
s_and_b32 {t4}, {t4}, 7
s_lshl_b32 {t4}, {t4}, 3
s_add_u32 {t0}, {t4}, 128
""")
        cnaddr(t4, t0, t5)
        a(f"v_mul_u32_u24 v127, {HB}, v0")
        stamp2(6)
    ffn2()
    if H4C: hint(u1, 8, "L_c4")
    else: a("s_waitcnt vmcnt(0)")
    stamp2(8)
    gather([f"buffer_load_dwordx2 v[104:105], v9, {S(R_WS)}, {t2} offen sc1"], [("0xff", [(104, vT8), (105, vT8)])], 68, "L_h4", sel="wave")
    stamp(13)
    allred_lo8([104, 105], "v_add_f32")
    a("v_cvt_pk_bf16_f32 v64, v104, v105")
    for c in range(8): a(f"v_dot2_f32_bf16 v{72+c}, v{WOP+c}, v64, 0")
    rs8(72, 124)
    tag8(124)
    a(f"buffer_store_dwordx2 v[124:125], v11, {S(R_WS)}, {t3} offen sc1")
    stamp(14)
    a(f"""
s_cmp_lg_u32 {sW}, 0
s_barrier
s_cbranch_scc1 L_na5
s_mov_b64 exec, 0xff
buffer_atomic_add v12, v127, {S(R_WS)}, {t4} offen sc1
s_mov_b64 exec, -1
L_na5:
s_cmp_lt_u32 {sFG}, 24
s_cbranch_scc1 L_fin
s_lshl_b32 {t4}, {sW}, 3
s_and_b32 {t5}, s2, 7
s_add_u32 {t4}, {t4}, {t5}
s_add_u32 {t3}, {t4}, 128
""")
    cnaddr(t4, t3, t5)
    a(f"""
s_sub_u32 {t0}, {sFG}, 24
s_lshl_b32 {t0}, {t0}, 3
s_add_u32 {t0}, {t0}, {sJ}
s_mul_i32 {t1}, {t0}, {SB}
s_lshl_b32 {t2}, {sW}, 10
s_add_u32 {t1}, {t1}, {t2}
s_add_u32 {t1}, {t1}, {SP}
s_add_u32 {t2}, {t1}, 8192
s_sub_u32 {t0}, {sFG}, 24
s_lshl_b32 {t0}, {t0}, 6
s_add_u32 {t0}, {t0}, {sJ}
s_lshl_b32 {t0}, {t0}, 1
v_lshlrev_b32 v8, 4, v{vM8}
v_add_u32 v8, {t0}, v8
global_load_ushort v12, v8, s[4:5]
""")
    hint(t4, 32, "L_c5")
    stamp2(7)
    def mid5():
        a(f"""
v_bfe_u32 v9, v0, 4, 1
v_lshlrev_b32 v9, 8, v9
v_and_b32 v10, 3, v0
v_lshl_add_u32 v9, v10, 6, v9
v_lshrrev_b32 v10, 5, v0
v_lshl_add_u32 v9, v10, 5, v9
s_lshl_b32 {t5}, {sW}, 2
s_add_u32 {t5}, {t5}, {L_FIN}
v_add_u32 v9, {t5}, v9
v_lshlrev_b32 v10, 5, v{vM8}
v_add_u32 v10, {L_FIN}, v10
""")
    gather([f"buffer_load_dwordx4 {V(64+4*k)}, v{vL16}, {S(R_WS)}, {[t1,t2][k]} offen sc1" for k in range(2)],
           [("0xff", [(64 + k, vT8) for k in range(8)])], 80, "L_h5", mid=mid5)
    stamp(1)
    a("""
v_pk_add_f32 v[64:65], v[64:65], v[68:69]
v_pk_add_f32 v[66:67], v[66:67], v[70:71]
v_permlane32_swap_b32 v64, v66
v_permlane32_swap_b32 v65, v67
v_pk_add_f32 v[64:65], v[64:65], v[66:67]
v_permlane16_swap_b32 v64, v65
v_add_f32 v64, v64, v65
""")
    dpp("v_add_f32", 64, 64, "row_ror:8"); dpp("v_add_f32", 64, 64, "row_ror:4")
    a(f"""
ds_write_b32 v9, v64
s_waitcnt lgkmcnt(0)
s_barrier
s_cmp_lg_u32 {sW}, 0
s_cbranch_scc1 L_fin
ds_read_b128 v[72:75], v10 offset:256
ds_read_b128 v[76:79], v10 offset:272
ds_read_b128 v[64:67], v10
ds_read_b128 v[68:71], v10 offset:16
s_waitcnt lgkmcnt(2)
v_pk_add_f32 v[72:73], v[72:73], v[74:75]
v_pk_add_f32 v[76:77], v[76:77], v[78:79]
v_pk_add_f32 v[72:73], v[72:73], v[76:77]
v_add_f32 v72, v72, v73
""")
    bfround(72, 72)
    a(f"""
v_mul_f32 v73, 0x{f2u(-math.log2(math.e)):08x}, v72
v_exp_f32 v73, v73
s_waitcnt lgkmcnt(0)
v_pk_add_f32 v[64:65], v[64:65], v[66:67]
v_pk_add_f32 v[68:69], v[68:69], v[70:71]
v_add_f32 v73, 1.0, v73
v_rcp_f32 v73, v73
v_pk_add_f32 v[64:65], v[64:65], v[68:69]
v_add_f32 v64, v64, v65
v_mul_f32 v72, v72, v73
v_cvt_pk_bf16_f32 v64, v64, v72
v_lshlrev_b32 v65, 16, v64
v_and_b32 v64, {sMSK}, v64
v_mul_f32 v64, v64, v65
""")
    bfround(64, 64)
    a(f"""
v_lshlrev_b32 v12, 16, v12
v_add_f32 v64, v64, v12
v_cvt_pk_bf16_f32 v64, v64, v64
s_mov_b64 exec, 0xff
global_store_short v8, v64, s[24:25]
s_cmp_lg_u32 {t0}, 0
s_cbranch_scc1 L_fin0
s_mov_b64 exec, 1
v_mov_b32 v65, {sTAG}
buffer_store_dword v65, off, {S(R_WS)}, 0 sc1
L_fin0:
s_mov_b64 exec, -1
L_fin:
""")
    if DIAG:
        stamp(15)
        for k in range(16): a(f"v_mov_b32 v{64+k}, s{ST0+2*k}")
        a(f"""
s_lshl_b32 {t0}, s2, 3
s_add_u32 {t0}, {t0}, {sW}
s_lshl_b32 {t0}, {t0}, 6
s_add_u32 {t0}, {t0}, {STAMP}
v_mov_b32 v8, 0
s_mov_b64 exec, 1
""")
        for k in range(4): a(f"buffer_store_dwordx4 {V(64+4*k)}, v8, {S(R_WS)}, {t0} offen offset:{16*k}")
    a("L_end:\ns_endpgm")
    if opt.get("nost", 0):
        out = []; seen_b = False
        for l in a.lines:
            if l.strip() == "L_ba:": seen_b = True
            if not seen_b and "sc1" in l and ("store" in l or (opt["nost"] >= 2 and "load" in l)): l = "    s_nop 0"
            out.append(l)
        a.lines = out
    lines, n = hazard.fix(a.lines)
    body = "\n".join(lines) + "\n"
    return wrap_single(body, 256, 512, LDS_BYTES, 256), n

if __name__ == "__main__":
    name = sys.argv[1]
    opt = {}
    for kv in sys.argv[2:]:
        k, v = kv.split("=")
        try: opt[k] = int(v, 0)
        except ValueError: opt[k] = v
    s, n = gen(opt)
    open(name, "w").write(s)
    print("wrote", name, "nops inserted", n, "lines", s.count("\n"))
```

```python
import sys, math, struct
from asmlib import *
import hazard

def f2u(x): return struct.unpack("<I", struct.pack("<f", x))[0]

STAMP = 0x2000000
KTAG = 0x9E3779B9
RS = 1056
L_P = 128 * RS
L_MX = L_P + 4096
L_ST2 = L_MX + 512
L_QS = L_ST2 + 64
L_XN = L_QS + 512
L_HS = L_XN + 128
L_FIN = L_HS + 64
L_OR = L_FIN + 1024
L_Q = (L_OR + 2560 + 255) // 256 * 256
L_UV = L_Q
LDS_BYTES = L_Q + 16 * RS
assert LDS_BYTES <= 163840, LDS_BYTES

def gen(opt):
    SPREAD = opt.get("spread", 0)
    DIAG = opt.get("diag", 0)
    THR = opt.get("thr", 8)
    N0 = opt.get("n0", 0); N3 = opt.get("n3", 8); UKE = opt.get("uke", 1)
    REL = opt.get("rel", "iss")
    NT = opt.get("nt", "nt")
    NTC = opt.get("ntc", NT)
    if NT == "-": NT = ""
    if NTC == "-": NTC = ""
    SPIN = opt.get("spin", 100000)
    HINT = opt.get("hint", 200)
    T1AT = opt.get("t1at", "s")
    WOAT = opt.get("woat", "h3")
    H4C = opt.get("h4c", 1)
    H2C = opt.get("h2c", 0)
    HB = opt.get("hb", 0x41000)
    IB = 16384 + 384
    OH = 8 * IB
    SB = 16384 + 192
    QP = 0x10000; CP = QP + 0x1000; FP = QP + 0x4000; QA = QP + 0x3000
    CN = QP + 0x3800
    CN4 = QP + 0x3C00
    ML = 0x900000
    OP = 0xA00000
    SP = 0x1400000
    if opt.get("compact", 0):
        HB = 0x6000; ML = 0xE0000; SP = 0xF0000; OP = 0x200000
    assert HB >= 0x6000 and QP + 32 * HB <= ML
    a = Asm()
    sW = "s3"
    sX, sIDX, sG, sJ, sH, sI, sFG, sTAG = "s30", "s31", "s32", "s33", "s34", "s35", "s36", "s37"
    sLO, sHI, sCNT = "s38", "s39", "s40"
    t0, t1, t2, t3, t4, t5 = "s41", "s42", "s43", "s44", "s45", "s46"
    u0, u1 = "s26", "s27"
    w0_, w1_ = "s6", "s7"
    sMSK = "s47"
    R_WS, R_A, R_B, R_O, R_D = 48, 52, 56, 60, 64
    sM8, sM1 = "s68", "s69"
    sHB, sFB, sGB, sH8 = "s30", "s31", "s17", "s16"
    ST0 = 70
    def srd(d, p, n):
        a(f"s_mov_b32 s{d}, s{p}\ns_mov_b32 s{d+1}, s{p+1}\ns_mov_b32 s{d+2}, {n}\ns_mov_b32 s{d+3}, 0x00020000")
    def S(r): return f"s[{r}:{r+3}]"
    def V(r, n=4): return f"v[{r}:{r+n-1}]"
    def stamp2(k):
        if DIAG == 2: a(f"s_memrealtime s[{ST0+2*k}:{ST0+2*k+1}]\ns_waitcnt lgkmcnt(0)")
    def stamp(k):
        if DIAG == 2 and 1 <= k <= 8: return
        if DIAG: a(f"s_memrealtime s[{ST0+2*k}:{ST0+2*k+1}]\ns_waitcnt lgkmcnt(0)")
    vL16, vN, vG, vM8, vR8 = 1, 2, 3, 4, 5
    vT8 = 7
    XP = 16; PATL = 20; PATG = 24; WB = 32
    QF = 64; AF = 128; TF = 192
    WO = 112; WD = 120; WOP = 160
    def allred_hi(v, tmp, op):
        a(f"v_mov_b32 v{tmp}, v{v}\nv_permlane16_swap_b32 v{v}, v{tmp}\n{op} v{v}, v{v}, v{tmp}")
        a(f"v_mov_b32 v{tmp}, v{v}\nv_permlane32_swap_b32 v{v}, v{tmp}\n{op} v{v}, v{v}, v{tmp}")
    def dpp(op, d, s, mode, bank="0xf"):
        a(f"{op}_dpp v{d}, v{s}, v{s} {mode} row_mask:0xf bank_mask:{bank}")
    def allred_lo8(vs, op):
        if isinstance(vs, int): vs = [vs]
        for m in ("quad_perm:[1,0,3,2]", "quad_perm:[2,3,0,1]", "row_half_mirror"):
            for v in vs: dpp(op, v, v, m)
    def wave_sum(v, tmp):
        allred_lo8(v, "v_add_f32"); dpp("v_add_f32", v, v, "row_mirror"); allred_hi(v, tmp, "v_add_f32")
    def rs8(acc, out):
        for c in range(4): a(f"v_permlane32_swap_b32 v{acc+c}, v{acc+c+4}")
        a(f"v_pk_add_f32 {V(acc,2)}, {V(acc,2)}, {V(acc+4,2)}\nv_pk_add_f32 {V(acc+2,2)}, {V(acc+2,2)}, {V(acc+6,2)}")
        for c in range(2): a(f"v_permlane16_swap_b32 v{acc+c}, v{acc+c+2}")
        a(f"v_pk_add_f32 {V(acc,2)}, {V(acc,2)}, {V(acc+2,2)}")
        dpp("v_add_f32", out, acc, "row_ror:8", "0x3"); dpp("v_add_f32", out, acc + 1, "row_ror:8", "0xc")
    def bfround(d, s):
        a(f"v_cvt_pk_bf16_f32 v{d}, v{s}, v{s}\nv_lshlrev_b32 v{d}, 16, v{d}")
    def gemv(W, P, acc, out, waits=None, nk=4):
        for k in range(nk):
            if waits: waits(k)
            for e in range(4):
                a(f"v_perm_b32 v{P+2*e}, v{W+8*k+4+e}, v{W+8*k+e}, {sLO}")
                a(f"v_perm_b32 v{P+2*e+1}, v{W+8*k+4+e}, v{W+8*k+e}, {sHI}")
            for c in range(8):
                a(f"v_dot2_f32_bf16 v{acc+c}, v{P+c}, v{XP+k}, {'0' if k == 0 else 'v%d' % (acc+c)}")
        rs8(acc, out)
    def tag8(v): a(f"v_and_or_b32 v{v}, v{v}, {sM8}, v{vT8}")
    def check(checks, bad):
        for gi, (mask, pairs) in enumerate(checks):
            b = bad + gi
            for d, e in pairs: a(f"v_xor_b32 v{d}, v{d}, v{e}")
            ds = [d for d, e in pairs]
            if len(ds) == 2: a(f"v_or_b32 v{b}, v{ds[0]}, v{ds[1]}")
            else:
                a(f"v_or3_b32 v{b}, v{ds[0]}, v{ds[1]}, v{ds[2]}")
                k = 3
                while k < len(ds):
                    if k + 1 < len(ds): a(f"v_or3_b32 v{b}, v{ds[k]}, v{ds[k+1]}, v{b}"); k += 2
                    else: a(f"v_or_b32 v{b}, v{ds[k]}, v{b}"); k += 1
            if gi == 0: a(f"v_and_b32 v{b}, {mask}, v{b}")
            else: a(f"v_and_or_b32 v{bad}, v{b}, {mask}, v{bad}")
        a(f"v_cmp_ne_u32 vcc, 0, v{bad}")
    def gather(loads, checks, bad, name, sel="lane", mid=None, issue=True):
        L = a.label(name); D = a.label(name + "d")
        if issue:
            for l in loads: a(l)
        if mid: mid()
        a(f"s_mov_b32 {sCNT}, {SPIN}")
        a(f"{L}:\ns_waitcnt vmcnt(0)")
        check(checks, bad)
        a(f"s_cbranch_vccz {D}\ns_sub_u32 {sCNT}, {sCNT}, 1\ns_cbranch_scc1 {D}")
        if sel == "quad": a("s_wqm_b64 exec, vcc")
        elif sel == "lane": a("s_mov_b64 exec, vcc")
        for l in loads: a(l)
        a(f"s_branch {L}\n{D}:")
        if sel != "wave": a("s_mov_b64 exec, -1")
    def hint(soff, target, name):
        L = a.label(name); D = a.label(name + "d")
        a(f"""
s_mov_b32 {sCNT}, {HINT}
s_mov_b64 exec, 1
{L}:
v_mov_b32 v126, 0
buffer_atomic_add v126, off, {S(R_WS)}, {soff} sc0 sc1
s_sub_u32 {sCNT}, {sCNT}, 1
s_cbranch_scc1 {D}
s_waitcnt vmcnt(0)
v_cmp_gt_u32 vcc, {target}, v126
s_cbranch_vccnz {L}
{D}:
s_mov_b64 exec, -1
""")
    def cnaddr(dst, k, tmp):
        a(f"s_and_b32 {tmp}, {k}, 31\ns_mul_i32 {tmp}, {tmp}, {HB}\ns_lshr_b32 {dst}, {k}, 5\ns_lshl_b32 {dst}, {dst}, 7\ns_add_u32 {dst}, {dst}, {tmp}\ns_add_u32 {dst}, {dst}, {CN}")
    def mk_pat(dst, sel):
        a(f"""
v_and_b32 v{dst}, 1, v{sel}
v_lshlrev_b32 v{dst}, 16, v{dst}
v_and_b32 v{dst+2}, 2, v{sel}
v_lshlrev_b32 v{dst+2}, 15, v{dst+2}
v_or_b32 v{dst+2}, 1, v{dst+2}
v_mov_b32 v{dst+1}, {t4}
v_mov_b32 v{dst+3}, {t5}
""")
    def mk_tags():
        a(f"""
s_add_u32 {sTAG}, {sTAG}, {KTAG}
s_and_b32 {t5}, {sTAG}, 0xff
v_mov_b32 v{vT8}, {t5}
s_and_b32 {t4}, {sTAG}, 3
s_mul_i32 {t4}, {t4}, 0x8001
s_and_b32 {t4}, {t4}, {sM1}
s_bfe_u32 {t5}, {sTAG}, 0x20002
s_mul_i32 {t5}, {t5}, 0x8001
s_and_b32 {t5}, {t5}, {sM1}
""")
        mk_pat(PATL, 0); mk_pat(PATG, vG)
    def consts():
        a(f"""
s_mov_b32 {sLO}, 0x05040100
s_mov_b32 {sHI}, 0x07060302
s_mov_b32 {sMSK}, 0xffff0000
s_mov_b32 {sM8}, 0xffffff00
s_mov_b32 {sM1}, 0x00010001
s_mov_b32 {sH8}, 0x8000
s_mul_i32 {sHB}, {sH}, {HB}
s_mul_i32 {sFB}, {sFG}, {HB}
s_mul_i32 {sGB}, {sG}, {16*HB}
""")
        if DIAG:
            for k in range(1, 16): a(f"s_mov_b32 s{ST0+2*k}, 0")
        srd(R_WS, 28, 0x10000000)

    stamp_entry = f"s_memrealtime s[{ST0}:{ST0+1}]" if DIAG else ""
    a(f"""
{stamp_entry}
s_getpc_b64 s[{R_B}:{R_B+1}]
L_pc:
v_subrev_u32 v8, 256, v0
v_lshlrev_b32 v8, 6, v8
v_cmp_gt_u32 vcc, L_end-L_pc, v8
s_and_saveexec_b64 s[4:5], vcc
s_cbranch_execz L_npf
global_load_dword v9, v8, s[{R_B}:{R_B+1}]
L_npf:
s_mov_b64 exec, s[4:5]
s_cmp_ge_u32 s2, 256
s_cbranch_scc1 L_end
s_load_dwordx16 s[4:19], s[0:1], 0
s_load_dwordx8 s[20:27], s[0:1], 64
s_load_dwordx2 s[28:29], s[0:1], 96
v_lshrrev_b32 v1, 6, v0
v_and_b32 v0, 63, v0
v_readfirstlane_b32 {sW}, v1
v_lshlrev_b32 v{vL16}, 4, v0
v_mov_b32 v19, 0
v_and_b32 v{vN}, 15, v0
v_lshrrev_b32 v{vG}, 4, v0
v_and_b32 v{vM8}, 7, v0
v_lshrrev_b32 v{vR8}, 3, v0
s_and_b32 {sX}, s2, 7
s_lshr_b32 {sIDX}, s2, 3
s_lshr_b32 {sG}, {sIDX}, 4
s_and_b32 {sJ}, {sIDX}, 7
s_lshr_b32 {t0}, {sIDX}, 3
s_and_b32 {t1}, {t0}, 1
s_lshl_b32 {sH}, {sG}, 4
s_lshl_b32 {t2}, {sX}, 1
s_add_u32 {sH}, {sH}, {t2}
s_add_u32 {sH}, {sH}, {t1}
s_lshl_b32 {sI}, {sX}, 4
s_and_b32 {t1}, {sIDX}, 15
s_add_u32 {sI}, {sI}, {t1}
s_lshl_b32 {sFG}, {t0}, 3
s_add_u32 {sFG}, {sFG}, {sX}
v_lshlrev_b32 v64, 4, v{vR8}
s_lshl_b32 {t0}, {sJ}, 7
v_add_u32 v64, {t0}, v64
v_lshlrev_b32 v65, 16, v{vR8}
v_lshl_add_u32 v65, v{vM8}, 4, v65
s_lshl_b32 {t0}, {sJ}, 19
s_lshl_b32 {t1}, {sH}, 8
s_add_u32 {t2}, {t0}, {t1}
s_lshl_b32 {t1}, {sW}, 7
s_add_u32 {t0}, {t2}, {t1}
s_mov_b32 s{R_A+2}, 4194304
s_mov_b32 s{R_A+3}, 0x00020000
s_cmp_ge_u32 {sW}, 2
s_waitcnt lgkmcnt(0)
s_cbranch_scc1 L_not01
s_mov_b64 s[{R_A}:{R_A+1}], s[8:9]
s_setprio 3
global_load_dwordx4 v[8:11], v{vL16}, s[4:5]
global_load_dwordx4 v[12:15], v64, s[4:5]
""")
    for u in range(8):
        a(f"buffer_load_dwordx4 {V(WB+4*u)}, v65, {S(R_A)}, {t0} offen {NT}")
        if u < 7: a(f"s_add_u32 {t0}, {t0}, 8192")
    a(f"s_load_dword {sTAG}, s[28:29], 0")
    if N0: a("s_barrier")
    UK = 128
    consts()
    a(f"""
s_add_u32 {t3}, {sHB}, {QP}
s_lshl_b32 {t0}, {sJ}, 9
s_add_u32 {t0}, {t0}, {t3}
s_lshl_b32 {t1}, {sW}, 8
s_add_u32 {t0}, {t0}, {t1}
v_lshl_add_u32 v29, v0, 2, {t0}
s_waitcnt vmcnt(9)
""")
    for e in range(4):
        a(f"v_lshlrev_b32 v{64+2*e}, 16, v{8+e}\nv_and_b32 v{65+2*e}, {sMSK}, v{8+e}")
    a("""
v_pk_add_f32 v[72:73], v[64:65], v[66:67]
v_pk_add_f32 v[74:75], v[68:69], v[70:71]
v_pk_add_f32 v[72:73], v[72:73], v[74:75]
v_add_f32 v72, v72, v73
""")
    wave_sum(72, 73)
    a(f"v_mul_f32 v72, 0x{f2u(1/512):08x}, v72")
    for e in range(8): a(f"v_sub_f32 v{64+e}, v{64+e}, v72")
    a("v_mul_f32 v74, v64, v64\nv_mul_f32 v75, v65, v65")
    for e in range(2, 8): a(f"v_fmac_f32 v{74+(e&1)}, v{64+e}, v{64+e}")
    a("v_add_f32 v74, v74, v75")
    wave_sum(74, 73)
    a(f"v_mul_f32 v74, 0x{f2u(1/512):08x}, v74")
    bfround(74, 74)
    a(f"v_add_f32 v74, 0x{f2u(1e-5):08x}, v74")
    bfround(74, 74)
    a("v_sqrt_f32 v74, v74")
    bfround(74, 74)
    a("v_rcp_f32 v74, v74")
    bfround(72, 72)
    a("s_waitcnt vmcnt(8)")
    for e in range(4):
        a(f"v_lshlrev_b32 v{64+2*e}, 16, v{12+e}\nv_and_b32 v{65+2*e}, {sMSK}, v{12+e}")
    for e in range(8): a(f"v_sub_f32 v{64+e}, v{64+e}, v72")
    for e in range(4): a(f"v_cvt_pk_bf16_f32 v{12+e}, v{64+2*e}, v{65+2*e}")
    for e in range(4):
        a(f"v_lshlrev_b32 v{64+2*e}, 16, v{12+e}\nv_and_b32 v{65+2*e}, {sMSK}, v{12+e}")
    for e in range(8): a(f"v_mul_f32 v{64+e}, v{64+e}, v74")
    for e in range(4): a(f"v_cvt_pk_bf16_f32 v{XP+e}, v{64+2*e}, v{65+2*e}")
    a(f"""
s_waitcnt lgkmcnt(0)
s_add_u32 {t5}, {sTAG}, {KTAG}
s_and_b32 {t5}, {t5}, 0xff
v_mov_b32 v{vT8}, {t5}
""")
    def ukloads():
        srd(R_B, 10, 4194304)
        a(f"""
v_lshlrev_b32 v28, 13, v{vN}
v_lshl_add_u32 v28, v{vG}, 4, v28
s_lshl_b32 {t1}, {sW}, 18
s_add_u32 {u0}, {t2}, {t1}
s_add_u32 {u1}, {u0}, 131072
""")
        for t in range(2):
            for s_ in range(4):
                a(f"buffer_load_dwordx4 {V(UK+16*t+4*s_)}, v28, {S(R_B)}, {u0 if t == 0 else u1} offen offset:{64*s_} {NT}")
    if UKE: ukloads()
    stamp(1)
    gemv(WB, 64, 96, 30, waits=lambda k: a(f"s_waitcnt vmcnt({6-2*k+8*UKE})"))
    tag8(30)
    a(f"buffer_store_dword v30, v29, {S(R_WS)}, 0 offen sc1")
    if not UKE: ukloads()
    a(f"v_lshlrev_b32 v104, 4, v{vR8}\nv_add_u32 v104, {L_XN}, v104\nds_write_b128 v104, {V(XP)}")
    a(f"""
v_and_b32 v104, 31, v0
v_lshrrev_b32 v105, 5, v0
v_lshlrev_b32 v106, 11, v105
v_lshl_add_u32 v106, v104, 4, v106
""")
    def setup2():
        a(f"""
s_lshl_b32 {t1}, {sW}, 8
s_add_u32 {t1}, {t1}, {L_QS}
v_and_b32 v107, 1, v104
v_lshlrev_b32 v107, 6, v107
v_lshl_add_u32 v107, v105, 5, v107
v_and_b32 v111, 14, v104
v_add_u32 v107, v111, v107
v_and_b32 v111, 16, v104
v_lshl_add_u32 v107, v111, 3, v107
v_add_u32 v107, {t1}, v107
v_lshlrev_b32 v108, 4, v{vG}
v_add_u32 v108, {t1}, v108
v_lshlrev_b32 v109, 5, v{vN}
v_lshl_add_u32 v109, v{vG}, 3, v109
v_lshrrev_b32 v110, 4, v109
s_lshl_b32 {t1}, {sJ}, 7
s_add_u32 {t0}, {sHB}, {t1}
s_lshl_b32 {t1}, {sW}, 6
s_add_u32 {t0}, {t0}, {t1}
s_add_u32 {t0}, {t0}, {QA}
v_add_u32 v109, {t0}, v109
""")
        mk_tags()
        mk_pat(120, 110)
        a(f"""
v_and_b32 v110, 1, v{vG}
v_cmp_eq_u32 vcc, 1, v110
v_cndmask_b32 v120, v120, v122, vcc
v_cndmask_b32 v121, v121, v123, vcc
s_lshl_b32 {t0}, {sG}, 5
s_and_b32 {t1}, s2, 6
s_lshl_b32 {t1}, {t1}, 2
s_add_u32 {t0}, {t0}, {t1}
s_add_u32 {t0}, {t0}, 192
v_mul_u32_u24 v110, {HB}, v0
v_mov_b32 v111, 1
""")
        cnaddr(u0, t0, t1)
    stamp(2)
    if REL == "pub": a("s_barrier")
    a(f"s_waitcnt vmcnt({0 if UKE else 8})")
    stamp(3)
    G1 = 64
    gather([f"buffer_load_dwordx4 {V(G1+4*u)}, v106, {S(R_WS)}, {t3} offen offset:{u*512} sc1" for u in range(4)],
           [("0xff", [(G1 + k, vT8) for k in range(16)])], 96, "L_h1", mid=lambda: (a("s_barrier") if REL == "iss" else None, setup2()))
    if REL == "h1": a("s_barrier")
    stamp(4)
    for e in (0, 2): a(f"v_pk_add_f32 {V(G1+e,2)}, {V(G1+e,2)}, {V(G1+4+e,2)}\nv_pk_add_f32 {V(G1+8+e,2)}, {V(G1+8+e,2)}, {V(G1+12+e,2)}")
    for e in (0, 2): a(f"v_pk_add_f32 {V(G1+e,2)}, {V(G1+e,2)}, {V(G1+8+e,2)}")
    sc = (128 ** -0.5) * math.log2(math.e)
    a(f"""
v_permlane32_swap_b32 v{G1}, v{G1+2}
v_permlane32_swap_b32 v{G1+1}, v{G1+3}
v_pk_add_f32 {V(G1,2)}, {V(G1,2)}, {V(G1+2,2)}
v_mul_f32 v{G1}, 0x{f2u(sc):08x}, v{G1}
v_mul_f32 v{G1+1}, 0x{f2u(sc):08x}, v{G1+1}
v_cvt_pk_bf16_f32 v{G1}, v{G1}, v{G1+1}
ds_write_b16 v107, v{G1}
ds_write_b16_d16_hi v107, v{G1} offset:16
s_waitcnt lgkmcnt(0)
""")
    for s_ in range(4): a(f"ds_read_b128 {V(80+4*s_)}, v108 offset:{64*s_}")
    for s_ in range(4):
        a(f"s_waitcnt lgkmcnt({3-s_})")
        for t in range(2):
            a(f"v_mfma_f32_16x16x32_bf16 {V(112+4*t)}, {V(UK+16*t+4*s_)}, {V(80+4*s_)}, {'0' if s_ == 0 else V(112+4*t)}")
    a(f"""
s_mov_b32 exec_lo, 0x00020002
s_mov_b32 exec_hi, 0x00020002
v_mov_b32 v112, v116
v_mov_b32 v113, v117
v_mov_b32 v114, v118
v_mov_b32 v115, v119
s_mov_b32 exec_lo, 0x00030003
s_mov_b32 exec_hi, 0x00030003
v_add_u32 v112, 0x10000, v112
v_add_u32 v113, 0x10000, v113
v_add_u32 v114, 0x10000, v114
v_add_u32 v115, 0x10000, v115
v_perm_b32 v12, v113, v112, {sHI}
v_perm_b32 v13, v115, v114, {sHI}
v_bfi_b32 v12, {sM1}, v120, v12
v_bfi_b32 v13, {sM1}, v121, v13
buffer_store_dwordx2 v[12:13], v109, {S(R_WS)}, 0 offen sc1
""")
    if H2C: a(f"s_mov_b64 exec, 0xff\nbuffer_atomic_add v111, v110, {S(R_WS)}, {u0} offen sc1")
    a("s_mov_b64 exec, -1")
    stamp(5)
    a("s_branch L_b0")
    a(f"L_not01:\ns_load_dword {sTAG}, s[28:29], 0")
    a(f"s_cmp_ge_u32 {sW}, 4\ns_cbranch_scc1 L_loader")
    consts()
    a(f"""
s_cmp_eq_u32 {sW}, 3
s_cbranch_scc1 L_w3
s_lshl_b32 {t0}, {sJ}, 7
s_add_u32 {t0}, {t0}, {sHB}
s_add_u32 {t0}, {t0}, {CN4}
s_branch L_w23e
L_w3:
""")
    if opt.get("tlb", 1):
        a(f"""
v_lshlrev_b32 v8, 21, v0
s_mov_b64 exec, 0x3
global_load_dword v70, v8, s[14:15]
global_load_dword v74, v8, s[12:13]
s_mov_b64 exec, 0xffff
global_load_dword v71, v8, s[28:29] offset:256
s_mov_b64 exec, 0xff
global_load_dword v75, v8, s[6:7]
s_mov_b64 exec, 0x1
global_load_dword v72, v8, s[22:23]
global_load_dword v73, v8, s[24:25]
global_load_dword v76, v8, s[18:19]
global_load_dword v77, v8, s[20:21]
s_mov_b64 exec, -1
""")
    cnaddr(t0, "s2", t1)
    a("L_w23e:")
    if N0: a("s_barrier")
    a(f"""
v_mov_b32 v64, 0
v_mov_b32 v65, 0
v_mov_b32 v66, 0
v_mov_b32 v67, 0
s_waitcnt vmcnt(0) lgkmcnt(0)
s_mov_b64 exec, 0xff
buffer_store_dwordx4 v[64:67], v{vL16}, {S(R_WS)}, {t0} offen sc1
s_mov_b64 exec, -1
""")
    mk_tags()
    a("s_setprio 3\ns_barrier\ns_branch L_b0")
    a("L_loader:")
    srd(R_A, 6, 16777216)
    consts()
    a("s_waitcnt lgkmcnt(0)")
    mk_tags()
    GUAT = opt.get("guat", 4)
    a(f"""
s_mul_i32 {u1}, {sJ}, {64*3584}
s_lshl_b32 {t3}, {sFG}, 7
s_add_u32 {u1}, {u1}, {t3}
s_and_b32 {t1}, {sW}, 1
s_mul_i32 {t1}, {t1}, {32*3584}
s_add_u32 {u1}, {u1}, {t1}
s_cmp_lt_u32 {sFG}, 28
s_cselect_b32 s{R_B+2}, 1835008, 0
s_bitcmp0_b32 {sW}, 1
s_cselect_b64 s[{R_B}:{R_B+1}], s[18:19], s[20:21]
s_mov_b32 s{R_B+3}, 0x00020000
v_mul_u32_u24 v13, {4*3584}, v{vR8}
v_lshl_add_u32 v13, v{vM8}, 4, v13
v_add_u32 v14, 7168, v13
s_sub_u32 {t0}, {sW}, 4
""")
    if SPREAD:
        a(f"""
s_lshl_b32 {t1}, {t0}, 4
s_add_u32 {t1}, {t1}, {sI}
s_and_b32 {t1}, {t1}, 127
s_xor_b32 {t3}, {t1}, 64
s_add_u32 {t3}, {t3}, 512
s_lshl_b32 {t2}, {t0}, 7
s_add_u32 {t1}, {t1}, {t2}
s_add_u32 {t3}, {t3}, {t2}
s_lshl_b32 {t1}, {t1}, 14
s_lshl_b32 {t3}, {t3}, 14
s_mul_i32 {t2}, {t0}, {16*RS}
""")
    else:
        a(f"""
s_lshl_b32 {t1}, {sI}, 17
s_lshl_b32 {t2}, {t0}, 14
s_add_u32 {t1}, {t1}, {t2}
s_add_u32 {t3}, {t1}, 65536
s_mul_i32 {t2}, {t0}, {16*RS}
""")
    if N0: a("s_barrier")
    for grp in range(8):
        if grp == N0: a("s_barrier")
        if grp == GUAT:
            for k in range(4):
                a(f"buffer_load_dwordx4 {V(WB+16+4*k)}, v{13+(k>>1)}, {S(R_B)}, {u1} offen offset:{3584*(k&1)} {NT}")
                if THR: a(f"s_waitcnt vmcnt({THR})")
        for r in range(4):
            a(f"s_add_u32 m0, {t2}, {32*r}")
            a(f"buffer_load_dwordx4 v{vL16}, {S(R_A)}, {t1} offen offset:{1024*r} {NTC} lds")
            if THR: a(f"s_waitcnt vmcnt({THR})")
        if grp == 3: a(f"s_mov_b32 {t1}, {t3}\ns_add_u32 {t2}, {t2}, {52*RS}")
        elif grp < 7: a(f"s_add_u32 {t1}, {t1}, 4096\ns_add_u32 {t2}, {t2}, {4*RS}")
    stamp(1)
    a("s_waitcnt vmcnt(16)")
    a("L_b0:")
    srd(R_O, 14, 4194304)
    srd(R_D, 22, 1835008)
    srd(R_A, 12, 4194304)
    a(f"""
v_mul_u32_u24 v8, {RS}, v{vN}
v_lshl_add_u32 v8, v{vG}, 4, v8
s_mul_i32 {t0}, {sW}, {16*RS}
v_add_u32 v9, {t0}, v8
v_add_u32 v8, {L_Q}, v8
v_lshrrev_b32 v10, 2, v0
v_mul_u32_u24 v10, {RS}, v10
v_and_b32 v11, 3, v0
v_lshl_add_u32 v10, v11, 3, v10
s_lshl_b32 {t0}, {sW}, 7
v_add_u32 v10, {t0}, v10
v_add_u32 v11, {64*RS}, v10
s_lshl_b32 {t0}, {sJ}, 19
s_lshl_b32 {t1}, {sH}, 8
s_add_u32 {t0}, {t0}, {t1}
s_and_b32 {t1}, {sW}, 3
s_lshl_b32 {t1}, {t1}, 17
s_add_u32 {u0}, {t0}, {t1}
s_lshl_b32 {t1}, {sJ}, 10
s_add_u32 {u1}, {sFB}, {t1}
s_and_b32 {t1}, {sW}, 3
s_lshl_b32 {t1}, {t1}, 8
s_add_u32 {u1}, {u1}, {t1}
s_add_u32 {u1}, {u1}, {FP}
s_and_b32 {t1}, {sW}, 1
s_lshl_b32 {t1}, {t1}, 6
s_add_u32 {t1}, {t1}, {L_XN}
v_lshl_add_u32 v15, v{vR8}, 3, {t1}
v_lshlrev_b32 v13, 11, v{vR8}
v_lshl_add_u32 v13, v{vM8}, 4, v13
v_lshlrev_b32 v14, 13, v{vR8}
v_lshl_add_u32 v14, v{vM8}, 4, v14
v_lshrrev_b32 v28, 1, v{vN}
v_xor_b32 v28, v28, v{vG}
v_lshlrev_b32 v28, 5, v28
v_and_b32 v29, 1, v0
v_lshl_add_u32 v28, v29, 4, v28
v_lshl_add_u32 v28, v{vG}, 13, v28
v_xor_b32 v29, 128, v28
v_add_u32 v29, 32768, v29
v_mul_u32_u24 v30, {OH}, v{vM8}
v_lshl_add_u32 v30, v{vG}, 4, v30
v_and_b32 v31, 8, v0
v_lshl_add_u32 v30, v31, 3, v30
s_mul_i32 {t3}, {sG}, {16*OH}
s_mul_i32 {t4}, {sW}, {IB}
s_add_u32 {t3}, {t3}, {t4}
s_lshl_b32 {t4}, {sI}, 7
s_add_u32 {t3}, {t3}, {t4}
s_add_u32 {t3}, {t3}, {OP}
v_add_u32 v30, {t3}, v30
v_add_u32 v31, {8*OH}, v30
v_lshlrev_b32 v6, 5, v{vN}
v_add_u32 v6, {L_MX}, v6
s_lshl_b32 {t2}, {sH}, 17
s_lshl_b32 {t3}, {sJ}, 14
s_add_u32 {t2}, {t2}, {t3}
s_lshl_b32 {t5}, {sW}, 7
s_add_u32 {w0_}, {t2}, {t5}
s_lshl_b32 {t3}, {sFG}, 16
s_add_u32 {t5}, {t5}, {t3}
s_lshl_b32 {t3}, {sJ}, 10
s_add_u32 {w1_}, {t5}, {t3}
s_mul_i32 {t3}, {sW}, {4*RS}
s_add_u32 {t3}, {t3}, {L_Q}
v_add_u32 v12, {t3}, v{vL16}
s_mul_i32 {t0}, {sW}, {4*HB}
s_add_u32 {t0}, {t0}, {sGB}
s_add_u32 {t0}, {t0}, {QA}
s_add_u32 {t1}, {t0}, {HB}
s_add_u32 {t2}, {t1}, {HB}
s_add_u32 {t3}, {t2}, {HB}
s_add_u32 {t4}, {u0}, 65536
s_cmp_ge_u32 {sW}, 4
""")
    wol = [f"buffer_load_dwordx4 {V(WO)}, v13, {S(R_O)}, {w0_} offen {NT}", f"buffer_load_dwordx4 {V(WO+4)}, v13, {S(R_O)}, {w0_} offen offset:1024 {NT}",
           f"buffer_load_dwordx4 {V(WD)}, v14, {S(R_D)}, {w1_} offen {NT}"]
    WO03 = opt.get("wo03", "b0")
    if WO03 == "b0":
        a("s_cbranch_scc1 L_nwo")
        for l in wol: a(l)
        a("L_nwo:")
    a("s_waitcnt lgkmcnt(0)\ns_barrier")
    def rdT(ks, T):
        base = "v10" if ks < 2 else "v11"
        off = (ks & 1) * 32 * RS + 32 * T
        r = TF + 16 * ks + 4 * T
        a(f"ds_read_b64_tr_b16 {V(r,2)}, {base} offset:{off}\nds_read_b64_tr_b16 {V(r+2,2)}, {base} offset:{off+16*RS}")
    G2 = 64
    h2loads = [f"buffer_load_dwordx4 {V(G2+4*k)}, v{vL16}, {S(R_WS)}, {[t0,t1,t2,t3][k]} offen sc1" for k in range(4)]
    a("s_cbranch_scc1 L_ng")
    for l in h2loads: a(l)
    a("L_ng:")
    stamp(6)
    for ks in range(2):
        for T in range(4): rdT(ks, T)
        a("s_waitcnt lgkmcnt(7)")
    a("s_cbranch_scc0 L_nw")
    T1T = opt.get("t1t", THR)
    a(f"ds_read_b64 {V(XP,2)}, v15")
    tl = [f"buffer_load_dwordx4 {V(WB+4*k)}, v{28+(k&1)}, {S(R_A)}, {u0 if k < 2 else t4} offen {NT}" for k in range(4)] + wol
    for l in tl[:4]:
        if T1T: a(f"s_waitcnt vmcnt({T1T-1})")
        a(l)
    a("s_waitcnt lgkmcnt(0)")
    gemv(WB + 16, 64, 72, 18, nk=2)
    tag8(18)
    a("v_lshlrev_b32 v19, 2, v0")
    for l in tl[4:]:
        if T1T: a(f"s_waitcnt vmcnt({T1T-1})")
        a(l)
    a("s_waitcnt vmcnt(7)\nL_nw:")
    stamp(8)
    for s in range(8): a(f"ds_read_b128 {V(AF+4*s)}, v9 offset:{64*s}")
    a("s_waitcnt lgkmcnt(7)")
    for s in range(8, 16): a(f"ds_read_b128 {V(AF+4*s)}, v9 offset:{64*s}")
    a(f"s_cbranch_scc0 L_g2\nbuffer_store_dword v18, v19, {S(R_WS)}, {u1} offen sc1\ns_branch L_ba\nL_g2:")
    gather(h2loads, [(sM1, [(G2 + 4 * k + e, PATL + e) for k in range(4) for e in range(4)])], 96, "L_h2g", sel="quad", issue=False)
    a("s_waitcnt lgkmcnt(8)")
    for k in range(4): a(f"ds_write_b128 v12, {V(G2+4*k)} offset:{k*RS}")
    if WO03 == "ba":
        for l in wol: a(l)
    a(f"""
s_setprio 0
L_ba:
s_lshl_b32 {t2}, {sW}, 2
s_lshr_b32 {t0}, {sW}, 1
s_lshl_b32 {t0}, {t0}, 10
s_and_b32 {t1}, {sW}, 1
s_lshl_b32 {t1}, {t1}, 3
s_add_u32 {t0}, {t0}, {t1}
s_add_u32 {t3}, {t0}, {L_P}
s_waitcnt lgkmcnt(0)
s_barrier
""")
    stamp(7)
    PRE = 12
    SA = 12
    for s in range(PRE): a(f"ds_read_b128 {V(QF+4*s)}, v8 offset:{64*s}")
    for s in range(16):
        rem = min(16, s + PRE) - (s + 1)
        a(f"s_waitcnt lgkmcnt({rem})")
        a(f"v_mfma_f32_16x16x32_bf16 {V(SA)}, {V(AF+4*s)}, {V(QF+4*(s%12))}, {'0' if s == 0 else V(SA)}")
        if s + PRE < 16: a(f"ds_read_b128 {V(QF+4*((s+PRE)%12))}, v8 offset:{64*(s+PRE)}")
    for T in range(4): rdT(2, T)
    a(f"""
v_add_u32 v64, {t2}, v6
v_add_u32 v65, {t3}, v{vL16}
v_add_u32 v76, {L_P}, v{vL16}
v_max3_f32 v66, v{SA}, v{SA+1}, v{SA+2}
v_max_f32 v66, v66, v{SA+3}
""")
    allred_hi(66, 67, "v_max_f32")
    a("ds_write_b32 v64, v66")
    a(f"""
s_waitcnt lgkmcnt(0)
s_barrier
ds_read_b128 v[68:71], v6
ds_read_b128 v[72:75], v6 offset:16
""")
    for T in range(2): rdT(3, T)
    a(f"""
s_waitcnt lgkmcnt(4)
v_max3_f32 v66, v68, v69, v70
v_max3_f32 v67, v71, v72, v73
v_max3_f32 v66, v66, v74, v75
v_max_f32 v66, v66, v67
v_and_b32 v66, {sM8}, v66
""")
    for r in range(4): a(f"v_sub_f32 v{SA+r}, v{SA+r}, v66")
    for r in range(4): a(f"v_exp_f32 v{SA+r}, v{SA+r}")
    a(f"""
v_cvt_pk_bf16_f32 v68, v{SA}, v{SA+1}
v_cvt_pk_bf16_f32 v69, v{SA+2}, v{SA+3}
ds_write_b64 v65, v[68:69]
""")
    for T in range(2, 4): rdT(3, T)
    a("s_waitcnt lgkmcnt(4)\ns_barrier")
    PFR = 80
    for ks in range(4): a(f"ds_read_b128 {V(PFR+4*ks)}, v76 offset:{1024*ks}")
    OA = AF; LA = AF + 16; ONE = AF + 20
    for ks in range(4):
        a(f"s_waitcnt lgkmcnt({3-ks})")
        for T in range(4):
            a(f"v_mfma_f32_16x16x32_bf16 {V(OA+4*T)}, {V(TF+16*ks+4*T)}, {V(PFR+4*ks)}, {'0' if ks == 0 else V(OA+4*T)}")
    for T in range(4):
        a(f"v_cvt_pk_bf16_f32 v{96+2*T}, v{OA+4*T}, v{OA+4*T+1}\nv_cvt_pk_bf16_f32 v{97+2*T}, v{OA+4*T+2}, v{OA+4*T+3}")
        if T < 2:
            a(f"v_bfi_b32 v{104+2*T}, {sM1}, v{PATG+2*T}, v{96+2*T}\nv_bfi_b32 v{105+2*T}, {sM1}, v{PATG+2*T+1}, v{97+2*T}")
        a(f"v_bfi_b32 v{96+2*T}, {sM1}, v{PATG+(2*T)%4}, v{96+2*T}\nv_bfi_b32 v{97+2*T}, {sM1}, v{PATG+(2*T+1)%4}, v{97+2*T}")
    for e in range(4): a(f"v_mov_b32_dpp v{96+e}, v{100+e} row_ror:8 row_mask:0xf bank_mask:0xc")
    a(f"buffer_store_dwordx4 v[96:99], v30, {S(R_WS)}, 0 offen sc1")
    for e in range(4): a(f"v_mov_b32_dpp v{100+e}, v{104+e} row_ror:8 row_mask:0xf bank_mask:0x3")
    a(f"buffer_store_dwordx4 v[100:103], v31, {S(R_WS)}, 0 offen sc1")
    stamp(9)
    a(f"s_cmp_lg_u32 {sW}, 2\ns_cbranch_scc1 L_b4")
    for r in range(4): a(f"v_mov_b32 v{ONE+r}, 0x3f803f80")
    for ks in range(4):
        a(f"v_mfma_f32_16x16x32_bf16 {V(LA)}, {V(ONE)}, {V(PFR+4*ks)}, {'0' if ks == 0 else V(LA)}")
    a(f"""
v_lshlrev_b32 v75, 3, v0
s_lshl_b32 {t3}, {sG}, 14
s_lshl_b32 {t4}, {sI}, 7
s_add_u32 {t3}, {t3}, {t4}
s_add_u32 {t3}, {t3}, {ML}
v_or_b32 v108, v66, v{vT8}
v_mul_u32_u24 v76, {HB}, v0
v_mov_b32 v77, 1
s_lshl_b32 {t4}, {sG}, 6
s_and_b32 {t5}, s2, 7
s_lshl_b32 {t5}, {t5}, 3
s_add_u32 {t2}, {t4}, {t5}
""")
    cnaddr(t4, t2, t5)
    a(f"""
v_and_or_b32 v109, v{LA}, {sM8}, v{vT8}
s_mov_b64 exec, 0xffff
buffer_store_dwordx2 v[108:109], v75, {S(R_WS)}, {t3} offen sc1
s_mov_b64 exec, 0xff
s_barrier
buffer_atomic_add v77, v76, {S(R_WS)}, {t4} offen sc1
s_mov_b64 exec, -1
s_branch L_b4e
L_b4:
s_barrier
L_b4e:
""")
    stamp2(1)
    a(f"""
s_cmp_lt_u32 {sW}, 4
s_cbranch_scc1 L_pc0
s_lshl_b32 {t0}, {sW}, 12
s_add_u32 {t0}, {t0}, {L_UV - 4*4096}
v_add_u32 v9, {t0}, v{vL16}
s_waitcnt vmcnt(6)
""")
    for u in range(4): a(f"ds_write_b128 v9, {V(WB+4*u)} offset:{1024*u}")
    a(f"""
L_pc0:
s_lshl_b32 {t2}, {sG}, 6
s_lshl_b32 {t1}, {sW}, 3
s_add_u32 {t2}, {t2}, {t1}
s_and_b32 {t1}, s2, 7
s_add_u32 {t2}, {t2}, {t1}
""")
    cnaddr(t5, t2, t1)
    a(f"""
v_lshlrev_b32 v8, 7, v{vR8}
s_lshl_b32 {t0}, {sG}, 14
s_lshl_b32 {t1}, {sW}, 11
s_add_u32 {t0}, {t0}, {t1}
s_and_b32 {t1}, {sH}, 15
s_lshl_b32 {t1}, {t1}, 3
s_add_u32 {t0}, {t0}, {t1}
s_add_u32 {t0}, {t0}, {ML}
s_mul_i32 {t1}, {sH}, {OH}
s_mul_i32 {t2}, {sJ}, {IB}
s_add_u32 {t1}, {t1}, {t2}
s_lshl_b32 {t2}, {sW}, 11
s_add_u32 {t1}, {t1}, {t2}
s_add_u32 {t1}, {t1}, {OP}
""")
    stamp2(2)
    hint(t5, 16, "L_c3")
    stamp(10)
    hfloads = [f"buffer_load_dword v{104+k}, v10, {S(R_WS)}, {t4} offen offset:{256*k} sc1" for k in range(4)]
    def mid3():
        a(f"""
s_lshl_b32 {t2}, {sW}, 3
s_add_u32 {t2}, {t2}, {L_ST2}
v_mov_b32 v74, {t2}
v_bfe_u32 v75, v0, 3, 1
v_mul_u32_u24 v75, 160, v75
v_lshl_add_u32 v75, v{vM8}, 4, v75
v_lshl_add_u32 v75, v{vG}, 2, v75
s_mul_i32 {t2}, {sW}, 320
s_add_u32 {t2}, {t2}, {L_OR}
v_add_u32 v75, {t2}, v75
v_mul_u32_u24 v76, 160, v{vN}
v_lshl_add_u32 v76, v{vG}, 4, v76
v_add_u32 v76, {L_OR}, v76
v_lshrrev_b32 v77, 2, v0
v_and_b32 v78, 7, v77
v_xor_b32 v78, {sW}, v78
v_lshlrev_b32 v77, 8, v77
v_lshl_add_u32 v77, v78, 5, v77
v_and_b32 v78, 3, v0
v_lshl_add_u32 v77, v78, 3, v77
v_add_u32 v77, {L_UV}, v77
v_lshlrev_b32 v78, 3, v{vM8}
v_add_u32 v78, {L_ST2}, v78
v_lshlrev_b32 v79, 4, v{vG}
v_add_u32 v79, {L_ST2}, v79
v_mov_b32 v14, {sH8}
s_lshl_b32 {t2}, {sW}, 9
s_add_u32 {t2}, {sHB}, {t2}
s_lshl_b32 {t3}, {sJ}, 6
s_add_u32 {t2}, {t2}, {t3}
s_add_u32 {t2}, {t2}, {CP}
v_lshl_add_u32 v15, v0, 2, {t2}
s_lshl_b32 {t2}, {sJ}, 9
s_add_u32 {t2}, {sHB}, {t2}
s_add_u32 {t2}, {t2}, {CP}
v_lshlrev_b32 v9, 6, v{vM8}
v_lshl_add_u32 v9, v{vR8}, 3, v9
v_mul_u32_u24 v11, {SB}, v{vR8}
v_lshl_add_u32 v11, v{vM8}, 3, v11
s_mul_i32 {t3}, {sW}, {8*SB}
s_lshl_b32 {t4}, s2, 6
s_add_u32 {t3}, {t3}, {t4}
s_add_u32 {t3}, {t3}, {SP}
v_lshlrev_b32 v10, 10, v{vM8}
v_lshl_add_u32 v10, v{vR8}, 2, v10
s_lshl_b32 {t4}, {sJ}, 5
s_add_u32 {t4}, {sFB}, {t4}
s_add_u32 {t4}, {t4}, {FP}
s_lshl_b32 {u0}, {sW}, 7
s_add_u32 {u0}, {u0}, {sHB}
s_add_u32 {u0}, {u0}, {CN4}
s_lshl_b32 {u1}, {sJ}, 7
s_add_u32 {u1}, {u1}, {sHB}
s_add_u32 {u1}, {u1}, {CN4}
v_mov_b32 v12, 1
v_lshlrev_b32 v13, 3, v{vR8}
v_add_u32 v13, {L_HS}, v13
s_and_b32 {t5}, s2, 7
s_cmp_lg_u32 {t5}, {sW}
s_cbranch_scc1 L_nhf
""")
        gather(hfloads, [("0xff", [(104 + k, vT8) for k in range(4)])], 108, "L_hf", sel="wave")
        a("v_add_f32 v104, v104, v105\nv_add_f32 v105, v106, v107")
        allred_lo8([104, 105], "v_add_f32")
        a("ds_write_b64 v13, v[104:105]\nL_nhf:")
    gather([f"buffer_load_dwordx2 v[64:65], v8, {S(R_WS)}, {t0} offen sc1",
            f"buffer_load_dwordx2 v[68:69], v8, {S(R_WS)}, {t0} offen offset:1024 sc1",
            f"buffer_load_dwordx4 v[80:83], v{vL16}, {S(R_WS)}, {t1} offen sc1",
            f"buffer_load_dwordx4 v[84:87], v{vL16}, {S(R_WS)}, {t1} offen offset:1024 sc1"],
           [("0xff", [(64, vT8), (65, vT8), (68, vT8), (69, vT8)]), (sM1, [(80 + k, PATL + (k & 3)) for k in range(8)])], 72, "L_h3", sel="wave", mid=mid3)
    stamp(11)
    def unp(d, s):
        a(f"v_lshl_or_b32 v{d}, v{s}, 16, v14\nv_and_or_b32 v{d+1}, v{s}, {sMSK}, v14")
    a("v_max_f32 v72, v64, v68")
    for e in range(2): unp(88 + 2 * e, 80 + e)
    dpp("v_max_f32", 72, 72, "row_ror:8")
    a("v_mov_b32 v73, v72")
    for e in range(2, 4): unp(88 + 2 * e, 80 + e)
    a("v_permlane16_swap_b32 v72, v73\nv_max_f32 v72, v72, v73\nv_mov_b32 v73, v72")
    for e in range(2): unp(96 + 2 * e, 84 + e)
    a("v_permlane32_swap_b32 v72, v73\nv_max_f32 v72, v72, v73")
    a("v_sub_f32 v64, v64, v72\nv_sub_f32 v68, v68, v72\nv_exp_f32 v64, v64\nv_exp_f32 v68, v68")
    for e in range(2, 4): unp(96 + 2 * e, 84 + e)
    a("v_mul_f32 v73, v64, v65\nv_fmac_f32 v73, v68, v69\nv_mov_b32 v65, v64\nv_mov_b32 v69, v68")
    for e in range(0, 8, 2): a(f"v_pk_mul_f32 v[{88+e}:{89+e}], v[64:65], v[{88+e}:{89+e}]")
    for e in range(0, 8, 2): a(f"v_pk_fma_f32 v[{88+e}:{89+e}], v[68:69], v[{96+e}:{97+e}], v[{88+e}:{89+e}]")
    dpp("v_add_f32", 73, 73, "row_ror:8")
    for c in range(4): a(f"v_permlane32_swap_b32 v{88+c}, v{92+c}")
    a("v_mov_b32 v65, v73")
    a("v_pk_add_f32 v[88:89], v[88:89], v[92:93]\nv_pk_add_f32 v[90:91], v[90:91], v[94:95]")
    a("v_permlane16_swap_b32 v73, v65")
    for c in range(2): a(f"v_permlane16_swap_b32 v{88+c}, v{90+c}")
    a("v_add_f32 v73, v73, v65")
    a("v_pk_add_f32 v[88:89], v[88:89], v[90:91]")
    a(f"""
v_mov_b32 v65, v73
v_cvt_pk_bf16_f32 v88, v88, v89
ds_write_b32 v75, v88
v_permlane32_swap_b32 v73, v65
v_add_f32 v73, v73, v65
ds_write_b64 v74, v[72:73]
s_waitcnt lgkmcnt(0)
""")
    stamp2(3)
    a("s_barrier")
    stamp2(4)
    a(f"""
ds_read_b64 v[64:65], v78
ds_read_b128 v[80:83], v76
ds_read_b64_tr_b16 v[88:89], v77
ds_read_b64_tr_b16 v[90:91], v77 offset:4096
ds_read_b128 v[84:87], v76 offset:64
ds_read_b64_tr_b16 v[92:93], v77 offset:8192
ds_read_b64_tr_b16 v[94:95], v77 offset:12288
ds_read_b128 v[68:71], v79
""")
    a("ds_read_b64 v[124:125], v13\ns_waitcnt lgkmcnt(8)")
    a("v_max_f32_dpp v66, v64, v64 quad_perm:[1,0,3,2] row_mask:0xf bank_mask:0xf")
    a("s_waitcnt lgkmcnt(5)\nv_mfma_f32_16x16x32_bf16 v[96:99], v[80:83], v[88:91], 0")
    dpp("v_max_f32", 66, 66, "quad_perm:[2,3,0,1]")
    a("s_waitcnt lgkmcnt(2)\nv_mfma_f32_16x16x32_bf16 v[96:99], v[84:87], v[92:95], v[96:99]")
    dpp("v_max_f32", 66, 66, "row_half_mirror")
    a("""
s_waitcnt lgkmcnt(0)
v_sub_f32 v64, v64, v66
v_sub_f32 v68, v68, v66
v_sub_f32 v70, v70, v66
v_exp_f32 v64, v64
v_exp_f32 v68, v68
v_exp_f32 v70, v70
v_mul_f32 v64, v64, v65
v_add_f32 v96, v96, v97
v_add_f32 v98, v98, v99
""")
    dpp("v_add_f32", 64, 64, "quad_perm:[1,0,3,2]")
    a("v_mul_f32 v96, v96, v68\nv_fmac_f32 v96, v98, v70")
    dpp("v_add_f32", 64, 64, "quad_perm:[2,3,0,1]")
    a("v_mov_b32 v97, v96")
    dpp("v_add_f32", 64, 64, "row_half_mirror")
    a("v_permlane16_swap_b32 v96, v97\nv_rcp_f32 v64, v64\nv_add_f32 v96, v96, v97\nv_mov_b32 v97, v96\nv_permlane32_swap_b32 v96, v97\nv_add_f32 v96, v96, v97")
    a("v_mul_f32 v96, v96, v64")
    tag8(96)
    a(f"""
s_mov_b64 exec, 0xffff
buffer_store_dword v96, v15, {S(R_WS)}, 0 offen sc1
""")
    if H4C: a(f"s_mov_b64 exec, 1\nbuffer_atomic_add v12, off, {S(R_WS)}, {u0} sc1")
    a("s_mov_b64 exec, -1")
    stamp(12)
    c1 = -2.0 * math.sqrt(2 / math.pi) * math.log2(math.e)
    def ffn2():
        a(f"""
v_cvt_pk_bf16_f32 v124, v124, v125
v_and_b32 v125, {sMSK}, v124
v_lshlrev_b32 v124, 16, v124
v_mul_f32 v100, v124, v124
v_mov_b32 v101, 0x{f2u(c1):08x}
v_fmac_f32 v101, 0x{f2u(c1*0.044715):08x}, v100
v_mul_f32 v100, v101, v124
v_exp_f32 v100, v100
v_add_f32 v100, 1.0, v100
v_rcp_f32 v100, v100
v_mul_f32 v124, v124, v100
""")
        bfround(124, 124)
        a("v_mul_f32 v124, v124, v125")
        bfround(13, 124)
        for e in range(4):
            a(f"v_lshlrev_b32 v{80+2*e}, 16, v{WD+e}\nv_and_b32 v{81+2*e}, {sMSK}, v{WD+e}")
        for e in range(8): a(f"v_mul_f32 v{80+e}, v13, v{80+e}")
        rs8(80, 125)
        for e in range(4):
            a(f"v_perm_b32 v{WOP+2*e}, v{WO+4+e}, v{WO+e}, {sLO}\nv_perm_b32 v{WOP+2*e+1}, v{WO+4+e}, v{WO+e}, {sHI}")
        tag8(125)
        a(f"""
s_lshr_b32 {t4}, s2, 4
s_and_b32 {t4}, {t4}, 7
s_lshl_b32 {t4}, {t4}, 3
s_add_u32 {t0}, {t4}, 128
""")
        cnaddr(t4, t0, t5)
        a(f"v_mul_u32_u24 v127, {HB}, v0")
        stamp2(6)
    ffn2()
    if H4C: hint(u1, 8, "L_c4")
    else: a("s_waitcnt vmcnt(0)")
    stamp2(8)
    gather([f"buffer_load_dwordx2 v[104:105], v9, {S(R_WS)}, {t2} offen sc1"], [("0xff", [(104, vT8), (105, vT8)])], 68, "L_h4", sel="wave")
    stamp(13)
    allred_lo8([104, 105], "v_add_f32")
    a("v_cvt_pk_bf16_f32 v64, v104, v105")
    for c in range(8): a(f"v_dot2_f32_bf16 v{72+c}, v{WOP+c}, v64, 0")
    rs8(72, 124)
    tag8(124)
    a(f"buffer_store_dwordx2 v[124:125], v11, {S(R_WS)}, {t3} offen sc1")
    stamp(14)
    a(f"""
s_cmp_lg_u32 {sW}, 0
s_barrier
s_cbranch_scc1 L_na5
s_mov_b64 exec, 0xff
buffer_atomic_add v12, v127, {S(R_WS)}, {t4} offen sc1
s_mov_b64 exec, -1
L_na5:
s_cmp_lt_u32 {sFG}, 24
s_cbranch_scc1 L_fin
s_lshl_b32 {t4}, {sW}, 3
s_and_b32 {t5}, s2, 7
s_add_u32 {t4}, {t4}, {t5}
s_add_u32 {t3}, {t4}, 128
""")
    cnaddr(t4, t3, t5)
    a(f"""
s_sub_u32 {t0}, {sFG}, 24
s_lshl_b32 {t0}, {t0}, 3
s_add_u32 {t0}, {t0}, {sJ}
s_mul_i32 {t1}, {t0}, {SB}
s_lshl_b32 {t2}, {sW}, 10
s_add_u32 {t1}, {t1}, {t2}
s_add_u32 {t1}, {t1}, {SP}
s_add_u32 {t2}, {t1}, 8192
s_sub_u32 {t0}, {sFG}, 24
s_lshl_b32 {t0}, {t0}, 6
s_add_u32 {t0}, {t0}, {sJ}
s_lshl_b32 {t0}, {t0}, 1
v_lshlrev_b32 v8, 4, v{vM8}
v_add_u32 v8, {t0}, v8
global_load_ushort v12, v8, s[4:5]
""")
    hint(t4, 32, "L_c5")
    stamp2(7)
    def mid5():
        a(f"""
v_bfe_u32 v9, v0, 4, 1
v_lshlrev_b32 v9, 8, v9
v_and_b32 v10, 3, v0
v_lshl_add_u32 v9, v10, 6, v9
v_lshrrev_b32 v10, 5, v0
v_lshl_add_u32 v9, v10, 5, v9
s_lshl_b32 {t5}, {sW}, 2
s_add_u32 {t5}, {t5}, {L_FIN}
v_add_u32 v9, {t5}, v9
v_lshlrev_b32 v10, 5, v{vM8}
v_add_u32 v10, {L_FIN}, v10
""")
    gather([f"buffer_load_dwordx4 {V(64+4*k)}, v{vL16}, {S(R_WS)}, {[t1,t2][k]} offen sc1" for k in range(2)],
           [("0xff", [(64 + k, vT8) for k in range(8)])], 80, "L_h5", mid=mid5)
    stamp(1)
    a("""
v_pk_add_f32 v[64:65], v[64:65], v[68:69]
v_pk_add_f32 v[66:67], v[66:67], v[70:71]
v_permlane32_swap_b32 v64, v66
v_permlane32_swap_b32 v65, v67
v_pk_add_f32 v[64:65], v[64:65], v[66:67]
v_permlane16_swap_b32 v64, v65
v_add_f32 v64, v64, v65
""")
    dpp("v_add_f32", 64, 64, "row_ror:8"); dpp("v_add_f32", 64, 64, "row_ror:4")
    a(f"""
ds_write_b32 v9, v64
s_waitcnt lgkmcnt(0)
s_barrier
s_cmp_lg_u32 {sW}, 0
s_cbranch_scc1 L_fin
ds_read_b128 v[72:75], v10 offset:256
ds_read_b128 v[76:79], v10 offset:272
ds_read_b128 v[64:67], v10
ds_read_b128 v[68:71], v10 offset:16
s_waitcnt lgkmcnt(2)
v_pk_add_f32 v[72:73], v[72:73], v[74:75]
v_pk_add_f32 v[76:77], v[76:77], v[78:79]
v_pk_add_f32 v[72:73], v[72:73], v[76:77]
v_add_f32 v72, v72, v73
""")
    bfround(72, 72)
    a(f"""
v_mul_f32 v73, 0x{f2u(-math.log2(math.e)):08x}, v72
v_exp_f32 v73, v73
s_waitcnt lgkmcnt(0)
v_pk_add_f32 v[64:65], v[64:65], v[66:67]
v_pk_add_f32 v[68:69], v[68:69], v[70:71]
v_add_f32 v73, 1.0, v73
v_rcp_f32 v73, v73
v_pk_add_f32 v[64:65], v[64:65], v[68:69]
v_add_f32 v64, v64, v65
v_mul_f32 v72, v72, v73
v_cvt_pk_bf16_f32 v64, v64, v72
v_lshlrev_b32 v65, 16, v64
v_and_b32 v64, {sMSK}, v64
v_mul_f32 v64, v64, v65
""")
    bfround(64, 64)
    a(f"""
v_lshlrev_b32 v12, 16, v12
v_add_f32 v64, v64, v12
v_cvt_pk_bf16_f32 v64, v64, v64
s_mov_b64 exec, 0xff
global_store_short v8, v64, s[24:25]
s_cmp_lg_u32 {t0}, 0
s_cbranch_scc1 L_fin0
s_mov_b64 exec, 1
v_mov_b32 v65, {sTAG}
buffer_store_dword v65, off, {S(R_WS)}, 0 sc1
L_fin0:
s_mov_b64 exec, -1
L_fin:
""")
    if DIAG:
        stamp(15)
        for k in range(16): a(f"v_mov_b32 v{64+k}, s{ST0+2*k}")
        a(f"""
s_lshl_b32 {t0}, s2, 3
s_add_u32 {t0}, {t0}, {sW}
s_lshl_b32 {t0}, {t0}, 6
s_add_u32 {t0}, {t0}, {STAMP}
v_mov_b32 v8, 0
s_mov_b64 exec, 1
""")
        for k in range(4): a(f"buffer_store_dwordx4 {V(64+4*k)}, v8, {S(R_WS)}, {t0} offen offset:{16*k}")
    a("L_end:\ns_endpgm")
    if opt.get("nost", 0):
        out = []; seen_b = False
        for l in a.lines:
            if l.strip() == "L_ba:": seen_b = True
            if not seen_b and "sc1" in l and ("store" in l or (opt["nost"] >= 2 and "load" in l)): l = "    s_nop 0"
            out.append(l)
        a.lines = out
    lines, n = hazard.fix(a.lines)
    body = "\n".join(lines) + "\n"
    return wrap_single(body, 256, 512, LDS_BYTES, 256), n

if __name__ == "__main__":
    name = sys.argv[1]
    opt = {}
    for kv in sys.argv[2:]:
        k, v = kv.split("=")
        try: opt[k] = int(v, 0)
        except ValueError: opt[k] = v
    s, n = gen(opt)
    open(name, "w").write(s)
    print("wrote", name, "nops inserted", n, "lines", s.count("\n"))
```

```python
import sys, math, struct
from asmlib import *
import hazard

def f2u(x): return struct.unpack("<I", struct.pack("<f", x))[0]

STAMP = 0x2000000
KTAG = 0x9E3779B9
RS = 1056
L_P = 128 * RS
L_MX = L_P + 4096
L_ST2 = L_MX + 512
L_QS = L_ST2 + 64
L_XN = L_QS + 512
L_HS = L_XN + 128
L_FIN = L_HS + 64
L_OR = L_FIN + 1024
L_Q = (L_OR + 2560 + 255) // 256 * 256
L_UV = L_Q
LDS_BYTES = L_Q + 16 * RS
assert LDS_BYTES <= 163840, LDS_BYTES

def gen(opt):
    SPREAD = opt.get("spread", 0)
    DIAG = opt.get("diag", 0)
    THR = opt.get("thr", 8)
    N0 = opt.get("n0", 1); N3 = opt.get("n3", 8); UKE = opt.get("uke", 0)
    REL = opt.get("rel", "iss")
    NT = opt.get("nt", "nt")
    NTC = opt.get("ntc", NT)
    if NT == "-": NT = ""
    if NTC == "-": NTC = ""
    SPIN = opt.get("spin", 100000)
    HINT = opt.get("hint", 200)
    T1AT = opt.get("t1at", "s")
    WOAT = opt.get("woat", "h3")
    H4C = opt.get("h4c", 1)
    H2C = opt.get("h2c", 0)
    H1C = opt.get("h1c", 0)
    PP = opt.get("pp", 0)
    LNF = opt.get("lnf", 1)
    B0AT = opt.get("b0at", 8)
    HB = opt.get("hb", 0x41000)
    IB = 16384 + 384
    OH = 8 * IB
    SB = 16384 + 192
    QP = 0x10000; CP = QP + 0x1000; FP = QP + 0x4000; QA = QP + 0x3000
    CN = QP + 0x3800
    CN4 = QP + 0x3C00
    CN1 = CN4 + 64
    ML = 0x900000
    OP = 0xA00000
    SP = 0x1400000
    if opt.get("compact", 0):
        HB = 0x6000; ML = 0xE0000; SP = 0xF0000; OP = 0x200000
    assert HB >= 0x6000 and QP + 32 * HB <= ML
    a = Asm()
    sW = "s3"
    sX, sIDX, sG, sJ, sH, sI, sFG, sTAG = "s30", "s31", "s32", "s33", "s34", "s35", "s36", "s37"
    sLO, sHI, sCNT = "s38", "s39", "s40"
    t0, t1, t2, t3, t4, t5 = "s41", "s42", "s43", "s44", "s45", "s46"
    u0, u1 = "s26", "s27"
    w0_, w1_ = "s6", "s7"
    sMSK = "s47"
    R_WS, R_A, R_B, R_O, R_D = 48, 52, 56, 60, 64
    sM8, sM1 = "s68", "s69"
    sHB, sFB, sGB, sH8 = "s30", "s31", "s17", "s16"
    ST0 = 70
    def srd(d, p, n):
        a(f"s_mov_b32 s{d}, s{p}\ns_mov_b32 s{d+1}, s{p+1}\ns_mov_b32 s{d+2}, {n}\ns_mov_b32 s{d+3}, 0x00020000")
    def S(r): return f"s[{r}:{r+3}]"
    def V(r, n=4): return f"v[{r}:{r+n-1}]"
    def stamp2(k):
        if DIAG == 2: a(f"s_memrealtime s[{ST0+2*k}:{ST0+2*k+1}]\ns_waitcnt lgkmcnt(0)")
    def stamp3(k):
        if DIAG == 3: a(f"s_memrealtime s[{ST0+2*k}:{ST0+2*k+1}]")
    def stamp(k):
        if DIAG == 3 and 1 <= k <= 6: return
        if DIAG == 2 and 1 <= k <= 8: return
        if DIAG: a(f"s_memrealtime s[{ST0+2*k}:{ST0+2*k+1}]\ns_waitcnt lgkmcnt(0)")
    vL16, vN, vG, vM8, vR8 = 1, 2, 3, 4, 5
    vT8 = 7
    XP = 16; PATL = 20; PATG = 24; WB = 32
    QF = 64; AF = 128; TF = 192
    WO = 112; WD = 120; WOP = 160
    def allred_hi(v, tmp, op):
        a(f"v_mov_b32 v{tmp}, v{v}\nv_permlane16_swap_b32 v{v}, v{tmp}\n{op} v{v}, v{v}, v{tmp}")
        a(f"v_mov_b32 v{tmp}, v{v}\nv_permlane32_swap_b32 v{v}, v{tmp}\n{op} v{v}, v{v}, v{tmp}")
    def dpp(op, d, s, mode, bank="0xf"):
        a(f"{op}_dpp v{d}, v{s}, v{s} {mode} row_mask:0xf bank_mask:{bank}")
    def allred_lo8(vs, op):
        if isinstance(vs, int): vs = [vs]
        for m in ("quad_perm:[1,0,3,2]", "quad_perm:[2,3,0,1]", "row_half_mirror"):
            for v in vs: dpp(op, v, v, m)
    def wave_sum(v, tmp):
        allred_lo8(v, "v_add_f32"); dpp("v_add_f32", v, v, "row_mirror"); allred_hi(v, tmp, "v_add_f32")
    def rs8(acc, out):
        for c in range(4): a(f"v_permlane32_swap_b32 v{acc+c}, v{acc+c+4}")
        a(f"v_pk_add_f32 {V(acc,2)}, {V(acc,2)}, {V(acc+4,2)}\nv_pk_add_f32 {V(acc+2,2)}, {V(acc+2,2)}, {V(acc+6,2)}")
        for c in range(2): a(f"v_permlane16_swap_b32 v{acc+c}, v{acc+c+2}")
        a(f"v_pk_add_f32 {V(acc,2)}, {V(acc,2)}, {V(acc+2,2)}")
        dpp("v_add_f32", out, acc, "row_ror:8", "0x3"); dpp("v_add_f32", out, acc + 1, "row_ror:8", "0xc")
    def bfround(d, s):
        a(f"v_cvt_pk_bf16_f32 v{d}, v{s}, v{s}\nv_lshlrev_b32 v{d}, 16, v{d}")
    def gemv(W, P, acc, out, waits=None, nk=4):
        for k in range(nk):
            if waits: waits(k)
            for e in range(4):
                a(f"v_perm_b32 v{P+2*e}, v{W+8*k+4+e}, v{W+8*k+e}, {sLO}")
                a(f"v_perm_b32 v{P+2*e+1}, v{W+8*k+4+e}, v{W+8*k+e}, {sHI}")
            for c in range(8):
                a(f"v_dot2_f32_bf16 v{acc+c}, v{P+c}, v{XP+k}, {'0' if k == 0 else 'v%d' % (acc+c)}")
        rs8(acc, out)
    def tag8(v): a(f"v_and_or_b32 v{v}, v{v}, {sM8}, v{vT8}")
    def check(checks, bad):
        for gi, (mask, pairs) in enumerate(checks):
            b = bad + gi
            for d, e in pairs: a(f"v_xor_b32 v{d}, v{d}, v{e}")
            ds = [d for d, e in pairs]
            if len(ds) == 2: a(f"v_or_b32 v{b}, v{ds[0]}, v{ds[1]}")
            else:
                a(f"v_or3_b32 v{b}, v{ds[0]}, v{ds[1]}, v{ds[2]}")
                k = 3
                while k < len(ds):
                    if k + 1 < len(ds): a(f"v_or3_b32 v{b}, v{ds[k]}, v{ds[k+1]}, v{b}"); k += 2
                    else: a(f"v_or_b32 v{b}, v{ds[k]}, v{b}"); k += 1
            if gi == 0: a(f"v_and_b32 v{b}, {mask}, v{b}")
            else: a(f"v_and_or_b32 v{bad}, v{b}, {mask}, v{bad}")
        a(f"v_cmp_ne_u32 vcc, 0, v{bad}")
    def gather(loads, checks, bad, name, sel="lane", mid=None, issue=True):
        L = a.label(name); D = a.label(name + "d")
        if issue:
            for l in loads: a(l)
        if mid: mid()
        a(f"s_mov_b32 {sCNT}, {SPIN}")
        a(f"{L}:\ns_waitcnt vmcnt(0)")
        check(checks, bad)
        a(f"s_cbranch_vccz {D}\ns_sub_u32 {sCNT}, {sCNT}, 1\ns_cbranch_scc1 {D}")
        if sel == "quad": a("s_wqm_b64 exec, vcc")
        elif sel == "lane": a("s_mov_b64 exec, vcc")
        for l in loads: a(l)
        a(f"s_branch {L}\n{D}:")
        if sel != "wave": a("s_mov_b64 exec, -1")
    def hint(soff, target, name):
        L = a.label(name); D = a.label(name + "d")
        if PP:
            a(f"""
s_mov_b32 {sCNT}, {HINT}
s_mov_b64 exec, 1
v_mov_b32 v126, 0
buffer_atomic_add v126, off, {S(R_WS)}, {soff} sc0 sc1
s_sleep {PP}
{L}:
v_mov_b32 v6, 0
buffer_atomic_add v6, off, {S(R_WS)}, {soff} sc0 sc1
s_waitcnt vmcnt(1)
v_cmp_gt_u32 vcc, {target}, v126
s_cbranch_vccz {D}
v_mov_b32 v126, 0
buffer_atomic_add v126, off, {S(R_WS)}, {soff} sc0 sc1
s_sub_u32 {sCNT}, {sCNT}, 1
s_cbranch_scc1 {D}
s_waitcnt vmcnt(1)
v_cmp_gt_u32 vcc, {target}, v6
s_cbranch_vccnz {L}
{D}:
s_mov_b64 exec, -1
""")
            return
        a(f"""
s_mov_b32 {sCNT}, {HINT}
s_mov_b64 exec, 1
{L}:
v_mov_b32 v126, 0
buffer_atomic_add v126, off, {S(R_WS)}, {soff} sc0 sc1
s_sub_u32 {sCNT}, {sCNT}, 1
s_cbranch_scc1 {D}
s_waitcnt vmcnt(0)
v_cmp_gt_u32 vcc, {target}, v126
s_cbranch_vccz {D}
{("s_sleep %d" % opt["slp"]) if opt.get("slp", 0) else ""}
s_branch {L}
{D}:
s_mov_b64 exec, -1
""")
    def cnaddr(dst, k, tmp):
        a(f"s_and_b32 {tmp}, {k}, 31\ns_mul_i32 {tmp}, {tmp}, {HB}\ns_lshr_b32 {dst}, {k}, 5\ns_lshl_b32 {dst}, {dst}, 7\ns_add_u32 {dst}, {dst}, {tmp}\ns_add_u32 {dst}, {dst}, {CN}")
    def mk_pat(dst, sel):
        a(f"""
v_and_b32 v{dst}, 1, v{sel}
v_lshlrev_b32 v{dst}, 16, v{dst}
v_and_b32 v{dst+2}, 2, v{sel}
v_lshlrev_b32 v{dst+2}, 15, v{dst+2}
v_or_b32 v{dst+2}, 1, v{dst+2}
v_mov_b32 v{dst+1}, {t4}
v_mov_b32 v{dst+3}, {t5}
""")
    def mk_tags():
        a(f"""
s_add_u32 {sTAG}, {sTAG}, {KTAG}
s_and_b32 {t5}, {sTAG}, 0xff
v_mov_b32 v{vT8}, {t5}
s_and_b32 {t4}, {sTAG}, 3
s_mul_i32 {t4}, {t4}, 0x8001
s_and_b32 {t4}, {t4}, {sM1}
s_bfe_u32 {t5}, {sTAG}, 0x20002
s_mul_i32 {t5}, {t5}, 0x8001
s_and_b32 {t5}, {t5}, {sM1}
""")
        mk_pat(PATL, 0); mk_pat(PATG, vG)
    def consts():
        a(f"""
s_mov_b32 {sLO}, 0x05040100
s_mov_b32 {sHI}, 0x07060302
s_mov_b32 {sMSK}, 0xffff0000
s_mov_b32 {sM8}, 0xffffff00
s_mov_b32 {sM1}, 0x00010001
s_mov_b32 {sH8}, 0x8000
s_mul_i32 {sHB}, {sH}, {HB}
s_mul_i32 {sFB}, {sFG}, {HB}
s_mul_i32 {sGB}, {sG}, {16*HB}
""")
        if DIAG:
            for k in range(1, 16): a(f"s_mov_b32 s{ST0+2*k}, 0")
        srd(R_WS, 28, 0x10000000)

    stamp_entry = f"s_memrealtime s[{ST0}:{ST0+1}]" if (DIAG or opt.get("hold", 0)) else ""
    a(f"""
{stamp_entry}
s_getpc_b64 s[{R_B}:{R_B+1}]
L_pc:
v_subrev_u32 v8, 256, v0
v_lshlrev_b32 v8, 6, v8
v_cmp_gt_u32 vcc, L_end-L_pc, v8
s_and_saveexec_b64 s[4:5], vcc
s_cbranch_execz L_npf
global_load_dword v9, v8, s[{R_B}:{R_B+1}]
L_npf:
s_mov_b64 exec, s[4:5]
s_cmp_ge_u32 s2, 256
s_cbranch_scc1 L_end
s_load_dwordx16 s[4:19], s[0:1], 0
s_load_dwordx8 s[20:27], s[0:1], 64
s_load_dwordx2 s[28:29], s[0:1], 96
v_lshrrev_b32 v1, 6, v0
v_and_b32 v0, 63, v0
v_readfirstlane_b32 {sW}, v1
v_lshlrev_b32 v{vL16}, 4, v0
v_mov_b32 v19, 0
v_and_b32 v{vN}, 15, v0
v_lshrrev_b32 v{vG}, 4, v0
v_and_b32 v{vM8}, 7, v0
v_lshrrev_b32 v{vR8}, 3, v0
s_and_b32 {sX}, s2, 7
s_lshr_b32 {sIDX}, s2, 3
s_lshr_b32 {sG}, {sIDX}, 4
s_and_b32 {sJ}, {sIDX}, 7
s_lshr_b32 {t0}, {sIDX}, 3
s_and_b32 {t1}, {t0}, 1
s_lshl_b32 {sH}, {sG}, 4
s_lshl_b32 {t2}, {sX}, 1
s_add_u32 {sH}, {sH}, {t2}
s_add_u32 {sH}, {sH}, {t1}
s_lshl_b32 {sI}, {sX}, 4
s_and_b32 {t1}, {sIDX}, 15
s_add_u32 {sI}, {sI}, {t1}
s_lshl_b32 {sFG}, {t0}, 3
s_add_u32 {sFG}, {sFG}, {sX}
v_lshlrev_b32 v64, 4, v{vR8}
s_lshl_b32 {t0}, {sJ}, 7
v_add_u32 v64, {t0}, v64
v_lshlrev_b32 v65, 16, v{vR8}
v_lshl_add_u32 v65, v{vM8}, 4, v65
s_lshl_b32 {t0}, {sJ}, 19
s_lshl_b32 {t1}, {sH}, 8
s_add_u32 {t2}, {t0}, {t1}
s_lshl_b32 {t1}, {sW}, 7
s_add_u32 {t0}, {t2}, {t1}
s_mov_b32 s{R_A+2}, 4194304
s_mov_b32 s{R_A+3}, 0x00020000
s_cmp_ge_u32 {sW}, 2
s_waitcnt lgkmcnt(0)
s_cbranch_scc1 L_not01
s_mov_b64 s[{R_A}:{R_A+1}], s[8:9]
s_setprio 3
global_load_dwordx4 v[8:11], v{vL16}, s[4:5]
global_load_dwordx4 v[12:15], v64, s[4:5]
""")
    for u in range(8):
        a(f"buffer_load_dwordx4 {V(WB+4*u)}, v65, {S(R_A)}, {t0} offen {NT}")
        if u < 7: a(f"s_add_u32 {t0}, {t0}, 8192")
    a(f"s_load_dword {sTAG}, s[28:29], 0")
    if N0: a("s_barrier")
    UK = 128
    consts()
    a(f"""
s_add_u32 {t3}, {sHB}, {QP}
s_lshl_b32 {t0}, {sJ}, 9
s_add_u32 {t0}, {t0}, {t3}
s_lshl_b32 {t1}, {sW}, 8
s_add_u32 {t0}, {t0}, {t1}
v_lshl_add_u32 v29, v0, 2, {t0}
s_waitcnt vmcnt(9)
""")
    for e in range(4):
        a(f"v_lshlrev_b32 v{64+2*e}, 16, v{8+e}\nv_and_b32 v{65+2*e}, {sMSK}, v{8+e}")
    a("""
v_pk_add_f32 v[72:73], v[64:65], v[66:67]
v_pk_add_f32 v[74:75], v[68:69], v[70:71]
v_pk_add_f32 v[72:73], v[72:73], v[74:75]
v_add_f32 v72, v72, v73
""")
    wave_sum(72, 73)
    a(f"v_mul_f32 v72, 0x{f2u(1/512):08x}, v72")
    for e in range(8): a(f"v_sub_f32 v{64+e}, v{64+e}, v72")
    a("v_mul_f32 v74, v64, v64\nv_mul_f32 v75, v65, v65")
    for e in range(2, 8): a(f"v_fmac_f32 v{74+(e&1)}, v{64+e}, v{64+e}")
    a("v_add_f32 v74, v74, v75")
    wave_sum(74, 73)
    a(f"v_mul_f32 v74, 0x{f2u(1/512):08x}, v74")
    bfround(74, 74)
    a(f"v_add_f32 v74, 0x{f2u(1e-5):08x}, v74")
    bfround(74, 74)
    a("v_sqrt_f32 v74, v74")
    bfround(74, 74)
    a("v_rcp_f32 v74, v74")
    bfround(72, 72)
    a("s_waitcnt vmcnt(8)")
    for e in range(4):
        a(f"v_lshlrev_b32 v{64+2*e}, 16, v{12+e}\nv_and_b32 v{65+2*e}, {sMSK}, v{12+e}")
    for e in range(8): a(f"v_sub_f32 v{64+e}, v{64+e}, v72")
    for e in range(4): a(f"v_cvt_pk_bf16_f32 v{12+e}, v{64+2*e}, v{65+2*e}")
    for e in range(4):
        a(f"v_lshlrev_b32 v{64+2*e}, 16, v{12+e}\nv_and_b32 v{65+2*e}, {sMSK}, v{12+e}")
    for e in range(8): a(f"v_mul_f32 v{64+e}, v{64+e}, v74")
    for e in range(4): a(f"v_cvt_pk_bf16_f32 v{XP+e}, v{64+2*e}, v{65+2*e}")
    a(f"""
s_waitcnt lgkmcnt(0)
s_add_u32 {t5}, {sTAG}, {KTAG}
s_and_b32 {t5}, {t5}, 0xff
v_mov_b32 v{vT8}, {t5}
""")
    def ukloads():
        srd(R_B, 10, 4194304)
        a(f"""
v_lshlrev_b32 v28, 13, v{vN}
v_lshl_add_u32 v28, v{vG}, 4, v28
s_lshl_b32 {t1}, {sW}, 18
s_add_u32 {u0}, {t2}, {t1}
s_add_u32 {u1}, {u0}, 131072
""")
        for t in range(2):
            for s_ in range(4):
                a(f"buffer_load_dwordx4 {V(UK+16*t+4*s_)}, v28, {S(R_B)}, {u0 if t == 0 else u1} offen offset:{64*s_} {NT}")
    if UKE: ukloads()
    stamp(1)
    gemv(WB, 64, 96, 30, waits=lambda k: a(f"s_waitcnt vmcnt({6-2*k+8*UKE})"))
    tag8(30)
    a(f"buffer_store_dword v30, v29, {S(R_WS)}, 0 offen sc1")
    if H1C: a(f"s_add_u32 {t4}, {sHB}, {CN1}\nv_mov_b32 v31, 1\ns_mov_b64 exec, 1\nbuffer_atomic_add v31, off, {S(R_WS)}, {t4} sc1\ns_mov_b64 exec, -1")
    if not UKE: ukloads()
    a(f"v_lshlrev_b32 v104, 4, v{vR8}\nv_add_u32 v104, {L_XN}, v104\nds_write_b128 v104, {V(XP)}")
    a(f"""
v_and_b32 v104, 31, v0
v_lshrrev_b32 v105, 5, v0
v_lshlrev_b32 v106, 11, v105
v_lshl_add_u32 v106, v104, 4, v106
""")
    def setup2():
        a(f"""
s_lshl_b32 {t1}, {sW}, 8
s_add_u32 {t1}, {t1}, {L_QS}
v_and_b32 v107, 1, v104
v_lshlrev_b32 v107, 6, v107
v_lshl_add_u32 v107, v105, 5, v107
v_and_b32 v111, 14, v104
v_add_u32 v107, v111, v107
v_and_b32 v111, 16, v104
v_lshl_add_u32 v107, v111, 3, v107
v_add_u32 v107, {t1}, v107
v_lshlrev_b32 v108, 4, v{vG}
v_add_u32 v108, {t1}, v108
v_lshlrev_b32 v109, 5, v{vN}
v_lshl_add_u32 v109, v{vG}, 3, v109
v_lshrrev_b32 v110, 4, v109
s_lshl_b32 {t1}, {sJ}, 7
s_add_u32 {t0}, {sHB}, {t1}
s_lshl_b32 {t1}, {sW}, 6
s_add_u32 {t0}, {t0}, {t1}
s_add_u32 {t0}, {t0}, {QA}
v_add_u32 v109, {t0}, v109
""")
        mk_tags()
        mk_pat(120, 110)
        a(f"""
v_and_b32 v110, 1, v{vG}
v_cmp_eq_u32 vcc, 1, v110
v_cndmask_b32 v120, v120, v122, vcc
v_cndmask_b32 v121, v121, v123, vcc
s_lshl_b32 {t0}, {sG}, 5
s_and_b32 {t1}, s2, 6
s_lshl_b32 {t1}, {t1}, 2
s_add_u32 {t0}, {t0}, {t1}
s_add_u32 {t0}, {t0}, 192
v_mul_u32_u24 v110, {HB}, v0
v_mov_b32 v111, 1
""")
        cnaddr(u0, t0, t1)
    stamp(2)
    if REL == "pub": a("s_barrier")
    if H1C: hint(t4, 16, "L_c1")
    else: a(f"s_waitcnt vmcnt({0 if UKE else 8})")
    stamp(3)
    G1 = 64
    gather([f"buffer_load_dwordx4 {V(G1+4*u)}, v106, {S(R_WS)}, {t3} offen offset:{u*512} sc1" for u in range(4)],
           [("0xff", [(G1 + k, vT8) for k in range(16)])], 96, "L_h1", mid=lambda: (a("s_barrier") if REL == "iss" else None, setup2()))
    if REL == "h1": a("s_barrier")
    stamp(4)
    for e in (0, 2): a(f"v_pk_add_f32 {V(G1+e,2)}, {V(G1+e,2)}, {V(G1+4+e,2)}\nv_pk_add_f32 {V(G1+8+e,2)}, {V(G1+8+e,2)}, {V(G1+12+e,2)}")
    for e in (0, 2): a(f"v_pk_add_f32 {V(G1+e,2)}, {V(G1+e,2)}, {V(G1+8+e,2)}")
    sc = (128 ** -0.5) * math.log2(math.e)
    a(f"""
v_permlane32_swap_b32 v{G1}, v{G1+2}
v_permlane32_swap_b32 v{G1+1}, v{G1+3}
v_pk_add_f32 {V(G1,2)}, {V(G1,2)}, {V(G1+2,2)}
v_mul_f32 v{G1}, 0x{f2u(sc):08x}, v{G1}
v_mul_f32 v{G1+1}, 0x{f2u(sc):08x}, v{G1+1}
v_cvt_pk_bf16_f32 v{G1}, v{G1}, v{G1+1}
ds_write_b16 v107, v{G1}
ds_write_b16_d16_hi v107, v{G1} offset:16
s_waitcnt lgkmcnt(0)
""")
    for s_ in range(4): a(f"ds_read_b128 {V(80+4*s_)}, v108 offset:{64*s_}")
    for s_ in range(4):
        a(f"s_waitcnt lgkmcnt({3-s_})")
        for t in range(2):
            a(f"v_mfma_f32_16x16x32_bf16 {V(112+4*t)}, {V(UK+16*t+4*s_)}, {V(80+4*s_)}, {'0' if s_ == 0 else V(112+4*t)}")
    a(f"""
s_mov_b32 exec_lo, 0x00020002
s_mov_b32 exec_hi, 0x00020002
v_mov_b32 v112, v116
v_mov_b32 v113, v117
v_mov_b32 v114, v118
v_mov_b32 v115, v119
s_mov_b32 exec_lo, 0x00030003
s_mov_b32 exec_hi, 0x00030003
v_add_u32 v112, 0x10000, v112
v_add_u32 v113, 0x10000, v113
v_add_u32 v114, 0x10000, v114
v_add_u32 v115, 0x10000, v115
v_perm_b32 v12, v113, v112, {sHI}
v_perm_b32 v13, v115, v114, {sHI}
v_bfi_b32 v12, {sM1}, v120, v12
v_bfi_b32 v13, {sM1}, v121, v13
buffer_store_dwordx2 v[12:13], v109, {S(R_WS)}, 0 offen sc1
""")
    if H2C: a(f"s_mov_b64 exec, 0xff\nbuffer_atomic_add v111, v110, {S(R_WS)}, {u0} offen sc1")
    a("s_mov_b64 exec, -1")
    stamp(5)
    a("s_branch L_b0")
    a(f"L_not01:\ns_load_dword {sTAG}, s[28:29], 0")
    a(f"s_cmp_ge_u32 {sW}, 4\ns_cbranch_scc1 L_loader")
    consts()
    a(f"""
s_cmp_eq_u32 {sW}, 3
s_cbranch_scc1 L_w3
s_lshl_b32 {t0}, {sJ}, 7
s_add_u32 {t0}, {t0}, {sHB}
s_add_u32 {t0}, {t0}, {CN4}
s_branch L_w23e
L_w3:
""")
    if opt.get("tlb", 0):
        a(f"""
v_lshlrev_b32 v8, 21, v0
s_mov_b64 exec, 0x3
global_load_dword v70, v8, s[14:15]
global_load_dword v74, v8, s[12:13]
s_mov_b64 exec, 0xffff
global_load_dword v71, v8, s[28:29] offset:256
s_mov_b64 exec, 0xff
global_load_dword v75, v8, s[6:7]
s_mov_b64 exec, 0x1
global_load_dword v72, v8, s[22:23]
global_load_dword v73, v8, s[24:25]
global_load_dword v76, v8, s[18:19]
global_load_dword v77, v8, s[20:21]
s_mov_b64 exec, -1
""")
    cnaddr(t0, "s2", t1)
    a("L_w23e:")
    if N0: a("s_barrier")
    a(f"""
v_mov_b32 v64, 0
v_mov_b32 v65, 0
v_mov_b32 v66, 0
v_mov_b32 v67, 0
s_waitcnt vmcnt(0) lgkmcnt(0)
s_mov_b64 exec, 0xff
buffer_store_dwordx4 v[64:67], v{vL16}, {S(R_WS)}, {t0} offen sc1
s_mov_b64 exec, -1
""")
    mk_tags()
    a("s_setprio 3\ns_barrier\ns_branch L_b0")
    a("L_loader:")
    srd(R_A, 6, 16777216)
    consts()
    a("s_waitcnt lgkmcnt(0)")
    mk_tags()
    GUAT = opt.get("guat", 4)
    a(f"""
s_mul_i32 {u1}, {sJ}, {64*3584}
s_lshl_b32 {t3}, {sFG}, 7
s_add_u32 {u1}, {u1}, {t3}
s_and_b32 {t1}, {sW}, 1
s_mul_i32 {t1}, {t1}, {32*3584}
s_add_u32 {u1}, {u1}, {t1}
s_cmp_lt_u32 {sFG}, 28
s_cselect_b32 s{R_B+2}, 1835008, 0
s_bitcmp0_b32 {sW}, 1
s_cselect_b64 s[{R_B}:{R_B+1}], s[18:19], s[20:21]
s_mov_b32 s{R_B+3}, 0x00020000
v_mul_u32_u24 v13, {4*3584}, v{vR8}
v_lshl_add_u32 v13, v{vM8}, 4, v13
v_add_u32 v14, 7168, v13
s_sub_u32 {t0}, {sW}, 4
""")
    if SPREAD:
        a(f"""
s_lshl_b32 {t1}, {t0}, 4
s_add_u32 {t1}, {t1}, {sI}
s_and_b32 {t1}, {t1}, 127
s_xor_b32 {t3}, {t1}, 64
s_add_u32 {t3}, {t3}, 512
s_lshl_b32 {t2}, {t0}, 7
s_add_u32 {t1}, {t1}, {t2}
s_add_u32 {t3}, {t3}, {t2}
s_lshl_b32 {t1}, {t1}, 14
s_lshl_b32 {t3}, {t3}, 14
s_mul_i32 {t2}, {t0}, {16*RS}
""")
    else:
        a(f"""
s_lshl_b32 {t1}, {sI}, 17
s_lshl_b32 {t2}, {t0}, 14
s_add_u32 {t1}, {t1}, {t2}
s_add_u32 {t3}, {t1}, 65536
s_mul_i32 {t2}, {t0}, {16*RS}
""")
    if N0: a("s_barrier")
    c0, c1, c2 = "s8", "s9", "s10"
    a(f"s_mov_b32 {c0}, {t1}\ns_mov_b32 {c1}, {t2}\ns_mov_b32 {c2}, {t3}")
    def cgroup(grp, R):
        if grp == N0: a("s_barrier")
        if grp == GUAT:
            for k in range(4):
                a(f"buffer_load_dwordx4 {V(WB+16+4*k)}, v{13+(k>>1)}, {S(R_B)}, {u1} offen offset:{3584*(k&1)} {NT}")
                if THR: a(f"s_waitcnt vmcnt({THR})")
        for r in range(4):
            a(f"s_add_u32 m0, {c1}, {32*r}")
            a(f"buffer_load_dwordx4 v{vL16}, {S(R)}, {c0} offen offset:{1024*r} {NTC} lds")
            if THR: a(f"s_waitcnt vmcnt({THR})")
        if grp == 3: a(f"s_mov_b32 {c0}, {c2}\ns_add_u32 {c1}, {c1}, {52*RS}")
        elif grp < 7: a(f"s_add_u32 {c0}, {c0}, 4096\ns_add_u32 {c1}, {c1}, {4*RS}")
    for grp in range(B0AT): cgroup(grp, R_A)
    stamp(1)
    a(f"s_waitcnt vmcnt({4*(B0AT-4)})")
    a("L_b0:")
    srd(R_O, 14, 4194304)
    srd(R_D, 22, 1835008)
    srd(R_A, 12, 4194304)
    srd(R_B, 6, 16777216)
    a(f"""
s_lshl_b32 {t0}, {sG}, 6
s_lshl_b32 {t1}, {sW}, 3
s_add_u32 {t0}, {t0}, {t1}
s_and_b32 {t1}, s2, 7
s_add_u32 {t0}, {t0}, {t1}
""")
    cnaddr("s11", t0, t1)
    a(f"""
v_mul_u32_u24 v8, {RS}, v{vN}
v_lshl_add_u32 v8, v{vG}, 4, v8
s_mul_i32 {t0}, {sW}, {16*RS}
v_add_u32 v9, {t0}, v8
v_add_u32 v8, {L_Q}, v8
v_lshrrev_b32 v10, 2, v0
v_mul_u32_u24 v10, {RS}, v10
v_and_b32 v11, 3, v0
v_lshl_add_u32 v10, v11, 3, v10
s_lshl_b32 {t0}, {sW}, 7
v_add_u32 v10, {t0}, v10
v_add_u32 v11, {64*RS}, v10
s_lshl_b32 {t0}, {sJ}, 19
s_lshl_b32 {t1}, {sH}, 8
s_add_u32 {t0}, {t0}, {t1}
s_and_b32 {t1}, {sW}, 3
s_lshl_b32 {t1}, {t1}, 17
s_add_u32 {u0}, {t0}, {t1}
s_lshl_b32 {t1}, {sJ}, 10
s_add_u32 {u1}, {sFB}, {t1}
s_and_b32 {t1}, {sW}, 3
s_lshl_b32 {t1}, {t1}, 8
s_add_u32 {u1}, {u1}, {t1}
s_add_u32 {u1}, {u1}, {FP}
s_and_b32 {t1}, {sW}, 1
s_lshl_b32 {t1}, {t1}, 6
s_add_u32 {t1}, {t1}, {L_XN}
v_lshl_add_u32 v15, v{vR8}, 3, {t1}
v_lshlrev_b32 v13, 11, v{vR8}
v_lshl_add_u32 v13, v{vM8}, 4, v13
v_lshlrev_b32 v14, 13, v{vR8}
v_lshl_add_u32 v14, v{vM8}, 4, v14
v_lshrrev_b32 v28, 1, v{vN}
v_xor_b32 v28, v28, v{vG}
v_lshlrev_b32 v28, 5, v28
v_and_b32 v29, 1, v0
v_lshl_add_u32 v28, v29, 4, v28
v_lshl_add_u32 v28, v{vG}, 13, v28
v_xor_b32 v29, 128, v28
v_add_u32 v29, 32768, v29
v_mul_u32_u24 v30, {OH}, v{vM8}
v_lshl_add_u32 v30, v{vG}, 4, v30
v_and_b32 v31, 8, v0
v_lshl_add_u32 v30, v31, 3, v30
s_mul_i32 {t3}, {sG}, {16*OH}
s_mul_i32 {t4}, {sW}, {IB}
s_add_u32 {t3}, {t3}, {t4}
s_lshl_b32 {t4}, {sI}, 7
s_add_u32 {t3}, {t3}, {t4}
s_add_u32 {t3}, {t3}, {OP}
v_add_u32 v30, {t3}, v30
v_add_u32 v31, {8*OH}, v30
v_lshlrev_b32 v6, 5, v{vN}
v_add_u32 v6, {L_MX}, v6
s_lshl_b32 {t2}, {sH}, 17
s_lshl_b32 {t3}, {sJ}, 14
s_add_u32 {t2}, {t2}, {t3}
s_lshl_b32 {t5}, {sW}, 7
s_add_u32 {w0_}, {t2}, {t5}
s_lshl_b32 {t3}, {sFG}, 16
s_add_u32 {t5}, {t5}, {t3}
s_lshl_b32 {t3}, {sJ}, 10
s_add_u32 {w1_}, {t5}, {t3}
s_mul_i32 {t3}, {sW}, {4*RS}
s_add_u32 {t3}, {t3}, {L_Q}
v_add_u32 v12, {t3}, v{vL16}
s_mul_i32 {t0}, {sW}, {4*HB}
s_add_u32 {t0}, {t0}, {sGB}
s_add_u32 {t0}, {t0}, {QA}
s_add_u32 {t1}, {t0}, {HB}
s_add_u32 {t2}, {t1}, {HB}
s_add_u32 {t3}, {t2}, {HB}
s_add_u32 {t4}, {u0}, 65536
s_cmp_ge_u32 {sW}, 4
""")
    wol = [f"buffer_load_dwordx4 {V(WO)}, v13, {S(R_O)}, {w0_} offen {NT}", f"buffer_load_dwordx4 {V(WO+4)}, v13, {S(R_O)}, {w0_} offen offset:1024 {NT}",
           f"buffer_load_dwordx4 {V(WD)}, v14, {S(R_D)}, {w1_} offen {NT}"]
    WO03 = opt.get("wo03", "ba")
    if WO03 == "b0":
        a("s_cbranch_scc1 L_nwo")
        for l in wol: a(l)
        a("L_nwo:")
    a("s_waitcnt lgkmcnt(0)\ns_barrier")
    def rdT(ks, T):
        base = "v10" if ks < 2 else "v11"
        off = (ks & 1) * 32 * RS + 32 * T
        r = TF + 16 * ks + 4 * T
        a(f"ds_read_b64_tr_b16 {V(r,2)}, {base} offset:{off}\nds_read_b64_tr_b16 {V(r+2,2)}, {base} offset:{off+16*RS}")
    G2 = 64
    h2loads = [f"buffer_load_dwordx4 {V(G2+4*k)}, v{vL16}, {S(R_WS)}, {[t0,t1,t2,t3][k]} offen sc1" for k in range(4)]
    a("s_cbranch_scc1 L_ng")
    if not H2C:
        for l in h2loads: a(l)
    if B0AT < 8:
        a("s_branch L_ng2\nL_ng:")
        for grp in range(B0AT, 8): cgroup(grp, R_B)
        a(f"s_cmp_ge_u32 {sW}, 4\nL_ng2:")
    else: a("L_ng:")
    stamp(6)
    for ks in range(2):
        for T in range(4): rdT(ks, T)
        a("s_waitcnt lgkmcnt(7)")
    a("s_cbranch_scc0 L_nw")
    T1T = opt.get("t1t", THR)
    a(f"ds_read_b64 {V(XP,2)}, v15")
    tl = [f"buffer_load_dwordx4 {V(WB+4*k)}, v{28+(k&1)}, {S(R_A)}, {u0 if k < 2 else t4} offen {NT}" for k in range(4)] + wol
    NE = opt.get("ne", 7)
    for l in tl[:min(4, NE)]:
        if T1T: a(f"s_waitcnt vmcnt({T1T-1})")
        a(l)
    a("s_waitcnt lgkmcnt(0)")
    gemv(WB + 16, 64, 72, 18, nk=2)
    tag8(18)
    a("v_lshlrev_b32 v19, 2, v0")
    for l in tl[4:NE]:
        if T1T: a(f"s_waitcnt vmcnt({T1T-1})")
        a(l)
    a(f"s_waitcnt vmcnt({NE})\nL_nw:")
    stamp(8)
    for s in range(8): a(f"ds_read_b128 {V(AF+4*s)}, v9 offset:{64*s}")
    a("s_waitcnt lgkmcnt(7)")
    for s in range(8, 16): a(f"ds_read_b128 {V(AF+4*s)}, v9 offset:{64*s}")
    a("s_cbranch_scc0 L_g2")
    for l in tl[NE:]: a(l)
    a(f"buffer_store_dword v18, v19, {S(R_WS)}, {u1} offen sc1\ns_branch L_ba\nL_g2:")
    if H2C: hint("s11", 64, "L_c2")
    gather(h2loads, [(sM1, [(G2 + 4 * k + e, PATL + e) for k in range(4) for e in range(4)])], 96, "L_h2g", sel="quad", issue=bool(H2C))
    a("s_waitcnt lgkmcnt(8)")
    for k in range(4): a(f"ds_write_b128 v12, {V(G2+4*k)} offset:{k*RS}")
    if WO03 == "ba":
        for l in wol: a(l)
    a(f"""
{"s_setprio 0" if opt.get("pvp", 0) != 1 else ""}
L_ba:
s_lshl_b32 {t2}, {sW}, 2
s_lshr_b32 {t0}, {sW}, 1
s_lshl_b32 {t0}, {t0}, 10
s_and_b32 {t1}, {sW}, 1
s_lshl_b32 {t1}, {t1}, 3
s_add_u32 {t0}, {t0}, {t1}
s_add_u32 {t3}, {t0}, {L_P}
s_waitcnt lgkmcnt(0)
s_barrier
""")
    stamp(7)
    PRE = 12
    SA = 12
    for s in range(PRE): a(f"ds_read_b128 {V(QF+4*s)}, v8 offset:{64*s}")
    for s in range(16):
        rem = min(16, s + PRE) - (s + 1)
        a(f"s_waitcnt lgkmcnt({rem})")
        a(f"v_mfma_f32_16x16x32_bf16 {V(SA)}, {V(AF+4*s)}, {V(QF+4*(s%12))}, {'0' if s == 0 else V(SA)}")
        if s + PRE < 16: a(f"ds_read_b128 {V(QF+4*((s+PRE)%12))}, v8 offset:{64*(s+PRE)}")
    for T in range(4): rdT(2, T)
    a(f"""
v_add_u32 v64, {t2}, v6
v_add_u32 v65, {t3}, v{vL16}
v_add_u32 v76, {L_P}, v{vL16}
v_max3_f32 v66, v{SA}, v{SA+1}, v{SA+2}
v_max_f32 v66, v66, v{SA+3}
""")
    allred_hi(66, 67, "v_max_f32")
    a("ds_write_b32 v64, v66")
    stamp3(1)
    a(f"""
s_waitcnt lgkmcnt(0)
s_barrier
""")
    if DIAG == 3: stamp3(2); a("s_waitcnt lgkmcnt(0)")
    a(f"""
ds_read_b128 v[68:71], v6
ds_read_b128 v[72:75], v6 offset:16
""")
    for T in range(2): rdT(3, T)
    a(f"""
s_waitcnt lgkmcnt(4)
v_max3_f32 v66, v68, v69, v70
v_max3_f32 v67, v71, v72, v73
v_max3_f32 v66, v66, v74, v75
v_max_f32 v66, v66, v67
v_and_b32 v66, {sM8}, v66
""")
    for r in range(4): a(f"v_sub_f32 v{SA+r}, v{SA+r}, v66")
    for r in range(4): a(f"v_exp_f32 v{SA+r}, v{SA+r}")
    a(f"""
v_cvt_pk_bf16_f32 v68, v{SA}, v{SA+1}
v_cvt_pk_bf16_f32 v69, v{SA+2}, v{SA+3}
ds_write_b64 v65, v[68:69]
""")
    for T in range(2, 4): rdT(3, T)
    if DIAG == 3: stamp3(3); a("s_waitcnt lgkmcnt(0)")
    a("s_waitcnt lgkmcnt(4)\ns_barrier")
    if DIAG == 3: stamp3(4); a("s_waitcnt lgkmcnt(0)")
    PFR = 80
    if opt.get("pvp", 0) == 2: a(f"s_cmp_ge_u32 {sW}, 4\ns_cbranch_scc1 L_np\ns_setprio 3\nL_np:")
    for ks in range(4): a(f"ds_read_b128 {V(PFR+4*ks)}, v76 offset:{1024*ks}")
    OA = AF; LA = AF + 16; ONE = AF + 20
    a(f"v_mov_b32 v77, 1\ns_cmp_lg_u32 {sW}, 2\ns_cbranch_scc1 L_noml")
    for r in range(4): a(f"v_mov_b32 v{ONE+r}, 0x3f803f80")
    a(f"""
v_lshlrev_b32 v75, 3, v0
s_lshl_b32 {t3}, {sG}, 14
s_lshl_b32 {t4}, {sI}, 7
s_add_u32 {t3}, {t3}, {t4}
s_add_u32 {t3}, {t3}, {ML}
v_or_b32 v108, v66, v{vT8}
""")
    for ks in range(4):
        a(f"s_waitcnt lgkmcnt({3-ks})")
        a(f"v_mfma_f32_16x16x32_bf16 {V(LA)}, {V(ONE)}, {V(PFR+4*ks)}, {'0' if ks == 0 else V(LA)}")
    a(f"""
v_and_or_b32 v109, v{LA}, {sM8}, v{vT8}
s_mov_b64 exec, 0xffff
buffer_store_dwordx2 v[108:109], v75, {S(R_WS)}, {t3} offen sc1
s_mov_b64 exec, -1
L_noml:
""")
    for ks in range(4):
        a(f"s_waitcnt lgkmcnt({3-ks})")
        for T in range(4):
            a(f"v_mfma_f32_16x16x32_bf16 {V(OA+4*T)}, {V(TF+16*ks+4*T)}, {V(PFR+4*ks)}, {'0' if ks == 0 else V(OA+4*T)}")
    for T in range(4):
        a(f"v_cvt_pk_bf16_f32 v{96+2*T}, v{OA+4*T}, v{OA+4*T+1}\nv_cvt_pk_bf16_f32 v{97+2*T}, v{OA+4*T+2}, v{OA+4*T+3}")
        if T < 2:
            a(f"v_bfi_b32 v{104+2*T}, {sM1}, v{PATG+2*T}, v{96+2*T}\nv_bfi_b32 v{105+2*T}, {sM1}, v{PATG+2*T+1}, v{97+2*T}")
        a(f"v_bfi_b32 v{96+2*T}, {sM1}, v{PATG+(2*T)%4}, v{96+2*T}\nv_bfi_b32 v{97+2*T}, {sM1}, v{PATG+(2*T+1)%4}, v{97+2*T}")
    stamp3(5)
    for e in range(4): a(f"v_mov_b32_dpp v{96+e}, v{100+e} row_ror:8 row_mask:0xf bank_mask:0xc")
    a(f"buffer_store_dwordx4 v[96:99], v30, {S(R_WS)}, 0 offen sc1")
    for e in range(4): a(f"v_mov_b32_dpp v{100+e}, v{104+e} row_ror:8 row_mask:0xf bank_mask:0x3")
    a(f"buffer_store_dwordx4 v[100:103], v31, {S(R_WS)}, 0 offen sc1")
    a(f"s_mov_b64 exec, 1\nbuffer_atomic_add v77, off, {S(R_WS)}, s11 sc1\ns_mov_b64 exec, -1")
    if opt.get("pvp", 0): a("s_setprio 0")
    stamp(9)
    stamp2(1)
    a(f"""
s_cmp_lt_u32 {sW}, 4
s_cbranch_scc1 L_pc0
s_lshl_b32 {t0}, {sW}, 12
s_add_u32 {t0}, {t0}, {L_UV - 4*4096}
v_add_u32 v9, {t0}, v{vL16}
s_waitcnt vmcnt(7)
""")
    for u in range(4): a(f"ds_write_b128 v9, {V(WB+4*u)} offset:{1024*u}")
    a(f"""
L_pc0:
s_lshl_b32 {t2}, {sG}, 6
s_lshl_b32 {t1}, {sJ}, 3
s_add_u32 {t2}, {t2}, {t1}
s_add_u32 {t2}, {t2}, {sW}
""")
    cnaddr(t5, t2, t1)
    a(f"""
v_lshlrev_b32 v8, 7, v{vR8}
s_lshl_b32 {t0}, {sG}, 14
s_lshl_b32 {t1}, {sW}, 11
s_add_u32 {t0}, {t0}, {t1}
s_and_b32 {t1}, {sH}, 15
s_lshl_b32 {t1}, {t1}, 3
s_add_u32 {t0}, {t0}, {t1}
s_add_u32 {t0}, {t0}, {ML}
s_mul_i32 {t1}, {sH}, {OH}
s_mul_i32 {t2}, {sJ}, {IB}
s_add_u32 {t1}, {t1}, {t2}
s_lshl_b32 {t2}, {sW}, 11
s_add_u32 {t1}, {t1}, {t2}
s_add_u32 {t1}, {t1}, {OP}
""")
    stamp2(2)
    hint(t5, 16, "L_c3")
    stamp(10)
    hfloads = [f"buffer_load_dword v{104+k}, v10, {S(R_WS)}, {t4} offen offset:{256*k} sc1" for k in range(4)]
    def mid3():
        a(f"""
s_lshl_b32 {t2}, {sW}, 3
s_add_u32 {t2}, {t2}, {L_ST2}
v_mov_b32 v74, {t2}
v_bfe_u32 v75, v0, 3, 1
v_mul_u32_u24 v75, 160, v75
v_lshl_add_u32 v75, v{vM8}, 4, v75
v_lshl_add_u32 v75, v{vG}, 2, v75
s_mul_i32 {t2}, {sW}, 320
s_add_u32 {t2}, {t2}, {L_OR}
v_add_u32 v75, {t2}, v75
v_mul_u32_u24 v76, 160, v{vN}
v_lshl_add_u32 v76, v{vG}, 4, v76
v_add_u32 v76, {L_OR}, v76
v_lshrrev_b32 v77, 2, v0
v_and_b32 v78, 7, v77
v_xor_b32 v78, {sW}, v78
v_lshlrev_b32 v77, 8, v77
v_lshl_add_u32 v77, v78, 5, v77
v_and_b32 v78, 3, v0
v_lshl_add_u32 v77, v78, 3, v77
v_add_u32 v77, {L_UV}, v77
v_lshlrev_b32 v78, 3, v{vM8}
v_add_u32 v78, {L_ST2}, v78
v_lshlrev_b32 v79, 4, v{vG}
v_add_u32 v79, {L_ST2}, v79
v_mov_b32 v14, {sH8}
s_lshl_b32 {t2}, {sW}, 9
s_add_u32 {t2}, {sHB}, {t2}
s_lshl_b32 {t3}, {sJ}, 6
s_add_u32 {t2}, {t2}, {t3}
s_add_u32 {t2}, {t2}, {CP}
v_lshl_add_u32 v15, v0, 2, {t2}
s_lshl_b32 {t2}, {sJ}, 9
s_add_u32 {t2}, {sHB}, {t2}
s_add_u32 {t2}, {t2}, {CP}
v_lshlrev_b32 v9, 6, v{vM8}
v_lshl_add_u32 v9, v{vR8}, 3, v9
v_mul_u32_u24 v11, {SB}, v{vR8}
v_lshl_add_u32 v11, v{vM8}, 3, v11
s_mul_i32 {t3}, {sW}, {8*SB}
s_lshl_b32 {t4}, s2, 6
s_add_u32 {t3}, {t3}, {t4}
s_add_u32 {t3}, {t3}, {SP}
v_lshlrev_b32 v10, 10, v{vM8}
v_lshl_add_u32 v10, v{vR8}, 2, v10
s_lshl_b32 {t4}, {sJ}, 5
s_add_u32 {t4}, {sFB}, {t4}
s_add_u32 {t4}, {t4}, {FP}
s_lshl_b32 {u0}, {sW}, 7
s_add_u32 {u0}, {u0}, {sHB}
s_add_u32 {u0}, {u0}, {CN4}
s_lshl_b32 {u1}, {sJ}, 7
s_add_u32 {u1}, {u1}, {sHB}
s_add_u32 {u1}, {u1}, {CN4}
v_mov_b32 v12, 1
v_lshlrev_b32 v13, 3, v{vR8}
v_add_u32 v13, {L_HS}, v13
s_and_b32 {t5}, s2, 7
s_cmp_lg_u32 {t5}, {sW}
s_cbranch_scc1 L_nhf
""")
        gather(hfloads, [("0xff", [(104 + k, vT8) for k in range(4)])], 108, "L_hf", sel="wave")
        a("v_add_f32 v104, v104, v105\nv_add_f32 v105, v106, v107")
        allred_lo8([104, 105], "v_add_f32")
        a("ds_write_b64 v13, v[104:105]\nL_nhf:")
    gather([f"buffer_load_dwordx2 v[64:65], v8, {S(R_WS)}, {t0} offen sc1",
            f"buffer_load_dwordx2 v[68:69], v8, {S(R_WS)}, {t0} offen offset:1024 sc1",
            f"buffer_load_dwordx4 v[80:83], v{vL16}, {S(R_WS)}, {t1} offen sc1",
            f"buffer_load_dwordx4 v[84:87], v{vL16}, {S(R_WS)}, {t1} offen offset:1024 sc1"],
           [("0xff", [(64, vT8), (65, vT8), (68, vT8), (69, vT8)]), (sM1, [(80 + k, PATL + (k & 3)) for k in range(8)])], 72, "L_h3", sel="wave", mid=mid3)
    stamp(11)
    def unp(d, s):
        a(f"v_lshl_or_b32 v{d}, v{s}, 16, v14\nv_and_or_b32 v{d+1}, v{s}, {sMSK}, v14")
    a("v_max_f32 v72, v64, v68")
    for e in range(2): unp(88 + 2 * e, 80 + e)
    dpp("v_max_f32", 72, 72, "row_ror:8")
    a("v_mov_b32 v73, v72")
    for e in range(2, 4): unp(88 + 2 * e, 80 + e)
    a("v_permlane16_swap_b32 v72, v73\nv_max_f32 v72, v72, v73\nv_mov_b32 v73, v72")
    for e in range(2): unp(96 + 2 * e, 84 + e)
    a("v_permlane32_swap_b32 v72, v73\nv_max_f32 v72, v72, v73")
    a("v_sub_f32 v64, v64, v72\nv_sub_f32 v68, v68, v72\nv_exp_f32 v64, v64\nv_exp_f32 v68, v68")
    for e in range(2, 4): unp(96 + 2 * e, 84 + e)
    a("v_mul_f32 v73, v64, v65\nv_fmac_f32 v73, v68, v69\nv_mov_b32 v65, v64\nv_mov_b32 v69, v68")
    for e in range(0, 8, 2): a(f"v_pk_mul_f32 v[{88+e}:{89+e}], v[64:65], v[{88+e}:{89+e}]")
    for e in range(0, 8, 2): a(f"v_pk_fma_f32 v[{88+e}:{89+e}], v[68:69], v[{96+e}:{97+e}], v[{88+e}:{89+e}]")
    dpp("v_add_f32", 73, 73, "row_ror:8")
    for c in range(4): a(f"v_permlane32_swap_b32 v{88+c}, v{92+c}")
    a("v_mov_b32 v65, v73")
    a("v_pk_add_f32 v[88:89], v[88:89], v[92:93]\nv_pk_add_f32 v[90:91], v[90:91], v[94:95]")
    a("v_permlane16_swap_b32 v73, v65")
    for c in range(2): a(f"v_permlane16_swap_b32 v{88+c}, v{90+c}")
    a("v_add_f32 v73, v73, v65")
    a("v_pk_add_f32 v[88:89], v[88:89], v[90:91]")
    a(f"""
v_mov_b32 v65, v73
v_cvt_pk_bf16_f32 v88, v88, v89
ds_write_b32 v75, v88
v_permlane32_swap_b32 v73, v65
v_add_f32 v73, v73, v65
ds_write_b64 v74, v[72:73]
s_waitcnt lgkmcnt(0)
""")
    stamp2(3)
    a("s_barrier")
    stamp2(4)
    a(f"""
ds_read_b64 v[64:65], v78
ds_read_b128 v[80:83], v76
ds_read_b64_tr_b16 v[88:89], v77
ds_read_b64_tr_b16 v[90:91], v77 offset:4096
ds_read_b128 v[84:87], v76 offset:64
ds_read_b64_tr_b16 v[92:93], v77 offset:8192
ds_read_b64_tr_b16 v[94:95], v77 offset:12288
ds_read_b128 v[68:71], v79
""")
    a("ds_read_b64 v[124:125], v13\ns_waitcnt lgkmcnt(8)")
    a("v_max_f32_dpp v66, v64, v64 quad_perm:[1,0,3,2] row_mask:0xf bank_mask:0xf")
    a("s_waitcnt lgkmcnt(5)\nv_mfma_f32_16x16x32_bf16 v[96:99], v[80:83], v[88:91], 0")
    dpp("v_max_f32", 66, 66, "quad_perm:[2,3,0,1]")
    a("s_waitcnt lgkmcnt(2)\nv_mfma_f32_16x16x32_bf16 v[96:99], v[84:87], v[92:95], v[96:99]")
    dpp("v_max_f32", 66, 66, "row_half_mirror")
    a("""
s_waitcnt lgkmcnt(0)
v_sub_f32 v64, v64, v66
v_sub_f32 v68, v68, v66
v_sub_f32 v70, v70, v66
v_exp_f32 v64, v64
v_exp_f32 v68, v68
v_exp_f32 v70, v70
v_mul_f32 v64, v64, v65
v_add_f32 v96, v96, v97
v_add_f32 v98, v98, v99
""")
    dpp("v_add_f32", 64, 64, "quad_perm:[1,0,3,2]")
    a("v_mul_f32 v96, v96, v68\nv_fmac_f32 v96, v98, v70")
    dpp("v_add_f32", 64, 64, "quad_perm:[2,3,0,1]")
    a("v_mov_b32 v97, v96")
    dpp("v_add_f32", 64, 64, "row_half_mirror")
    a("v_permlane16_swap_b32 v96, v97\nv_rcp_f32 v64, v64\nv_add_f32 v96, v96, v97\nv_mov_b32 v97, v96\nv_permlane32_swap_b32 v96, v97\nv_add_f32 v96, v96, v97")
    a("v_mul_f32 v96, v96, v64")
    tag8(96)
    a(f"""
s_mov_b64 exec, 0xffff
buffer_store_dword v96, v15, {S(R_WS)}, 0 offen sc1
""")
    if H4C: a(f"s_mov_b64 exec, 1\nbuffer_atomic_add v12, off, {S(R_WS)}, {u0} sc1")
    a("s_mov_b64 exec, -1")
    stamp(12)
    c1 = -2.0 * math.sqrt(2 / math.pi) * math.log2(math.e)
    def ffn2():
        a(f"""
v_cvt_pk_bf16_f32 v124, v124, v125
v_and_b32 v125, {sMSK}, v124
v_lshlrev_b32 v124, 16, v124
v_mul_f32 v100, v124, v124
v_mov_b32 v101, 0x{f2u(c1):08x}
v_fmac_f32 v101, 0x{f2u(c1*0.044715):08x}, v100
v_mul_f32 v100, v101, v124
v_exp_f32 v100, v100
v_add_f32 v100, 1.0, v100
v_rcp_f32 v100, v100
v_mul_f32 v124, v124, v100
""")
        bfround(124, 124)
        a("v_mul_f32 v124, v124, v125")
        bfround(13, 124)
        for e in range(4):
            a(f"v_lshlrev_b32 v{80+2*e}, 16, v{WD+e}\nv_and_b32 v{81+2*e}, {sMSK}, v{WD+e}")
        for e in range(8): a(f"v_mul_f32 v{80+e}, v13, v{80+e}")
        rs8(80, 125)
        for e in range(4):
            a(f"v_perm_b32 v{WOP+2*e}, v{WO+4+e}, v{WO+e}, {sLO}\nv_perm_b32 v{WOP+2*e+1}, v{WO+4+e}, v{WO+e}, {sHI}")
        tag8(125)
        a(f"""
s_lshr_b32 {t4}, s2, 4
s_and_b32 {t4}, {t4}, 7
s_lshl_b32 {t0}, {sW}, 3
s_add_u32 {t0}, {t0}, {t4}
s_add_u32 {t0}, {t0}, 128
""")
        cnaddr(t4, t0, t5)
        a(f"""
s_sub_u32 {t0}, {sFG}, 24
s_and_b32 {t0}, {t0}, 7
s_lshl_b32 {t1}, {t0}, 3
s_add_u32 {t5}, {t1}, {sW}
s_add_u32 {t5}, {t5}, 128
""")
        cnaddr("s11", t5, "s10")
        a(f"""
s_add_u32 {t1}, {t1}, {sJ}
s_mul_i32 s8, {t1}, {SB}
s_lshl_b32 s9, {sW}, 10
s_add_u32 s8, s8, s9
s_add_u32 s8, s8, {SP}
s_add_u32 s9, s8, 8192
s_lshl_b32 {t0}, {t0}, 6
s_add_u32 {t0}, {t0}, {sJ}
s_lshl_b32 {t0}, {t0}, 1
v_lshl_add_u32 v8, v{vM8}, 4, {t0}
global_load_ushort v127, v8, s[4:5]
v_bfe_u32 v14, v0, 4, 1
v_lshlrev_b32 v14, 8, v14
v_and_b32 v10, 3, v0
v_lshl_add_u32 v14, v10, 6, v14
v_lshrrev_b32 v10, 5, v0
v_lshl_add_u32 v14, v10, 5, v14
s_lshl_b32 {t5}, {sW}, 2
s_add_u32 {t5}, {t5}, {L_FIN}
v_add_u32 v14, {t5}, v14
v_lshlrev_b32 v10, 5, v{vM8}
v_add_u32 v10, {L_FIN}, v10
""")
        stamp2(6)
    ffn2()
    if H4C: hint(u1, 8, "L_c4")
    else: a("s_waitcnt vmcnt(0)")
    stamp2(8)
    gather([f"buffer_load_dwordx2 v[104:105], v9, {S(R_WS)}, {t2} offen sc1"], [("0xff", [(104, vT8), (105, vT8)])], 68, "L_h4", sel="wave")
    stamp(13)
    allred_lo8([104, 105], "v_add_f32")
    a("v_cvt_pk_bf16_f32 v64, v104, v105")
    for c in range(8): a(f"v_dot2_f32_bf16 v{72+c}, v{WOP+c}, v64, 0")
    rs8(72, 124)
    tag8(124)
    a(f"buffer_store_dwordx2 v[124:125], v11, {S(R_WS)}, {t3} offen sc1")
    a(f"s_mov_b64 exec, 1\nbuffer_atomic_add v12, off, {S(R_WS)}, {t4} sc1\ns_mov_b64 exec, -1")
    stamp(14)
    a(f"s_cmp_lt_u32 {sFG}, 24\ns_cbranch_scc1 L_fin")
    hint("s11", 32, "L_c5")
    stamp2(7)
    gather([f"buffer_load_dwordx4 {V(64+4*k)}, v{vL16}, {S(R_WS)}, {['s8','s9'][k]} offen sc1" for k in range(2)],
           [("0xff", [(64 + k, vT8) for k in range(8)])], 80, "L_h5")
    stamp(1)
    a("""
v_pk_add_f32 v[64:65], v[64:65], v[68:69]
v_pk_add_f32 v[66:67], v[66:67], v[70:71]
v_permlane32_swap_b32 v64, v66
v_permlane32_swap_b32 v65, v67
v_pk_add_f32 v[64:65], v[64:65], v[66:67]
v_permlane16_swap_b32 v64, v65
v_add_f32 v64, v64, v65
""")
    dpp("v_add_f32", 64, 64, "row_ror:8"); dpp("v_add_f32", 64, 64, "row_ror:4")
    a(f"""
ds_write_b32 v14, v64
s_waitcnt lgkmcnt(0)
s_barrier
s_cmp_lg_u32 {sW}, 0
s_cbranch_scc1 L_fin
ds_read_b128 v[72:75], v10 offset:256
ds_read_b128 v[76:79], v10 offset:272
ds_read_b128 v[64:67], v10
ds_read_b128 v[68:71], v10 offset:16
s_waitcnt lgkmcnt(2)
v_pk_add_f32 v[72:73], v[72:73], v[74:75]
v_pk_add_f32 v[76:77], v[76:77], v[78:79]
v_pk_add_f32 v[72:73], v[72:73], v[76:77]
v_add_f32 v72, v72, v73
""")
    bfround(72, 72)
    a(f"""
v_mul_f32 v73, 0x{f2u(-math.log2(math.e)):08x}, v72
v_exp_f32 v73, v73
s_waitcnt lgkmcnt(0)
v_pk_add_f32 v[64:65], v[64:65], v[66:67]
v_pk_add_f32 v[68:69], v[68:69], v[70:71]
v_add_f32 v73, 1.0, v73
v_rcp_f32 v73, v73
v_pk_add_f32 v[64:65], v[64:65], v[68:69]
v_add_f32 v64, v64, v65
v_mul_f32 v72, v72, v73
v_cvt_pk_bf16_f32 v64, v64, v72
v_lshlrev_b32 v65, 16, v64
v_and_b32 v64, {sMSK}, v64
v_mul_f32 v64, v64, v65
""")
    bfround(64, 64)
    a(f"""
v_lshlrev_b32 v12, 16, v127
v_add_f32 v64, v64, v12
v_cvt_pk_bf16_f32 v64, v64, v64
s_mov_b64 exec, 0xff
global_store_short v8, v64, s[24:25]
s_cmp_lg_u32 {t0}, 0
s_cbranch_scc1 L_fin0
s_mov_b64 exec, 1
v_mov_b32 v65, {sTAG}
buffer_store_dword v65, off, {S(R_WS)}, 0 sc1
L_fin0:
s_mov_b64 exec, -1
L_fin:
""")
    if opt.get("hold", 0):
        if "holdwg" in opt: a(f"s_cmp_lg_u32 s2, {opt['holdwg']}\ns_cbranch_scc1 L_end")
        a(f"s_add_u32 s{ST0+4}, s{ST0}, {opt['hold']}\nL_hold:\ns_memrealtime s[{ST0+2}:{ST0+3}]\ns_waitcnt lgkmcnt(0)\ns_sub_u32 s{ST0+5}, s{ST0+2}, s{ST0+4}\ns_cmp_lt_i32 s{ST0+5}, 0\ns_cbranch_scc1 L_hold")
    if DIAG:
        stamp(15)
        for k in range(16): a(f"v_mov_b32 v{64+k}, s{ST0+2*k}")
        a(f"""
s_lshl_b32 {t0}, s2, 3
s_add_u32 {t0}, {t0}, {sW}
s_lshl_b32 {t0}, {t0}, 6
s_add_u32 {t0}, {t0}, {STAMP}
v_mov_b32 v8, 0
s_mov_b64 exec, 1
""")
        for k in range(4): a(f"buffer_store_dwordx4 {V(64+4*k)}, v8, {S(R_WS)}, {t0} offen offset:{16*k}")
    a("L_end:\ns_endpgm")
    if opt.get("nost", 0):
        out = []; seen_b = False
        for l in a.lines:
            if l.strip() == "L_ba:": seen_b = True
            if not seen_b and "sc1" in l and ("store" in l or (opt["nost"] >= 2 and "load" in l)): l = "    s_nop 0"
            out.append(l)
        a.lines = out
    lines, n = hazard.fix(a.lines)
    body = "\n".join(lines) + "\n"
    return wrap_single(body, 256, 512, LDS_BYTES, 256), n

if __name__ == "__main__":
    name = sys.argv[1]
    opt = {}
    for kv in sys.argv[2:]:
        k, v = kv.split("=")
        try: opt[k] = int(v, 0)
        except ValueError: opt[k] = v
    s, n = gen(opt)
    open(name, "w").write(s)
    print("wrote", name, "nops inserted", n, "lines", s.count("\n"))
```

```python
import sys, math, struct
from asmlib import *
import hazard

def f2u(x): return struct.unpack("<I", struct.pack("<f", x))[0]

STAMP = 0x2000000
KTAG = 0x9E3779B9
RS = 1056
L_P = 128 * RS
L_MX = L_P + 4096
L_ST2 = L_MX + 512
L_QS = L_ST2 + 64
L_XN = L_QS + 512
L_RI = L_XN + 128
L_HS = L_RI + 16
L_FIN = L_HS + 64
L_OR = L_FIN + 1024
L_Q = (L_OR + 2560 + 255) // 256 * 256
L_UV = L_Q
LDS_BYTES = L_Q + 16 * RS
assert LDS_BYTES <= 163840, LDS_BYTES

def gen(opt):
    SPREAD = opt.get("spread", 0)
    DIAG = opt.get("diag", 0)
    THR = opt.get("thr", 8)
    N0 = opt.get("n0", 0); N3 = opt.get("n3", 8); UKE = opt.get("uke", 0)
    REL = opt.get("rel", "iss")
    NT = opt.get("nt", "nt")
    NTC = opt.get("ntc", NT)
    if NT == "-": NT = ""
    if NTC == "-": NTC = ""
    SPIN = opt.get("spin", 100000)
    HINT = opt.get("hint", 200)
    T1AT = opt.get("t1at", "s")
    WOAT = opt.get("woat", "h3")
    H4C = opt.get("h4c", 1)
    H2C = opt.get("h2c", 0)
    H1C = opt.get("h1c", 0)
    PP = opt.get("pp", 0)
    LNF = opt.get("lnf", 1)
    B0AT = opt.get("b0at", 8)
    HB = opt.get("hb", 0x41000)
    IB = 16384 + 384
    OH = 8 * IB
    SB = 16384 + 192
    QP = 0x10000; CP = QP + 0x1000; FP = QP + 0x4000; QA = QP + 0x3000
    CN = QP + 0x3800
    CN4 = QP + 0x3C00
    CN1 = CN4 + 64
    ML = 0x900000
    OP = 0xA00000
    SP = 0x1400000
    if opt.get("compact", 0):
        HB = 0x6000; ML = 0xE0000; SP = 0xF0000; OP = 0x200000
    assert HB >= 0x6000 and QP + 32 * HB <= ML
    a = Asm()
    sW = "s3"
    sX, sIDX, sG, sJ, sH, sI, sFG, sTAG = "s30", "s31", "s32", "s33", "s34", "s35", "s36", "s37"
    sLO, sHI, sCNT = "s38", "s39", "s40"
    t0, t1, t2, t3, t4, t5 = "s41", "s42", "s43", "s44", "s45", "s46"
    u0, u1 = "s26", "s27"
    w0_, w1_ = "s6", "s7"
    sMSK = "s47"
    R_WS, R_A, R_B, R_O, R_D = 48, 52, 56, 60, 64
    sM8, sM1 = "s68", "s69"
    sHB, sFB, sGB, sH8 = "s30", "s31", "s17", "s16"
    ST0 = 70
    def srd(d, p, n):
        a(f"s_mov_b32 s{d}, s{p}\ns_mov_b32 s{d+1}, s{p+1}\ns_mov_b32 s{d+2}, {n}\ns_mov_b32 s{d+3}, 0x00020000")
    def S(r): return f"s[{r}:{r+3}]"
    def V(r, n=4): return f"v[{r}:{r+n-1}]"
    def stamp2(k):
        if DIAG == 2: a(f"s_memrealtime s[{ST0+2*k}:{ST0+2*k+1}]\ns_waitcnt lgkmcnt(0)")
    def stamp3(k):
        if DIAG == 3: a(f"s_memrealtime s[{ST0+2*k}:{ST0+2*k+1}]")
    def stamp(k):
        if DIAG == 3 and 1 <= k <= 6: return
        if DIAG == 2 and 1 <= k <= 8: return
        if DIAG: a(f"s_memrealtime s[{ST0+2*k}:{ST0+2*k+1}]\ns_waitcnt lgkmcnt(0)")
    vL16, vN, vG, vM8, vR8 = 1, 2, 3, 4, 5
    vT8 = 7
    XP = 16; PATL = 20; PATG = 24; WB = 32
    QF = 64; AF = 128; TF = 192
    WO = 112; WD = 120; WOP = 160
    def allred_hi(v, tmp, op):
        a(f"v_mov_b32 v{tmp}, v{v}\nv_permlane16_swap_b32 v{v}, v{tmp}\n{op} v{v}, v{v}, v{tmp}")
        a(f"v_mov_b32 v{tmp}, v{v}\nv_permlane32_swap_b32 v{v}, v{tmp}\n{op} v{v}, v{v}, v{tmp}")
    def dpp(op, d, s, mode, bank="0xf"):
        a(f"{op}_dpp v{d}, v{s}, v{s} {mode} row_mask:0xf bank_mask:{bank}")
    def allred_lo8(vs, op):
        if isinstance(vs, int): vs = [vs]
        for m in ("quad_perm:[1,0,3,2]", "quad_perm:[2,3,0,1]", "row_half_mirror"):
            for v in vs: dpp(op, v, v, m)
    def wave_sum(v, tmp):
        allred_lo8(v, "v_add_f32"); dpp("v_add_f32", v, v, "row_mirror"); allred_hi(v, tmp, "v_add_f32")
    def rs8(acc, out):
        for c in range(4): a(f"v_permlane32_swap_b32 v{acc+c}, v{acc+c+4}")
        a(f"v_pk_add_f32 {V(acc,2)}, {V(acc,2)}, {V(acc+4,2)}\nv_pk_add_f32 {V(acc+2,2)}, {V(acc+2,2)}, {V(acc+6,2)}")
        for c in range(2): a(f"v_permlane16_swap_b32 v{acc+c}, v{acc+c+2}")
        a(f"v_pk_add_f32 {V(acc,2)}, {V(acc,2)}, {V(acc+2,2)}")
        dpp("v_add_f32", out, acc, "row_ror:8", "0x3"); dpp("v_add_f32", out, acc + 1, "row_ror:8", "0xc")
    def bfround(d, s):
        a(f"v_cvt_pk_bf16_f32 v{d}, v{s}, v{s}\nv_lshlrev_b32 v{d}, 16, v{d}")
    def gemv(W, P, acc, out, waits=None, nk=4):
        for k in range(nk):
            if waits: waits(k)
            for e in range(4):
                a(f"v_perm_b32 v{P+2*e}, v{W+8*k+4+e}, v{W+8*k+e}, {sLO}")
                a(f"v_perm_b32 v{P+2*e+1}, v{W+8*k+4+e}, v{W+8*k+e}, {sHI}")
            for c in range(8):
                a(f"v_dot2_f32_bf16 v{acc+c}, v{P+c}, v{XP+k}, {'0' if k == 0 else 'v%d' % (acc+c)}")
        rs8(acc, out)
    def tag8(v): a(f"v_and_or_b32 v{v}, v{v}, {sM8}, v{vT8}")
    def check(checks, bad):
        for gi, (mask, pairs) in enumerate(checks):
            b = bad + gi
            for d, e in pairs: a(f"v_xor_b32 v{d}, v{d}, v{e}")
            ds = [d for d, e in pairs]
            if len(ds) == 2: a(f"v_or_b32 v{b}, v{ds[0]}, v{ds[1]}")
            else:
                a(f"v_or3_b32 v{b}, v{ds[0]}, v{ds[1]}, v{ds[2]}")
                k = 3
                while k < len(ds):
                    if k + 1 < len(ds): a(f"v_or3_b32 v{b}, v{ds[k]}, v{ds[k+1]}, v{b}"); k += 2
                    else: a(f"v_or_b32 v{b}, v{ds[k]}, v{b}"); k += 1
            if gi == 0: a(f"v_and_b32 v{b}, {mask}, v{b}")
            else: a(f"v_and_or_b32 v{bad}, v{b}, {mask}, v{bad}")
        a(f"v_cmp_ne_u32 vcc, 0, v{bad}")
    def gather(loads, checks, bad, name, sel="lane", mid=None, issue=True):
        L = a.label(name); D = a.label(name + "d")
        if issue:
            for l in loads: a(l)
        if mid: mid()
        a(f"s_mov_b32 {sCNT}, {SPIN}")
        a(f"{L}:\ns_waitcnt vmcnt(0)")
        check(checks, bad)
        a(f"s_cbranch_vccz {D}\ns_sub_u32 {sCNT}, {sCNT}, 1\ns_cbranch_scc1 {D}")
        if sel == "quad": a("s_wqm_b64 exec, vcc")
        elif sel == "lane": a("s_mov_b64 exec, vcc")
        for l in loads: a(l)
        a(f"s_branch {L}\n{D}:")
        if sel != "wave": a("s_mov_b64 exec, -1")
    def hint(soff, target, name, mid=None, execset=False):
        L = a.label(name); D = a.label(name + "d"); W = a.label(name + "w")
        if not execset: a("s_mov_b64 exec, 1")
        a(f"v_mov_b32 v126, 0\nbuffer_atomic_add v126, off, {S(R_WS)}, {soff} sc0 sc1")
        if mid:
            a("s_mov_b64 exec, -1"); mid(); a("s_mov_b64 exec, 1")
        a(f"""
s_mov_b32 {sCNT}, {HINT}
s_branch {W}
{L}:
v_mov_b32 v126, 0
buffer_atomic_add v126, off, {S(R_WS)}, {soff} sc0 sc1
s_sub_u32 {sCNT}, {sCNT}, 1
s_cbranch_scc1 {D}
{W}:
s_waitcnt vmcnt(0)
v_cmp_gt_u32 vcc, {target}, v126
s_cbranch_vccnz {L}
{D}:
s_mov_b64 exec, -1
""")
    def cnaddr(dst, k, tmp):
        a(f"s_and_b32 {tmp}, {k}, 31\ns_mul_i32 {tmp}, {tmp}, {HB}\ns_lshr_b32 {dst}, {k}, 5\ns_lshl_b32 {dst}, {dst}, 7\ns_add_u32 {dst}, {dst}, {tmp}\ns_add_u32 {dst}, {dst}, {CN}")
    def mk_pat(dst, sel):
        a(f"""
v_and_b32 v{dst}, 1, v{sel}
v_lshlrev_b32 v{dst}, 16, v{dst}
v_and_b32 v{dst+2}, 2, v{sel}
v_lshlrev_b32 v{dst+2}, 15, v{dst+2}
v_or_b32 v{dst+2}, 1, v{dst+2}
v_mov_b32 v{dst+1}, {t4}
v_mov_b32 v{dst+3}, {t5}
""")
    def mk_tags():
        a(f"""
s_add_u32 {sTAG}, {sTAG}, {KTAG}
s_and_b32 {t5}, {sTAG}, 0xff
v_mov_b32 v{vT8}, {t5}
s_and_b32 {t4}, {sTAG}, 3
s_mul_i32 {t4}, {t4}, 0x8001
s_and_b32 {t4}, {t4}, {sM1}
s_bfe_u32 {t5}, {sTAG}, 0x20002
s_mul_i32 {t5}, {t5}, 0x8001
s_and_b32 {t5}, {t5}, {sM1}
""")
        mk_pat(PATL, 0); mk_pat(PATG, vG)
    def consts():
        a(f"""
s_mov_b32 {sLO}, 0x05040100
s_mov_b32 {sHI}, 0x07060302
s_mov_b32 {sMSK}, 0xffff0000
s_mov_b32 {sM8}, 0xffffff00
s_mov_b32 {sM1}, 0x00010001
s_mov_b32 {sH8}, 0x8000
s_mul_i32 {sHB}, {sH}, {HB}
s_mul_i32 {sFB}, {sFG}, {HB}
s_mul_i32 {sGB}, {sG}, {16*HB}
""")
        if DIAG:
            for k in range(1, 16): a(f"s_mov_b32 s{ST0+2*k}, 0")
        srd(R_WS, 28, 0x10000000)

    stamp_entry = f"s_memrealtime s[{ST0}:{ST0+1}]" if (DIAG or opt.get("hold", 0)) else ""
    a(f"""
{stamp_entry}
s_getpc_b64 s[{R_B}:{R_B+1}]
L_pc:
v_subrev_u32 v8, 256, v0
v_lshlrev_b32 v8, 6, v8
v_cmp_gt_u32 vcc, L_end-L_pc, v8
s_and_saveexec_b64 s[4:5], vcc
s_cbranch_execz L_npf
global_load_dword v9, v8, s[{R_B}:{R_B+1}]
L_npf:
s_mov_b64 exec, s[4:5]
s_cmp_ge_u32 s2, 256
s_cbranch_scc1 L_end
s_load_dwordx16 s[4:19], s[0:1], 0
s_load_dwordx8 s[20:27], s[0:1], 64
s_load_dwordx2 s[28:29], s[0:1], 96
v_lshrrev_b32 v1, 6, v0
v_and_b32 v0, 63, v0
v_readfirstlane_b32 {sW}, v1
v_lshlrev_b32 v{vL16}, 4, v0
v_mov_b32 v19, 0
v_mov_b32 v60, 0
v_mov_b32 v61, 0
v_and_b32 v{vN}, 15, v0
v_lshrrev_b32 v{vG}, 4, v0
v_and_b32 v{vM8}, 7, v0
v_lshrrev_b32 v{vR8}, 3, v0
s_and_b32 {sX}, s2, 7
s_lshr_b32 {sIDX}, s2, 3
s_lshr_b32 {sG}, {sIDX}, 4
s_and_b32 {sJ}, {sIDX}, 7
s_lshr_b32 {t0}, {sIDX}, 3
s_and_b32 {t1}, {t0}, 1
s_lshl_b32 {sH}, {sG}, 4
s_lshl_b32 {t2}, {sX}, 1
s_add_u32 {sH}, {sH}, {t2}
s_add_u32 {sH}, {sH}, {t1}
s_lshl_b32 {sI}, {sX}, 4
s_and_b32 {t1}, {sIDX}, 15
s_add_u32 {sI}, {sI}, {t1}
s_lshl_b32 {sFG}, {t0}, 3
s_add_u32 {sFG}, {sFG}, {sX}
v_lshlrev_b32 v64, 4, v{vR8}
s_lshl_b32 {t0}, {sJ}, 7
v_add_u32 v64, {t0}, v64
v_lshlrev_b32 v65, 16, v{vR8}
v_lshl_add_u32 v65, v{vM8}, 4, v65
s_lshl_b32 {t0}, {sJ}, 19
s_lshl_b32 {t1}, {sH}, 8
s_add_u32 {t2}, {t0}, {t1}
s_lshl_b32 {t1}, {sW}, 7
s_add_u32 {t0}, {t2}, {t1}
s_mov_b32 s{R_A+2}, 4194304
s_mov_b32 s{R_A+3}, 0x00020000
s_cmp_ge_u32 {sW}, 2
s_waitcnt lgkmcnt(0)
s_cbranch_scc1 L_not01
s_mov_b64 s[{R_A}:{R_A+1}], s[8:9]
s_setprio 3
global_load_dwordx4 v[8:11], v{vL16}, s[4:5]
global_load_dwordx4 v[12:15], v64, s[4:5]
""")
    for u in range(8):
        a(f"buffer_load_dwordx4 {V(WB+4*u)}, v65, {S(R_A)}, {t0} offen {NT}")
        if u < 7: a(f"s_add_u32 {t0}, {t0}, 8192")
    a(f"s_load_dword {sTAG}, s[28:29], 0")
    if N0: a("s_barrier")
    UK = 128
    consts()
    a(f"""
s_add_u32 {t3}, {sHB}, {QP}
s_lshl_b32 {t0}, {sJ}, 9
s_add_u32 {t0}, {t0}, {t3}
s_lshl_b32 {t1}, {sW}, 8
s_add_u32 {t0}, {t0}, {t1}
v_lshl_add_u32 v29, v0, 2, {t0}
s_waitcnt vmcnt(9)
""")
    for e in range(4):
        a(f"v_lshlrev_b32 v{64+2*e}, 16, v{8+e}\nv_and_b32 v{65+2*e}, {sMSK}, v{8+e}")
    a("""
v_pk_add_f32 v[72:73], v[64:65], v[66:67]
v_pk_add_f32 v[74:75], v[68:69], v[70:71]
v_pk_add_f32 v[72:73], v[72:73], v[74:75]
v_add_f32 v72, v72, v73
""")
    wave_sum(72, 73)
    a(f"v_mul_f32 v72, 0x{f2u(1/512):08x}, v72")
    bfround(76, 72)
    for e in range(8): a(f"v_sub_f32 v{64+e}, v{64+e}, v72")
    a("v_mul_f32 v74, v64, v64\nv_mul_f32 v75, v65, v65")
    for e in range(2, 8): a(f"v_fmac_f32 v{74+(e&1)}, v{64+e}, v{64+e}")
    a("v_add_f32 v74, v74, v75")
    wave_sum(74, 73)
    a(f"v_mul_f32 v74, 0x{f2u(1/512):08x}, v74")
    bfround(74, 74)
    a(f"v_add_f32 v74, 0x{f2u(1e-5):08x}, v74")
    bfround(74, 74)
    a("v_sqrt_f32 v74, v74")
    bfround(74, 74)
    a("v_rcp_f32 v74, v74")
    a("s_waitcnt vmcnt(8)")
    for e in range(4):
        a(f"v_lshlrev_b32 v{80+2*e}, 16, v{12+e}\nv_and_b32 v{81+2*e}, {sMSK}, v{12+e}")
    for e in range(8): a(f"v_sub_f32 v{80+e}, v{80+e}, v76")
    for e in range(4): a(f"v_cvt_pk_bf16_f32 v{XP+e}, v{80+2*e}, v{81+2*e}")
    for e in range(4):
        a(f"v_lshlrev_b32 v{64+2*e}, 16, v{XP+e}\nv_and_b32 v{65+2*e}, {sMSK}, v{XP+e}")
    for e in range(8): a(f"v_mul_f32 v{64+e}, v{64+e}, v74")
    for e in range(4): a(f"v_cvt_pk_bf16_f32 v{XP+e}, v{64+2*e}, v{65+2*e}")
    a(f"""
s_waitcnt lgkmcnt(0)
s_add_u32 {t5}, {sTAG}, {KTAG}
s_and_b32 {t5}, {t5}, 0xff
v_mov_b32 v{vT8}, {t5}
""")
    stamp(1)
    gemv(WB, 80, 96, 30, waits=lambda k: a(f"s_waitcnt vmcnt({6-2*k})"))
    tag8(30)
    a(f"buffer_store_dword v30, v29, {S(R_WS)}, 0 offen sc1")
    stamp(2)
    a(f"v_lshlrev_b32 v104, 4, v{vR8}\nv_add_u32 v104, {L_XN}, v104\nds_write_b128 v104, {V(XP)}")
    a("s_waitcnt vmcnt(0) lgkmcnt(0)")
    stamp(3)
    a("s_barrier")
    mk_tags()
    a("s_branch L_b0")
    a(f"L_not01:\ns_load_dword {sTAG}, s[28:29], 0")
    a(f"s_cmp_ge_u32 {sW}, 4\ns_cbranch_scc1 L_loader")
    consts()
    a(f"""
s_lshl_b32 {t0}, {sJ}, 7
s_add_u32 {t0}, {t0}, {sHB}
s_add_u32 {t0}, {t0}, {CN4}
""")
    a(f"s_and_b32 {t4}, s2, 63\ns_lshl_b32 {t5}, {sG}, 6\ns_or_b32 {t4}, {t4}, {t5}\ns_and_b32 {t5}, s2, 64\ns_lshl_b32 {t5}, {t5}, 1\ns_or_b32 {t4}, {t4}, {t5}")
    cnaddr(t3, t4, t1)
    a(f"""
s_cmp_eq_u32 {sW}, 2
s_cselect_b32 {t0}, {t0}, {t3}
v_mov_b32 v64, 0
v_mov_b32 v65, 0
v_mov_b32 v66, 0
v_mov_b32 v67, 0
s_mov_b64 exec, 0xff
buffer_store_dwordx4 v[64:67], v{vL16}, {S(R_WS)}, {t0} offen sc1
s_mov_b64 exec, -1
""")
    if N0: a("s_barrier")
    srd(R_B, 10, 4194304)
    a(f"""
s_and_b32 s11, {sW}, 1
v_lshlrev_b32 v28, 13, v{vN}
v_lshl_add_u32 v28, v{vG}, 4, v28
s_lshl_b32 {t1}, s11, 18
s_add_u32 {u0}, {t2}, {t1}
s_add_u32 {u1}, {u0}, 131072
s_add_u32 {t3}, {sHB}, {QP}
v_and_b32 v104, 31, v0
v_lshrrev_b32 v105, 5, v0
v_lshlrev_b32 v106, 11, v105
v_lshl_add_u32 v106, v104, 4, v106
s_waitcnt {"vmcnt(0) " if opt.get("ukd", 0) else ""}lgkmcnt(0)
""")
    for t in range(2):
        for s_ in range(4):
            a(f"buffer_load_dwordx4 {V(UK+16*t+4*s_)}, v28, {S(R_B)}, {u0 if t == 0 else u1} offen offset:{64*s_} {NT}")
    a(f"""
s_lshl_b32 {t1}, s11, 8
s_add_u32 {t1}, {t1}, {L_QS}
v_and_b32 v107, 1, v104
v_lshlrev_b32 v107, 6, v107
v_lshl_add_u32 v107, v105, 5, v107
v_and_b32 v111, 14, v104
v_add_u32 v107, v111, v107
v_and_b32 v111, 16, v104
v_lshl_add_u32 v107, v111, 3, v107
v_add_u32 v107, {t1}, v107
v_lshlrev_b32 v108, 4, v{vG}
v_add_u32 v108, {t1}, v108
v_lshlrev_b32 v109, 5, v{vN}
v_lshl_add_u32 v109, v{vG}, 3, v109
v_lshrrev_b32 v110, 4, v109
s_lshl_b32 {t1}, {sJ}, 7
s_add_u32 {t0}, {sHB}, {t1}
s_lshl_b32 {t1}, s11, 6
s_add_u32 {t0}, {t0}, {t1}
s_add_u32 {t0}, {t0}, {QA}
v_add_u32 v109, {t0}, v109
""")
    mk_tags()
    mk_pat(120, 110)
    a(f"""
v_and_b32 v110, 1, v{vG}
v_cmp_eq_u32 vcc, 1, v110
v_cndmask_b32 v120, v120, v122, vcc
v_cndmask_b32 v121, v121, v123, vcc
v_mov_b32 v110, {L_RI}
s_setprio 3
s_barrier
""")
    G1 = 64
    sc = (128 ** -0.5) * math.log2(math.e)
    gather([f"buffer_load_dwordx4 {V(G1+4*u)}, v106, {S(R_WS)}, {t3} offen offset:{u*512} sc1" for u in range(4)],
           [("0xff", [(G1 + k, vT8) for k in range(16)])], 96, "L_h1",
           mid=lambda: a(f"v_mov_b32 v111, 0x{f2u(sc):08x}"))
    stamp(4)
    for e in (0, 2): a(f"v_pk_add_f32 {V(G1+e,2)}, {V(G1+e,2)}, {V(G1+4+e,2)}\nv_pk_add_f32 {V(G1+8+e,2)}, {V(G1+8+e,2)}, {V(G1+12+e,2)}")
    for e in (0, 2): a(f"v_pk_add_f32 {V(G1+e,2)}, {V(G1+e,2)}, {V(G1+8+e,2)}")
    a(f"""
v_permlane32_swap_b32 v{G1}, v{G1+2}
v_permlane32_swap_b32 v{G1+1}, v{G1+3}
v_pk_add_f32 {V(G1,2)}, {V(G1,2)}, {V(G1+2,2)}
v_mul_f32 v{G1}, v111, v{G1}
v_mul_f32 v{G1+1}, v111, v{G1+1}
v_cvt_pk_bf16_f32 v{G1}, v{G1}, v{G1+1}
ds_write_b16 v107, v{G1}
ds_write_b16_d16_hi v107, v{G1} offset:16
s_waitcnt lgkmcnt(0)
""")
    for s_ in range(4): a(f"ds_read_b128 {V(80+4*s_)}, v108 offset:{64*s_}")
    for s_ in range(4):
        a(f"s_waitcnt lgkmcnt({3-s_})")
        for t in range(2):
            a(f"v_mfma_f32_16x16x32_bf16 {V(112+4*t)}, {V(UK+16*t+4*s_)}, {V(80+4*s_)}, {'0' if s_ == 0 else V(112+4*t)}")
    a(f"""
s_mov_b32 exec_lo, 0x00020002
s_mov_b32 exec_hi, 0x00020002
v_mov_b32 v112, v116
v_mov_b32 v113, v117
v_mov_b32 v114, v118
v_mov_b32 v115, v119
s_mov_b32 exec_lo, 0x00030003
s_mov_b32 exec_hi, 0x00030003
v_add_u32 v112, 0x10000, v112
v_add_u32 v113, 0x10000, v113
v_add_u32 v114, 0x10000, v114
v_add_u32 v115, 0x10000, v115
v_perm_b32 v12, v113, v112, {sHI}
v_perm_b32 v13, v115, v114, {sHI}
v_bfi_b32 v12, {sM1}, v120, v12
v_bfi_b32 v13, {sM1}, v121, v13
buffer_store_dwordx2 v[12:13], v109, {S(R_WS)}, 0 offen sc1
s_mov_b64 exec, -1
""")
    stamp(5)
    a("s_branch L_b0")
    a("L_loader:")
    srd(R_A, 6, 16777216)
    consts()
    a("s_waitcnt lgkmcnt(0)")
    mk_tags()
    GUAT = opt.get("guat", 4)
    a(f"""
s_mul_i32 {u1}, {sJ}, {64*3584}
s_lshl_b32 {t3}, {sFG}, 7
s_add_u32 {u1}, {u1}, {t3}
s_and_b32 {t1}, {sW}, 1
s_mul_i32 {t1}, {t1}, {32*3584}
s_add_u32 {u1}, {u1}, {t1}
s_cmp_lt_u32 {sFG}, 28
s_cselect_b32 s{R_B+2}, 1835008, 0
s_bitcmp0_b32 {sW}, 1
s_cselect_b64 s[{R_B}:{R_B+1}], s[18:19], s[20:21]
s_mov_b32 s{R_B+3}, 0x00020000
v_mul_u32_u24 v13, {4*3584}, v{vR8}
v_lshl_add_u32 v13, v{vM8}, 4, v13
v_add_u32 v14, 7168, v13
s_sub_u32 {t0}, {sW}, 4
""")
    if SPREAD:
        a(f"""
s_lshl_b32 {t1}, {t0}, 4
s_add_u32 {t1}, {t1}, {sI}
s_and_b32 {t1}, {t1}, 127
s_xor_b32 {t3}, {t1}, 64
s_add_u32 {t3}, {t3}, 512
s_lshl_b32 {t2}, {t0}, 7
s_add_u32 {t1}, {t1}, {t2}
s_add_u32 {t3}, {t3}, {t2}
s_lshl_b32 {t1}, {t1}, 14
s_lshl_b32 {t3}, {t3}, 14
s_mul_i32 {t2}, {t0}, {16*RS}
""")
    else:
        a(f"""
s_lshl_b32 {t1}, {sI}, 17
s_lshl_b32 {t2}, {t0}, 14
s_add_u32 {t1}, {t1}, {t2}
s_add_u32 {t3}, {t1}, 65536
s_mul_i32 {t2}, {t0}, {16*RS}
""")
    if N0: a("s_barrier")
    c0, c1, c2 = "s8", "s9", "s10"
    a(f"s_mov_b32 {c0}, {t1}\ns_mov_b32 {c1}, {t2}\ns_mov_b32 {c2}, {t3}")
    def cgroup(grp, R):
        if grp == N0: a("s_barrier")
        if grp == GUAT:
            for k in range(4):
                a(f"buffer_load_dwordx4 {V(WB+16+4*k)}, v{13+(k>>1)}, {S(R_B)}, {u1} offen offset:{3584*(k&1)} {NT}")
                if THR: a(f"s_waitcnt vmcnt({THR})")
        for r in range(4):
            a(f"s_add_u32 m0, {c1}, {32*r}")
            a(f"buffer_load_dwordx4 v{vL16}, {S(R)}, {c0} offen offset:{1024*r} {NTC} lds")
            if THR: a(f"s_waitcnt vmcnt({THR})")
        if grp == 3: a(f"s_mov_b32 {c0}, {c2}\ns_add_u32 {c1}, {c1}, {52*RS}")
        elif grp < 7: a(f"s_add_u32 {c0}, {c0}, 4096\ns_add_u32 {c1}, {c1}, {4*RS}")
    for grp in range(B0AT): cgroup(grp, R_A)
    stamp(1)
    a(f"s_waitcnt vmcnt({4*(B0AT-4)})")
    a("L_b0:")
    srd(R_O, 14, 4194304)
    srd(R_D, 22, 1835008)
    srd(R_A, 12, 4194304)
    srd(R_B, 6, 16777216)
    a(f"""
s_lshl_b32 {t0}, {sG}, 6
s_lshl_b32 {t1}, {sW}, 3
s_add_u32 {t0}, {t0}, {t1}
s_and_b32 {t1}, s2, 7
s_add_u32 {t0}, {t0}, {t1}
""")
    cnaddr("s11", t0, t1)
    a(f"s_lshl_b32 {t0}, {sG}, 6\ns_lshl_b32 {t1}, {sJ}, 3\ns_add_u32 {t0}, {t0}, {t1}\ns_add_u32 {t0}, {t0}, {sW}")
    cnaddr("s18", t0, t1)
    a(f"""
v_mul_u32_u24 v8, {RS}, v{vN}
v_lshl_add_u32 v8, v{vG}, 4, v8
s_mul_i32 {t0}, {sW}, {16*RS}
v_add_u32 v9, {t0}, v8
v_add_u32 v8, {L_Q}, v8
v_lshrrev_b32 v10, 2, v0
v_mul_u32_u24 v10, {RS}, v10
v_and_b32 v11, 3, v0
v_lshl_add_u32 v10, v11, 3, v10
s_lshl_b32 {t0}, {sW}, 7
v_add_u32 v10, {t0}, v10
v_add_u32 v11, {64*RS}, v10
s_lshl_b32 {t0}, {sJ}, 19
s_lshl_b32 {t1}, {sH}, 8
s_add_u32 {t0}, {t0}, {t1}
s_and_b32 {t1}, {sW}, 3
s_lshl_b32 {t1}, {t1}, 17
s_add_u32 {u0}, {t0}, {t1}
s_lshl_b32 {t1}, {sJ}, 10
s_add_u32 {u1}, {sFB}, {t1}
s_and_b32 {t1}, {sW}, 3
s_lshl_b32 {t1}, {t1}, 8
s_add_u32 {u1}, {u1}, {t1}
s_add_u32 {u1}, {u1}, {FP}
s_and_b32 {t1}, {sW}, 1
s_lshl_b32 {t1}, {t1}, 6
s_add_u32 {t1}, {t1}, {L_XN}
v_lshl_add_u32 v15, v{vR8}, 3, {t1}
v_lshlrev_b32 v13, 11, v{vR8}
v_lshl_add_u32 v13, v{vM8}, 4, v13
v_lshlrev_b32 v14, 13, v{vR8}
v_lshl_add_u32 v14, v{vM8}, 4, v14
v_lshrrev_b32 v28, 1, v{vN}
v_xor_b32 v28, v28, v{vG}
v_lshlrev_b32 v28, 5, v28
v_and_b32 v29, 1, v0
v_lshl_add_u32 v28, v29, 4, v28
v_lshl_add_u32 v28, v{vG}, 13, v28
v_xor_b32 v29, 128, v28
v_add_u32 v29, 32768, v29
v_mul_u32_u24 v30, {OH}, v{vM8}
v_lshl_add_u32 v30, v{vG}, 4, v30
v_and_b32 v31, 8, v0
v_lshl_add_u32 v30, v31, 3, v30
s_mul_i32 {t3}, {sG}, {16*OH}
s_mul_i32 {t4}, {sW}, {IB}
s_add_u32 {t3}, {t3}, {t4}
s_lshl_b32 {t4}, {sI}, 7
s_add_u32 {t3}, {t3}, {t4}
s_add_u32 {t3}, {t3}, {OP}
v_add_u32 v30, {t3}, v30
v_add_u32 v31, {8*OH}, v30
v_lshlrev_b32 v6, 4, v{vN}
v_add_u32 v6, {L_MX}, v6
s_lshl_b32 {t2}, {sH}, 17
s_lshl_b32 {t3}, {sJ}, 14
s_add_u32 {t2}, {t2}, {t3}
s_lshl_b32 {t5}, {sW}, 7
s_add_u32 {w0_}, {t2}, {t5}
s_lshl_b32 {t3}, {sFG}, 16
s_add_u32 {t5}, {t5}, {t3}
s_lshl_b32 {t3}, {sJ}, 10
s_add_u32 {w1_}, {t5}, {t3}
s_mul_i32 {t3}, {sW}, {4*RS}
s_add_u32 {t3}, {t3}, {L_Q}
v_add_u32 v12, {t3}, v{vL16}
s_mul_i32 {t0}, {sW}, {4*HB}
s_add_u32 {t0}, {t0}, {sGB}
s_add_u32 {t0}, {t0}, {QA}
s_add_u32 {t1}, {t0}, {HB}
s_add_u32 {t2}, {t1}, {HB}
s_add_u32 {t3}, {t2}, {HB}
s_add_u32 {t4}, {u0}, 65536
s_cmp_ge_u32 {sW}, 4
""")
    wol = [f"buffer_load_dwordx4 {V(WO)}, v13, {S(R_O)}, {w0_} offen {NT}", f"buffer_load_dwordx4 {V(WO+4)}, v13, {S(R_O)}, {w0_} offen offset:1024 {NT}",
           f"buffer_load_dwordx4 {V(WD)}, v14, {S(R_D)}, {w1_} offen {NT}"]
    WO03 = opt.get("wo03", "ba")
    if WO03 == "b0":
        a("s_cbranch_scc1 L_nwo")
        for l in wol: a(l)
        a("L_nwo:")
    a("s_waitcnt lgkmcnt(0)\ns_barrier")
    def rdTh(ks, T, half):
        r = TF + 16 * ks + 4 * T + 2 * half
        a(f"ds_read_b64_tr_b16 {V(r,2)}, {'v11' if half else 'v10'} offset:{16*ks*RS + 32*T}")
    G2 = 64
    h2loads = [f"buffer_load_dwordx4 {V(G2+4*k)}, v{vL16}, {S(R_WS)}, {[t0,t1,t2,t3][k]} offen sc1" for k in range(4)]
    T1T = opt.get("t1t", THR)
    NE = opt.get("ne", 7)
    LT = opt.get("lt", "")
    if LT: NE = 0
    tl = [f"buffer_load_dwordx4 {V(WB+4*k)}, v{28+(k&1)}, {S(R_A)}, {u0 if k < 2 else t4} offen {NT}" for k in range(4)] + wol
    PFR = 80
    a("s_cbranch_scc1 L_ng")
    for l in h2loads: a(l)
    stamp(6)
    for ks in range(4):
        if ks == 2: a("s_waitcnt lgkmcnt(7)")
        for T in range(4): rdTh(ks, T, 0)
    gather(h2loads, [(sM1, [(G2 + 4 * k + e, PATL + e) for k in range(4) for e in range(4)])], 96, "L_h2g", sel="quad", issue=False)
    a("s_waitcnt lgkmcnt(8)")
    for k in range(4): a(f"ds_write_b128 v12, {V(G2+4*k)} offset:{k*RS}")
    if not LT:
        for l in wol: a(l)
    a(f"s_setprio 0\nv_add_u32 v76, {L_P}, v{vL16}\ns_waitcnt lgkmcnt(0)\ns_barrier")
    stamp(7)
    for ks in range(4):
        if ks == 2: a("s_waitcnt lgkmcnt(7)")
        for T in range(4): rdTh(ks, T, 1)
    a(f"""
s_waitcnt lgkmcnt(7)
s_barrier
ds_read_b128 v[68:71], v6
s_waitcnt lgkmcnt(0)
v_max3_f32 v66, v68, v69, v70
v_max_f32 v66, v66, v71
v_and_b32 v66, {sM8}, v66
s_barrier
""")
    for ks in range(4): a(f"ds_read_b128 {V(PFR+4*ks)}, v76 offset:{1024*ks}")
    a("s_branch L_pv\nL_ng:")
    for grp in range(B0AT, 8): cgroup(grp, R_B)
    stamp(6)
    a(f"v_subrev_u32 v12, {64*RS}, v9\nds_read_b64 {V(XP,2)}, v15")
    for s in range(8): a(f"ds_read_b128 {V(AF+4*s)}, v12 offset:{64*s}")
    for l in tl[:min(4, NE)]:
        if T1T: a(f"s_waitcnt vmcnt({T1T-1})")
        a(l)
    a("s_waitcnt lgkmcnt(7)")
    for s in range(8, 16): a(f"ds_read_b128 {V(AF+4*s)}, v12 offset:{64*s}")
    gemv(WB + 16, 64, 72, 18, nk=2)
    tag8(18)
    a("v_lshlrev_b32 v19, 2, v0")
    for l in tl[4:NE]:
        if T1T: a(f"s_waitcnt vmcnt({T1T-1})")
        a(l)
    a(f"s_waitcnt vmcnt({NE}) lgkmcnt(0)")
    stamp(8)
    for s in range(8): a(f"ds_read_b128 {V(TF+4*s)}, v9 offset:{64*s}")
    a("s_waitcnt lgkmcnt(7)")
    for s in range(8, 16): a(f"ds_read_b128 {V(TF+4*s)}, v9 offset:{64*s}")
    if not LT:
        for l in tl[NE:]: a(l)
    else: a(f"v_mov_b32 v60, v28\nv_mov_b32 v61, v29\ns_mov_b32 s19, {t4}")
    a(f"""
buffer_store_dword v18, v19, {S(R_WS)}, {u1} offen sc1
s_and_b32 {t0}, {sW}, 3
s_lshl_b32 {t2}, {t0}, 2
s_lshl_b32 {t0}, {t0}, 10
s_add_u32 {t3}, {t0}, {L_P}
v_add_u32 v28, {t2}, v6
v_add_u32 v29, {t3}, v{vL16}
s_setprio 3
s_barrier
""")
    stamp(7)
    PRE = 12
    SA = 12; SB_ = 124
    a("s_waitcnt lgkmcnt(3)")
    for s in range(PRE): a(f"ds_read_b128 {V(QF+4*s)}, v8 offset:{64*s}")
    for s in range(16):
        rem = min(16, s + PRE) - (s + 1)
        a(f"s_waitcnt lgkmcnt({rem})")
        a(f"v_mfma_f32_16x16x32_bf16 {V(SA)}, {V(AF+4*s)}, {V(QF+4*(s%12))}, {'0' if s == 0 else V(SA)}")
        a(f"v_mfma_f32_16x16x32_bf16 {V(SB_)}, {V(TF+4*s)}, {V(QF+4*(s%12))}, {'0' if s == 0 else V(SB_)}")
        if s + PRE < 16: a(f"ds_read_b128 {V(QF+4*((s+PRE)%12))}, v8 offset:{64*(s+PRE)}")
    tfs = [(ks, T, h) for ks in range(4) for T in range(4) for h in range(2)]
    def tf(n):
        for _ in range(n): rdTh(*tfs.pop(0))
    tf(6)
    a(f"""
v_max3_f32 v66, v{SA}, v{SA+1}, v{SA+2}
v_max3_f32 v67, v{SB_}, v{SB_+1}, v{SB_+2}
v_max3_f32 v66, v66, v{SA+3}, v{SB_+3}
v_max_f32 v66, v66, v67
""")
    allred_hi(66, 67, "v_max_f32")
    a("ds_write_b32 v28, v66")
    stamp3(1)
    tf(8)
    a(f"v_add_u32 v76, {L_P}, v{vL16}\ns_waitcnt lgkmcnt({0 if DIAG == 3 else 8})\ns_barrier")
    if DIAG == 3: stamp3(2); a("s_waitcnt lgkmcnt(0)")
    a("ds_read_b128 v[68:71], v6")
    tf(6)
    a(f"""
s_waitcnt lgkmcnt(6)
v_max3_f32 v66, v68, v69, v70
v_max_f32 v66, v66, v71
v_and_b32 v66, {sM8}, v66
""")
    for b in (SA, SB_):
        for r in range(4): a(f"v_sub_f32 v{b+r}, v{b+r}, v66")
    for b in (SA, SB_):
        for r in range(4): a(f"v_exp_f32 v{b+r}, v{b+r}")
    a(f"""
v_cvt_pk_bf16_f32 v68, v{SA}, v{SA+1}
v_cvt_pk_bf16_f32 v69, v{SA+2}, v{SA+3}
v_cvt_pk_bf16_f32 v70, v{SB_}, v{SB_+1}
v_cvt_pk_bf16_f32 v71, v{SB_+2}, v{SB_+3}
ds_write_b128 v29, v[68:71]
""")
    tf(8)
    if DIAG == 3: stamp3(3); a("s_waitcnt lgkmcnt(0)")
    a("s_waitcnt lgkmcnt(8)\ns_setprio 0\ns_barrier")
    if DIAG == 3: stamp3(4); a("s_waitcnt lgkmcnt(0)")
    a("s_waitcnt lgkmcnt(7)")
    tf(4)
    for ks in range(4): a(f"ds_read_b128 {V(PFR+4*ks)}, v76 offset:{1024*ks}")
    a("L_pv:")
    def late_tail():
        L = a.label("L_lt")
        a(f"""
v_lshlrev_b32 v62, 11, v{vR8}
v_lshl_add_u32 v62, v{vM8}, 4, v62
v_lshlrev_b32 v63, 13, v{vR8}
v_lshl_add_u32 v63, v{vM8}, 4, v63
s_cmp_lt_u32 {sW}, 4
s_cbranch_scc1 {L}
""")
        for k in range(4): a(f"buffer_load_dwordx4 {V(WB+4*k)}, v{60+(k&1)}, {S(R_A)}, {u0 if k < 2 else 's19'} offen {NT}")
        a(f"{L}:")
        for l in wol: a(l.replace("v13,", "v62,").replace("v14,", "v63,"))
    if LT == "b3": late_tail()
    OA = AF; LA = AF + 16; ONE = AF + 20
    a(f"v_mov_b32 v77, 1\ns_cmp_lg_u32 {sW}, 2\ns_cbranch_scc1 L_noml")
    for r in range(4): a(f"v_mov_b32 v{ONE+r}, 0x3f803f80")
    a(f"""
v_lshlrev_b32 v75, 3, v0
s_lshl_b32 {t3}, {sG}, 14
s_lshl_b32 {t4}, {sI}, 7
s_add_u32 {t3}, {t3}, {t4}
s_add_u32 {t3}, {t3}, {ML}
v_or_b32 v108, v66, v{vT8}
""")
    for ks in range(4):
        a(f"s_waitcnt lgkmcnt({3-ks})")
        a(f"v_mfma_f32_16x16x32_bf16 {V(LA)}, {V(ONE)}, {V(PFR+4*ks)}, {'0' if ks == 0 else V(LA)}")
    a(f"""
v_and_or_b32 v109, v{LA}, {sM8}, v{vT8}
s_mov_b64 exec, 0xffff
buffer_store_dwordx2 v[108:109], v75, {S(R_WS)}, {t3} offen sc1
s_mov_b64 exec, -1
L_noml:
""")
    for ks in range(4):
        a(f"s_waitcnt lgkmcnt({3-ks})")
        for T in range(4):
            a(f"v_mfma_f32_16x16x32_bf16 {V(OA+4*T)}, {V(TF+16*ks+4*T)}, {V(PFR+4*ks)}, {'0' if ks == 0 else V(OA+4*T)}")
    for T in range(4):
        a(f"v_cvt_pk_bf16_f32 v{96+2*T}, v{OA+4*T}, v{OA+4*T+1}\nv_cvt_pk_bf16_f32 v{97+2*T}, v{OA+4*T+2}, v{OA+4*T+3}")
        if T < 2:
            a(f"v_bfi_b32 v{104+2*T}, {sM1}, v{PATG+2*T}, v{96+2*T}\nv_bfi_b32 v{105+2*T}, {sM1}, v{PATG+2*T+1}, v{97+2*T}")
        a(f"v_bfi_b32 v{96+2*T}, {sM1}, v{PATG+(2*T)%4}, v{96+2*T}\nv_bfi_b32 v{97+2*T}, {sM1}, v{PATG+(2*T+1)%4}, v{97+2*T}")
    stamp3(5)
    for e in range(4): a(f"v_mov_b32_dpp v{96+e}, v{100+e} row_ror:8 row_mask:0xf bank_mask:0xc")
    a(f"buffer_store_dwordx4 v[96:99], v30, {S(R_WS)}, 0 offen sc1")
    for e in range(4): a(f"v_mov_b32_dpp v{100+e}, v{104+e} row_ror:8 row_mask:0xf bank_mask:0x3")
    a(f"buffer_store_dwordx4 v[100:103], v31, {S(R_WS)}, 0 offen sc1")
    a(f"s_mov_b64 exec, 1\nbuffer_atomic_add v77, off, {S(R_WS)}, s11 sc1")
    stamp(9)
    if LT == "pv": a("s_mov_b64 exec, -1"); late_tail(); a("s_mov_b64 exec, 1")
    hfloads = [f"buffer_load_dword v{104+k}, v10, {S(R_WS)}, {t4} offen offset:{256*k} sc1" for k in range(4)]
    def mid3():
        a(f"""
s_cmp_lt_u32 {sW}, 4
s_cbranch_scc1 L_pc0
s_lshl_b32 {t0}, {sW}, 12
s_add_u32 {t0}, {t0}, {L_UV - 4*4096}
v_add_u32 v9, {t0}, v{vL16}
s_waitcnt vmcnt({ {'': 8, 'b3': 7, 'pv': 4}[LT] })
""")
        for u in range(4): a(f"ds_write_b128 v9, {V(WB+4*u)} offset:{1024*u}")
        a(f"""
L_pc0:
v_lshlrev_b32 v8, 7, v{vR8}
s_lshl_b32 {t0}, {sG}, 14
s_lshl_b32 {t1}, {sW}, 11
s_add_u32 {t0}, {t0}, {t1}
s_and_b32 {t1}, {sH}, 15
s_lshl_b32 {t1}, {t1}, 3
s_add_u32 {t0}, {t0}, {t1}
s_add_u32 {t0}, {t0}, {ML}
s_mul_i32 {t1}, {sH}, {OH}
s_mul_i32 {t2}, {sJ}, {IB}
s_add_u32 {t1}, {t1}, {t2}
s_lshl_b32 {t2}, {sW}, 11
s_add_u32 {t1}, {t1}, {t2}
s_add_u32 {t1}, {t1}, {OP}
s_lshl_b32 {t2}, {sW}, 3
s_add_u32 {t2}, {t2}, {L_ST2}
v_mov_b32 v74, {t2}
v_bfe_u32 v75, v0, 3, 1
v_mul_u32_u24 v75, 160, v75
v_lshl_add_u32 v75, v{vM8}, 4, v75
v_lshl_add_u32 v75, v{vG}, 2, v75
s_mul_i32 {t2}, {sW}, 320
s_add_u32 {t2}, {t2}, {L_OR}
v_add_u32 v75, {t2}, v75
v_mul_u32_u24 v76, 160, v{vN}
v_lshl_add_u32 v76, v{vG}, 4, v76
v_add_u32 v76, {L_OR}, v76
v_lshrrev_b32 v77, 2, v0
v_and_b32 v78, 7, v77
v_xor_b32 v78, {sW}, v78
v_lshlrev_b32 v77, 8, v77
v_lshl_add_u32 v77, v78, 5, v77
v_and_b32 v78, 3, v0
v_lshl_add_u32 v77, v78, 3, v77
v_add_u32 v77, {L_UV}, v77
v_lshlrev_b32 v78, 3, v{vM8}
v_add_u32 v78, {L_ST2}, v78
v_lshlrev_b32 v79, 4, v{vG}
v_add_u32 v79, {L_ST2}, v79
v_mov_b32 v14, {sH8}
s_lshl_b32 {t2}, {sW}, 9
s_add_u32 {t2}, {sHB}, {t2}
s_lshl_b32 {t3}, {sJ}, 6
s_add_u32 {t2}, {t2}, {t3}
s_add_u32 {t2}, {t2}, {CP}
v_lshl_add_u32 v15, v0, 2, {t2}
s_lshl_b32 {t2}, {sJ}, 9
s_add_u32 {t2}, {sHB}, {t2}
s_add_u32 {t2}, {t2}, {CP}
v_lshlrev_b32 v9, 6, v{vM8}
v_lshl_add_u32 v9, v{vR8}, 3, v9
v_mul_u32_u24 v11, {SB}, v{vR8}
v_lshl_add_u32 v11, v{vM8}, 3, v11
s_mul_i32 {t3}, {sW}, {8*SB}
s_lshl_b32 {t4}, s2, 6
s_add_u32 {t3}, {t3}, {t4}
s_add_u32 {t3}, {t3}, {SP}
v_lshlrev_b32 v10, 10, v{vM8}
v_lshl_add_u32 v10, v{vR8}, 2, v10
s_lshl_b32 {t4}, {sJ}, 5
s_add_u32 {t4}, {sFB}, {t4}
s_add_u32 {t4}, {t4}, {FP}
s_lshl_b32 {u0}, {sW}, 7
s_add_u32 {u0}, {u0}, {sHB}
s_add_u32 {u0}, {u0}, {CN4}
s_lshl_b32 {u1}, {sJ}, 7
s_add_u32 {u1}, {u1}, {sHB}
s_add_u32 {u1}, {u1}, {CN4}
v_mov_b32 v12, 1
v_lshlrev_b32 v13, 3, v{vR8}
v_add_u32 v13, {L_HS}, v13
s_and_b32 {t5}, s2, 7
""")
    hint("s18", 16, "L_c3", mid=mid3, execset=True)
    stamp(10)
    h3loads = [f"buffer_load_dwordx2 v[64:65], v8, {S(R_WS)}, {t0} offen sc1",
            f"buffer_load_dwordx2 v[68:69], v8, {S(R_WS)}, {t0} offen offset:1024 sc1",
            f"buffer_load_dwordx4 v[80:83], v{vL16}, {S(R_WS)}, {t1} offen sc1",
            f"buffer_load_dwordx4 v[84:87], v{vL16}, {S(R_WS)}, {t1} offen offset:1024 sc1"]
    a(f"s_mov_b32 {sCNT}, {SPIN}\ns_cmp_lg_u32 {t5}, {sW}\ns_cbranch_scc1 L_h3")
    for l in hfloads: a(l)
    a("L_h3:")
    for l in h3loads: a(l)
    a(f"""
s_waitcnt vmcnt(2)
v_xor_b32 v64, v64, v{vT8}
v_xor_b32 v68, v68, v{vT8}
v_xor_b32 v65, v65, v{vT8}
v_xor_b32 v69, v69, v{vT8}
v_max_f32 v72, v64, v68
v_or3_b32 v70, v64, v65, v68
v_or_b32 v70, v70, v69
""")
    dpp("v_max_f32", 72, 72, "row_ror:8")
    a("v_and_b32 v70, 0xff, v70")
    allred_hi(72, 73, "v_max_f32")
    a("v_sub_f32 v64, v64, v72\nv_sub_f32 v68, v68, v72\nv_exp_f32 v64, v64\nv_exp_f32 v68, v68")
    a("v_mul_f32 v73, v64, v65\nv_fmac_f32 v73, v68, v69\nv_mov_b32 v65, v64\nv_mov_b32 v69, v68")
    dpp("v_add_f32", 73, 73, "row_ror:8")
    allred_hi(73, 71, "v_add_f32")
    a("s_waitcnt vmcnt(0)")
    for k in range(8): a(f"v_xor_b32 v{80+k}, v{80+k}, v{PATL+(k&3)}")
    a(f"""
v_or3_b32 v71, v80, v81, v82
v_or3_b32 v71, v83, v84, v71
v_or3_b32 v71, v85, v86, v71
v_or_b32 v71, v87, v71
v_and_or_b32 v70, v71, {sM1}, v70
v_cmp_ne_u32 vcc, 0, v70
s_cbranch_vccz L_h3d
s_sub_u32 {sCNT}, {sCNT}, 1
s_cbranch_scc0 L_h3
L_h3d:
""")
    stamp(11)
    def unp(d, s):
        a(f"v_lshl_or_b32 v{d}, v{s}, 16, v14\nv_and_or_b32 v{d+1}, v{s}, {sMSK}, v14")
    a("ds_write_b64 v74, v[72:73]")
    for e in range(4): unp(88 + 2 * e, 80 + e)
    for e in range(4): unp(96 + 2 * e, 84 + e)
    for e in range(0, 8, 2): a(f"v_pk_mul_f32 v[{88+e}:{89+e}], v[64:65], v[{88+e}:{89+e}]")
    for e in range(0, 8, 2): a(f"v_pk_fma_f32 v[{88+e}:{89+e}], v[68:69], v[{96+e}:{97+e}], v[{88+e}:{89+e}]")
    for c in range(4): a(f"v_permlane32_swap_b32 v{88+c}, v{92+c}")
    a("v_pk_add_f32 v[88:89], v[88:89], v[92:93]\nv_pk_add_f32 v[90:91], v[90:91], v[94:95]")
    for c in range(2): a(f"v_permlane16_swap_b32 v{88+c}, v{90+c}")
    a("v_pk_add_f32 v[88:89], v[88:89], v[90:91]")
    a(f"""
v_cvt_pk_bf16_f32 v88, v88, v89
ds_write_b32 v75, v88
s_cmp_lg_u32 {t5}, {sW}
s_cbranch_scc1 L_nhf
""")
    gather(hfloads, [("0xff", [(104 + k, vT8) for k in range(4)])], 108, "L_hf", sel="wave", issue=False)
    a("v_add_f32 v104, v104, v105\nv_add_f32 v105, v106, v107")
    allred_lo8([104, 105], "v_add_f32")
    a("ds_write_b64 v13, v[104:105]\nL_nhf:\ns_waitcnt lgkmcnt(0)")
    stamp2(3)
    a("s_barrier")
    stamp2(4)
    a(f"""
ds_read_b64 v[64:65], v78
ds_read_b128 v[80:83], v76
ds_read_b64_tr_b16 v[88:89], v77
ds_read_b64_tr_b16 v[90:91], v77 offset:4096
ds_read_b128 v[84:87], v76 offset:64
ds_read_b64_tr_b16 v[92:93], v77 offset:8192
ds_read_b64_tr_b16 v[94:95], v77 offset:12288
ds_read_b128 v[68:71], v79
""")
    a("ds_read_b64 v[124:125], v13\ns_waitcnt lgkmcnt(8)")
    a("v_max_f32_dpp v66, v64, v64 quad_perm:[1,0,3,2] row_mask:0xf bank_mask:0xf")
    a("s_waitcnt lgkmcnt(5)\nv_mfma_f32_16x16x32_bf16 v[96:99], v[80:83], v[88:91], 0")
    dpp("v_max_f32", 66, 66, "quad_perm:[2,3,0,1]")
    a("s_waitcnt lgkmcnt(2)\nv_mfma_f32_16x16x32_bf16 v[96:99], v[84:87], v[92:95], v[96:99]")
    dpp("v_max_f32", 66, 66, "row_half_mirror")
    a("""
s_waitcnt lgkmcnt(0)
v_sub_f32 v64, v64, v66
v_sub_f32 v68, v68, v66
v_sub_f32 v70, v70, v66
v_exp_f32 v64, v64
v_exp_f32 v68, v68
v_exp_f32 v70, v70
v_mul_f32 v64, v64, v65
v_add_f32 v96, v96, v97
v_add_f32 v98, v98, v99
""")
    dpp("v_add_f32", 64, 64, "quad_perm:[1,0,3,2]")
    a("v_mul_f32 v96, v96, v68\nv_fmac_f32 v96, v98, v70")
    dpp("v_add_f32", 64, 64, "quad_perm:[2,3,0,1]")
    a("v_mov_b32 v97, v96")
    dpp("v_add_f32", 64, 64, "row_half_mirror")
    a("v_permlane16_swap_b32 v96, v97\nv_rcp_f32 v64, v64\nv_add_f32 v96, v96, v97\nv_mov_b32 v97, v96\nv_permlane32_swap_b32 v96, v97\nv_add_f32 v96, v96, v97")
    a("v_mul_f32 v96, v96, v64")
    tag8(96)
    a(f"""
s_mov_b64 exec, 0xffff
buffer_store_dword v96, v15, {S(R_WS)}, 0 offen sc1
""")
    a(f"s_mov_b64 exec, 1\nbuffer_atomic_add v12, off, {S(R_WS)}, {u0} sc1")
    stamp(12)
    c1 = -2.0 * math.sqrt(2 / math.pi) * math.log2(math.e)
    def ffn2():
        a(f"""
v_cvt_pk_bf16_f32 v124, v124, v125
v_and_b32 v125, {sMSK}, v124
v_lshlrev_b32 v124, 16, v124
v_mul_f32 v100, v124, v124
v_mov_b32 v101, 0x{f2u(c1):08x}
v_fmac_f32 v101, 0x{f2u(c1*0.044715):08x}, v100
v_mul_f32 v100, v101, v124
v_exp_f32 v100, v100
v_add_f32 v100, 1.0, v100
v_rcp_f32 v100, v100
v_mul_f32 v124, v124, v100
""")
        bfround(124, 124)
        a("v_mul_f32 v124, v124, v125")
        bfround(13, 124)
        for e in range(4):
            a(f"v_lshlrev_b32 v{80+2*e}, 16, v{WD+e}\nv_and_b32 v{81+2*e}, {sMSK}, v{WD+e}")
        for e in range(8): a(f"v_mul_f32 v{80+e}, v13, v{80+e}")
        rs8(80, 125)
        for e in range(4):
            a(f"v_perm_b32 v{WOP+2*e}, v{WO+4+e}, v{WO+e}, {sLO}\nv_perm_b32 v{WOP+2*e+1}, v{WO+4+e}, v{WO+e}, {sHI}")
        tag8(125)
        a(f"""
s_lshr_b32 {t4}, s2, 4
s_and_b32 {t4}, {t4}, 7
s_lshl_b32 {t0}, {sW}, 3
s_add_u32 {t0}, {t0}, {t4}
s_add_u32 {t0}, {t0}, 128
""")
        cnaddr(t4, t0, t5)
        a(f"""
s_sub_u32 {t0}, {sFG}, 24
s_and_b32 {t0}, {t0}, 7
s_lshl_b32 {t1}, {t0}, 3
s_add_u32 {t5}, {t1}, {sW}
s_add_u32 {t5}, {t5}, 128
""")
        cnaddr("s11", t5, "s10")
        a(f"""
s_add_u32 {t1}, {t1}, {sJ}
s_mul_i32 s8, {t1}, {SB}
s_lshl_b32 s9, {sW}, 10
s_add_u32 s8, s8, s9
s_add_u32 s8, s8, {SP}
s_add_u32 s9, s8, 8192
s_lshl_b32 {t0}, {t0}, 6
s_add_u32 {t0}, {t0}, {sJ}
s_lshl_b32 {t0}, {t0}, 1
v_lshl_add_u32 v8, v{vM8}, 4, {t0}
v_bfe_u32 v14, v0, 4, 1
v_lshlrev_b32 v14, 8, v14
v_and_b32 v10, 3, v0
v_lshl_add_u32 v14, v10, 6, v14
v_lshrrev_b32 v10, 5, v0
v_lshl_add_u32 v14, v10, 5, v14
s_lshl_b32 {t5}, {sW}, 2
s_add_u32 {t5}, {t5}, {L_FIN}
v_add_u32 v14, {t5}, v14
v_lshlrev_b32 v10, 5, v{vM8}
v_add_u32 v10, {L_FIN}, v10
""")
        stamp2(6)
    hint(u1, 8, "L_c4", mid=ffn2, execset=True)
    stamp2(8)
    gather([f"buffer_load_dwordx2 v[104:105], v9, {S(R_WS)}, {t2} offen sc1"], [("0xff", [(104, vT8), (105, vT8)])], 68, "L_h4", sel="wave")
    stamp(13)
    allred_lo8([104, 105], "v_add_f32")
    a("v_cvt_pk_bf16_f32 v64, v104, v105")
    for c in range(8): a(f"v_dot2_f32_bf16 v{72+c}, v{WOP+c}, v64, 0")
    rs8(72, 124)
    tag8(124)
    a(f"buffer_store_dwordx2 v[124:125], v11, {S(R_WS)}, {t3} offen sc1")
    a(f"s_mov_b64 exec, 1\nbuffer_atomic_add v12, off, {S(R_WS)}, {t4} sc1\ns_mov_b64 exec, -1")
    stamp(14)
    a(f"s_cmp_lt_u32 {sFG}, 24\ns_cbranch_scc1 L_fin")
    hint("s11", 32, "L_c5", mid=lambda: a("global_load_ushort v127, v8, s[4:5]"))
    stamp2(7)
    gather([f"buffer_load_dwordx4 {V(64+4*k)}, v{vL16}, {S(R_WS)}, {['s8','s9'][k]} offen sc1" for k in range(2)],
           [("0xff", [(64 + k, vT8) for k in range(8)])], 80, "L_h5")
    stamp(1)
    a("""
v_pk_add_f32 v[64:65], v[64:65], v[68:69]
v_pk_add_f32 v[66:67], v[66:67], v[70:71]
v_permlane32_swap_b32 v64, v66
v_permlane32_swap_b32 v65, v67
v_pk_add_f32 v[64:65], v[64:65], v[66:67]
v_permlane16_swap_b32 v64, v65
v_add_f32 v64, v64, v65
""")
    dpp("v_add_f32", 64, 64, "row_ror:8"); dpp("v_add_f32", 64, 64, "row_ror:4")
    a(f"""
ds_write_b32 v14, v64
s_waitcnt lgkmcnt(0)
s_barrier
s_cmp_lg_u32 {sW}, 0
s_cbranch_scc1 L_fin
ds_read_b128 v[72:75], v10 offset:256
ds_read_b128 v[76:79], v10 offset:272
ds_read_b128 v[64:67], v10
ds_read_b128 v[68:71], v10 offset:16
s_waitcnt lgkmcnt(2)
v_pk_add_f32 v[72:73], v[72:73], v[74:75]
v_pk_add_f32 v[76:77], v[76:77], v[78:79]
v_pk_add_f32 v[72:73], v[72:73], v[76:77]
v_add_f32 v72, v72, v73
""")
    bfround(72, 72)
    a(f"""
v_mul_f32 v73, 0x{f2u(-math.log2(math.e)):08x}, v72
v_exp_f32 v73, v73
s_waitcnt lgkmcnt(0)
v_pk_add_f32 v[64:65], v[64:65], v[66:67]
v_pk_add_f32 v[68:69], v[68:69], v[70:71]
v_add_f32 v73, 1.0, v73
v_rcp_f32 v73, v73
v_pk_add_f32 v[64:65], v[64:65], v[68:69]
v_add_f32 v64, v64, v65
v_mul_f32 v72, v72, v73
v_cvt_pk_bf16_f32 v64, v64, v72
v_lshlrev_b32 v65, 16, v64
v_and_b32 v64, {sMSK}, v64
v_mul_f32 v64, v64, v65
""")
    bfround(64, 64)
    a(f"""
v_lshlrev_b32 v12, 16, v127
v_add_f32 v64, v64, v12
v_cvt_pk_bf16_f32 v64, v64, v64
s_mov_b64 exec, 0xff
global_store_short v8, v64, s[24:25]
s_cmp_lg_u32 {t0}, 0
s_cbranch_scc1 L_fin0
s_mov_b64 exec, 1
v_mov_b32 v65, {sTAG}
buffer_store_dword v65, off, {S(R_WS)}, 0 sc1
L_fin0:
s_mov_b64 exec, -1
L_fin:
""")
    if opt.get("hold", 0):
        if "holdwg" in opt: a(f"s_cmp_lg_u32 s2, {opt['holdwg']}\ns_cbranch_scc1 L_end")
        a(f"s_add_u32 s{ST0+4}, s{ST0}, {opt['hold']}\nL_hold:\ns_memrealtime s[{ST0+2}:{ST0+3}]\ns_waitcnt lgkmcnt(0)\ns_sub_u32 s{ST0+5}, s{ST0+2}, s{ST0+4}\ns_cmp_lt_i32 s{ST0+5}, 0\ns_cbranch_scc1 L_hold")
    if DIAG:
        stamp(15)
        for k in range(16): a(f"v_mov_b32 v{64+k}, s{ST0+2*k}")
        a(f"""
s_lshl_b32 {t0}, s2, 3
s_add_u32 {t0}, {t0}, {sW}
s_lshl_b32 {t0}, {t0}, 6
s_add_u32 {t0}, {t0}, {STAMP}
v_mov_b32 v8, 0
s_mov_b64 exec, 1
""")
        for k in range(4): a(f"buffer_store_dwordx4 {V(64+4*k)}, v8, {S(R_WS)}, {t0} offen offset:{16*k}")
    a("L_end:\ns_endpgm")
    if opt.get("nost", 0):
        out = []; seen_b = False
        for l in a.lines:
            if l.strip() == "L_ba:": seen_b = True
            if not seen_b and "sc1" in l and ("store" in l or (opt["nost"] >= 2 and "load" in l)): l = "    s_nop 0"
            out.append(l)
        a.lines = out
    lines, n = hazard.fix(a.lines)
    body = "\n".join(lines) + "\n"
    return wrap_single(body, 256, 512, LDS_BYTES, 256), n

if __name__ == "__main__":
    name = sys.argv[1]
    opt = {}
    for kv in sys.argv[2:]:
        k, v = kv.split("=")
        try: opt[k] = int(v, 0)
        except ValueError: opt[k] = v
    s, n = gen(opt)
    open(name, "w").write(s)
    print("wrote", name, "nops inserted", n, "lines", s.count("\n"))
```

```python
import sys, math, struct
from asmlib import *
import hazard

def f2u(x): return struct.unpack("<I", struct.pack("<f", x))[0]

STAMP = 0x2000000
KTAG = 0x9E3779B9
RS = 1056
L_P = 128 * RS
L_MX = L_P + 4096
L_ST2 = L_MX + 512
L_QS = L_ST2 + 64
L_XN = L_QS + 512
L_RI = L_XN + 128
L_HS = L_RI + 16
L_FIN = L_HS + 64
L_OR = L_FIN + 1024
L_Q = (L_OR + 2560 + 255) // 256 * 256
L_UV = L_Q
LDS_BYTES = L_Q + 16 * RS
assert LDS_BYTES <= 163840, LDS_BYTES

def gen(opt):
    SPREAD = opt.get("spread", 0)
    DIAG = opt.get("diag", 0)
    THR = opt.get("thr", 8)
    N0 = opt.get("n0", 0); N3 = opt.get("n3", 8); UKE = opt.get("uke", 0)
    REL = opt.get("rel", "iss")
    NT = opt.get("nt", "nt")
    NTC = opt.get("ntc", NT)
    if NT == "-": NT = ""
    if NTC == "-": NTC = ""
    SPIN = opt.get("spin", 100000)
    HINT = opt.get("hint", 200)
    T1AT = opt.get("t1at", "s")
    WOAT = opt.get("woat", "h3")
    H4C = opt.get("h4c", 1)
    H2C = opt.get("h2c", 0)
    H1C = opt.get("h1c", 0)
    L4 = opt.get("l4", 1); NL = opt.get("nl", 24); L1 = opt.get("l1", 0); RELP = opt.get("relp", 1)
    PP = opt.get("pp", 0)
    LNF = opt.get("lnf", 1)
    B0AT = opt.get("b0at", 8)
    HB = opt.get("hb", 0x41000)
    IB = 16384 + 384
    OH = 8 * IB
    SB = 16384 + 192
    QP = 0x10000; CP = QP + 0x1000; FP = QP + 0x4000; QA = QP + 0x3000
    CN = QP + 0x3800
    CN4 = QP + 0x3C00
    CN1 = CN4 + 64
    ML = 0x900000
    OP = 0xA00000
    SP = 0x1400000
    if opt.get("compact", 0):
        HB = 0x6000; ML = 0xE0000; SP = 0xF0000; OP = 0x200000
    QPL = 0x6000
    assert HB >= 0x7000 and QP + 32 * HB <= ML
    a = Asm()
    sW = "s3"
    sX, sIDX, sG, sJ, sH, sI, sFG, sTAG = "s30", "s31", "s32", "s33", "s34", "s35", "s36", "s37"
    sLO, sHI, sCNT = "s38", "s39", "s40"
    t0, t1, t2, t3, t4, t5 = "s41", "s42", "s43", "s44", "s45", "s46"
    u0, u1 = "s26", "s27"
    w0_, w1_ = "s6", "s7"
    sMSK = "s47"
    R_WS, R_A, R_B, R_O, R_D = 48, 52, 56, 60, 64
    sM8, sM1 = "s68", "s69"
    sHB, sFB, sGB, sH8 = "s30", "s31", "s17", "s16"
    ST0 = 70
    def srd(d, p, n):
        a(f"s_mov_b32 s{d}, s{p}\ns_mov_b32 s{d+1}, s{p+1}\ns_mov_b32 s{d+2}, {n}\ns_mov_b32 s{d+3}, 0x00020000")
    def S(r): return f"s[{r}:{r+3}]"
    def V(r, n=4): return f"v[{r}:{r+n-1}]"
    def stamp2(k):
        if DIAG == 2: a(f"s_memrealtime s[{ST0+2*k}:{ST0+2*k+1}]\ns_waitcnt lgkmcnt(0)")
    def stamp3(k):
        if DIAG == 3: a(f"s_memrealtime s[{ST0+2*k}:{ST0+2*k+1}]")
    def stamp(k):
        if DIAG == 3 and 1 <= k <= 6: return
        if DIAG == 2 and 1 <= k <= 8: return
        if DIAG: a(f"s_memrealtime s[{ST0+2*k}:{ST0+2*k+1}]\ns_waitcnt lgkmcnt(0)")
    vL16, vN, vG, vM8, vR8 = 1, 2, 3, 4, 5
    vT8 = 7
    XP = 16; PATL = 20; PATG = 24; WB = 32
    QF = 64; AF = 128; TF = 192
    WO = 112; WD = 120; WOP = 160
    def allred_hi(v, tmp, op):
        a(f"v_mov_b32 v{tmp}, v{v}\nv_permlane16_swap_b32 v{v}, v{tmp}\n{op} v{v}, v{v}, v{tmp}")
        a(f"v_mov_b32 v{tmp}, v{v}\nv_permlane32_swap_b32 v{v}, v{tmp}\n{op} v{v}, v{v}, v{tmp}")
    def dpp(op, d, s, mode, bank="0xf"):
        a(f"{op}_dpp v{d}, v{s}, v{s} {mode} row_mask:0xf bank_mask:{bank}")
    def allred_lo8(vs, op):
        if isinstance(vs, int): vs = [vs]
        for m in ("quad_perm:[1,0,3,2]", "quad_perm:[2,3,0,1]", "row_half_mirror"):
            for v in vs: dpp(op, v, v, m)
    def wave_sum(v, tmp):
        allred_lo8(v, "v_add_f32"); dpp("v_add_f32", v, v, "row_mirror"); allred_hi(v, tmp, "v_add_f32")
    def rs8(acc, out):
        for c in range(4): a(f"v_permlane32_swap_b32 v{acc+c}, v{acc+c+4}")
        a(f"v_pk_add_f32 {V(acc,2)}, {V(acc,2)}, {V(acc+4,2)}\nv_pk_add_f32 {V(acc+2,2)}, {V(acc+2,2)}, {V(acc+6,2)}")
        for c in range(2): a(f"v_permlane16_swap_b32 v{acc+c}, v{acc+c+2}")
        a(f"v_pk_add_f32 {V(acc,2)}, {V(acc,2)}, {V(acc+2,2)}")
        dpp("v_add_f32", out, acc, "row_ror:8", "0x3"); dpp("v_add_f32", out, acc + 1, "row_ror:8", "0xc")
    def bfround(d, s):
        a(f"v_cvt_pk_bf16_f32 v{d}, v{s}, v{s}\nv_lshlrev_b32 v{d}, 16, v{d}")
    def gemv(W, P, acc, out, waits=None, nk=4):
        for k in range(nk):
            if waits: waits(k)
            for e in range(4):
                a(f"v_perm_b32 v{P+2*e}, v{W+8*k+4+e}, v{W+8*k+e}, {sLO}")
                a(f"v_perm_b32 v{P+2*e+1}, v{W+8*k+4+e}, v{W+8*k+e}, {sHI}")
            for c in range(8):
                a(f"v_dot2_f32_bf16 v{acc+c}, v{P+c}, v{XP+k}, {'0' if k == 0 else 'v%d' % (acc+c)}")
        rs8(acc, out)
    def tag8(v): a(f"v_and_or_b32 v{v}, v{v}, {sM8}, v{vT8}")
    def check(checks, bad):
        for gi, (mask, pairs) in enumerate(checks):
            b = bad + gi
            for d, e in pairs: a(f"v_xor_b32 v{d}, v{d}, v{e}")
            ds = [d for d, e in pairs]
            if len(ds) == 2: a(f"v_or_b32 v{b}, v{ds[0]}, v{ds[1]}")
            else:
                a(f"v_or3_b32 v{b}, v{ds[0]}, v{ds[1]}, v{ds[2]}")
                k = 3
                while k < len(ds):
                    if k + 1 < len(ds): a(f"v_or3_b32 v{b}, v{ds[k]}, v{ds[k+1]}, v{b}"); k += 2
                    else: a(f"v_or_b32 v{b}, v{ds[k]}, v{b}"); k += 1
            if gi == 0: a(f"v_and_b32 v{b}, {mask}, v{b}")
            else: a(f"v_and_or_b32 v{bad}, v{b}, {mask}, v{bad}")
        a(f"v_cmp_ne_u32 vcc, 0, v{bad}")
    def gather(loads, checks, bad, name, sel="lane", mid=None, issue=True):
        L = a.label(name); D = a.label(name + "d")
        if issue:
            for l in loads: a(l)
        if mid: mid()
        a(f"s_mov_b32 {sCNT}, {SPIN}")
        a(f"{L}:\ns_waitcnt vmcnt(0)")
        check(checks, bad)
        a(f"s_cbranch_vccz {D}\ns_sub_u32 {sCNT}, {sCNT}, 1\ns_cbranch_scc1 {D}")
        if sel == "quad": a("s_wqm_b64 exec, vcc")
        elif sel == "lane": a("s_mov_b64 exec, vcc")
        for l in loads: a(l)
        a(f"s_branch {L}\n{D}:")
        if sel != "wave": a("s_mov_b64 exec, -1")
    def hint(soff, target, name, mid=None, execset=False):
        L = a.label(name); D = a.label(name + "d"); W = a.label(name + "w")
        if not execset: a("s_mov_b64 exec, 1")
        a(f"v_mov_b32 v126, 0\nbuffer_atomic_add v126, off, {S(R_WS)}, {soff} sc0 sc1")
        if mid:
            a("s_mov_b64 exec, -1"); mid(); a("s_mov_b64 exec, 1")
        a(f"""
s_mov_b32 {sCNT}, {HINT}
s_branch {W}
{L}:
v_mov_b32 v126, 0
buffer_atomic_add v126, off, {S(R_WS)}, {soff} sc0 sc1
s_sub_u32 {sCNT}, {sCNT}, 1
s_cbranch_scc1 {D}
{W}:
s_waitcnt vmcnt(0)
v_cmp_gt_u32 vcc, {target}, v126
s_cbranch_vccnz {L}
{D}:
s_mov_b64 exec, -1
""")
    def cnaddr(dst, k, tmp):
        a(f"s_and_b32 {tmp}, {k}, 31\ns_mul_i32 {tmp}, {tmp}, {HB}\ns_lshr_b32 {dst}, {k}, 5\ns_lshl_b32 {dst}, {dst}, 7\ns_add_u32 {dst}, {dst}, {tmp}\ns_add_u32 {dst}, {dst}, {CN}")
    def mk_pat(dst, sel):
        a(f"""
v_and_b32 v{dst}, 1, v{sel}
v_lshlrev_b32 v{dst}, 16, v{dst}
v_and_b32 v{dst+2}, 2, v{sel}
v_lshlrev_b32 v{dst+2}, 15, v{dst+2}
v_or_b32 v{dst+2}, 1, v{dst+2}
v_mov_b32 v{dst+1}, {t4}
v_mov_b32 v{dst+3}, {t5}
""")
    def mk_tags():
        a(f"""
s_add_u32 {sTAG}, {sTAG}, {KTAG}
s_and_b32 {t5}, {sTAG}, 0xff
v_mov_b32 v{vT8}, {t5}
s_and_b32 {t4}, {sTAG}, 3
s_mul_i32 {t4}, {t4}, 0x8001
s_and_b32 {t4}, {t4}, {sM1}
s_bfe_u32 {t5}, {sTAG}, 0x20002
s_mul_i32 {t5}, {t5}, 0x8001
s_and_b32 {t5}, {t5}, {sM1}
""")
        mk_pat(PATL, 0); mk_pat(PATG, vG)
    def consts():
        a(f"""
s_mov_b32 {sLO}, 0x05040100
s_mov_b32 {sHI}, 0x07060302
s_mov_b32 {sMSK}, 0xffff0000
s_mov_b32 {sM8}, 0xffffff00
s_mov_b32 {sM1}, 0x00010001
s_mov_b32 {sH8}, 0x8000
s_mul_i32 {sHB}, {sH}, {HB}
s_mul_i32 {sFB}, {sFG}, {HB}
s_mul_i32 {sGB}, {sG}, {16*HB}
""")
        if DIAG:
            for k in range(1, 16): a(f"s_mov_b32 s{ST0+2*k}, 0")
        srd(R_WS, 28, 0x10000000)

    stamp_entry = f"s_memrealtime s[{ST0}:{ST0+1}]" if (DIAG or opt.get("hold", 0)) else ""
    a(f"""
{stamp_entry}
s_getpc_b64 s[{R_B}:{R_B+1}]
L_pc:
v_subrev_u32 v8, 256, v0
v_lshlrev_b32 v8, 6, v8
v_cmp_gt_u32 vcc, L_end-L_pc, v8
s_and_saveexec_b64 s[4:5], vcc
s_cbranch_execz L_npf
global_load_dword v9, v8, s[{R_B}:{R_B+1}]
L_npf:
s_mov_b64 exec, s[4:5]
s_cmp_ge_u32 s2, 256
s_cbranch_scc1 L_end
s_load_dwordx16 s[4:19], s[0:1], 0
s_load_dwordx8 s[20:27], s[0:1], 64
s_load_dwordx2 s[28:29], s[0:1], 96
v_lshrrev_b32 v1, 6, v0
v_and_b32 v0, 63, v0
v_readfirstlane_b32 {sW}, v1
v_lshlrev_b32 v{vL16}, 4, v0
v_mov_b32 v19, 0
v_mov_b32 v60, 0
v_mov_b32 v61, 0
v_and_b32 v{vN}, 15, v0
v_lshrrev_b32 v{vG}, 4, v0
v_and_b32 v{vM8}, 7, v0
v_lshrrev_b32 v{vR8}, 3, v0
s_and_b32 {sX}, s2, 7
s_lshr_b32 {sIDX}, s2, 3
s_lshr_b32 {sG}, {sIDX}, 4
s_and_b32 {sJ}, {sIDX}, 7
s_lshr_b32 {t0}, {sIDX}, 3
s_and_b32 {t1}, {t0}, 1
s_lshl_b32 {sH}, {sG}, 4
s_lshl_b32 {t2}, {sX}, 1
s_add_u32 {sH}, {sH}, {t2}
s_add_u32 {sH}, {sH}, {t1}
s_lshl_b32 {sI}, {sX}, 4
s_and_b32 {t1}, {sIDX}, 15
s_add_u32 {sI}, {sI}, {t1}
s_lshl_b32 {sFG}, {t0}, 3
s_add_u32 {sFG}, {sFG}, {sX}
v_lshlrev_b32 v64, 4, v{vR8}
s_lshl_b32 {t0}, {sJ}, 7
v_add_u32 v64, {t0}, v64
v_lshlrev_b32 v65, 16, v{vR8}
v_lshl_add_u32 v65, v{vM8}, 4, v65
s_lshl_b32 {t0}, {sJ}, 19
s_lshl_b32 {t1}, {sH}, 8
s_add_u32 {t2}, {t0}, {t1}
s_lshl_b32 {t1}, {sW}, 7
s_add_u32 {t0}, {t2}, {t1}
s_mov_b32 s{R_A+2}, 4194304
s_mov_b32 s{R_A+3}, 0x00020000
s_cmp_ge_u32 {sW}, 2
s_waitcnt lgkmcnt(0)
s_cbranch_scc1 L_not01
s_mov_b64 s[{R_A}:{R_A+1}], s[8:9]
s_setprio 3
global_load_dwordx4 v[8:11], v{vL16}, s[4:5]
global_load_dwordx4 v[12:15], v64, s[4:5]
""")
    for u in range(8):
        a(f"buffer_load_dwordx4 {V(WB+4*u)}, v65, {S(R_A)}, {t0} offen {NT}")
        if u < 7: a(f"s_add_u32 {t0}, {t0}, 8192")
    a(f"s_load_dword {sTAG}, s[28:29], 0")
    if N0: a("s_barrier")
    UK = 128
    consts()
    a(f"""
s_add_u32 {t3}, {sHB}, {QP}
s_lshl_b32 {t0}, {sJ}, 9
s_add_u32 {t0}, {t0}, {t3}
s_lshl_b32 {t1}, {sW}, 8
s_add_u32 {t0}, {t0}, {t1}
v_lshl_add_u32 v29, v0, 2, {t0}
s_waitcnt vmcnt(9)
""")
    for e in range(4):
        a(f"v_lshlrev_b32 v{64+2*e}, 16, v{8+e}\nv_and_b32 v{65+2*e}, {sMSK}, v{8+e}")
    a("""
v_pk_add_f32 v[72:73], v[64:65], v[66:67]
v_pk_add_f32 v[74:75], v[68:69], v[70:71]
v_pk_add_f32 v[72:73], v[72:73], v[74:75]
v_add_f32 v72, v72, v73
""")
    wave_sum(72, 73)
    a(f"v_mul_f32 v72, 0x{f2u(1/512):08x}, v72")
    bfround(76, 72)
    for e in range(8): a(f"v_sub_f32 v{64+e}, v{64+e}, v72")
    a("v_mul_f32 v74, v64, v64\nv_mul_f32 v75, v65, v65")
    for e in range(2, 8): a(f"v_fmac_f32 v{74+(e&1)}, v{64+e}, v{64+e}")
    a("v_add_f32 v74, v74, v75")
    wave_sum(74, 73)
    a(f"v_mul_f32 v74, 0x{f2u(1/512):08x}, v74")
    bfround(74, 74)
    a(f"v_add_f32 v74, 0x{f2u(1e-5):08x}, v74")
    bfround(74, 74)
    a("v_sqrt_f32 v74, v74")
    bfround(74, 74)
    a("v_rcp_f32 v74, v74")
    a("s_waitcnt vmcnt(8)")
    for e in range(4):
        a(f"v_lshlrev_b32 v{80+2*e}, 16, v{12+e}\nv_and_b32 v{81+2*e}, {sMSK}, v{12+e}")
    for e in range(8): a(f"v_sub_f32 v{80+e}, v{80+e}, v76")
    for e in range(4): a(f"v_cvt_pk_bf16_f32 v{XP+e}, v{80+2*e}, v{81+2*e}")
    for e in range(4):
        a(f"v_lshlrev_b32 v{64+2*e}, 16, v{XP+e}\nv_and_b32 v{65+2*e}, {sMSK}, v{XP+e}")
    for e in range(8): a(f"v_mul_f32 v{64+e}, v{64+e}, v74")
    for e in range(4): a(f"v_cvt_pk_bf16_f32 v{XP+e}, v{64+2*e}, v{65+2*e}")
    a(f"""
s_waitcnt lgkmcnt(0)
s_add_u32 {t5}, {sTAG}, {KTAG}
s_and_b32 {t5}, {t5}, 0xff
v_mov_b32 v{vT8}, {t5}
""")
    stamp(1)
    gemv(WB, 80, 96, 30, waits=lambda k: a(f"s_waitcnt vmcnt({6-2*k})"))
    tag8(30)
    if L1: a(f"s_movk_i32 {t0}, {QPL}\nbuffer_store_dword v30, v29, {S(R_WS)}, {t0} offen")
    else: a(f"buffer_store_dword v30, v29, {S(R_WS)}, 0 offen sc1")
    stamp(2)
    a(f"v_lshlrev_b32 v104, 4, v{vR8}\nv_add_u32 v104, {L_XN}, v104\nds_write_b128 v104, {V(XP)}")
    a("s_waitcnt lgkmcnt(0)" if (L1 and RELP) else "s_waitcnt vmcnt(0) lgkmcnt(0)")
    stamp(3)
    a("s_barrier")
    if L4: a(f"s_lshl_b32 {t0}, {sJ}, 9\ns_add_u32 {t0}, {t0}, {sHB}\ns_add_u32 {t0}, {t0}, {CP+0x1000}\nv_lshlrev_b32 v64, 3, v0\nbuffer_load_dword v65, v64, {S(R_WS)}, {t0} offen")
    mk_tags()
    if L1: a(f"s_sleep 32\nbuffer_store_dword v30, v29, {S(R_WS)}, 0 offen sc1" if opt.get("gdel", 0) else f"buffer_store_dword v30, v29, {S(R_WS)}, 0 offen sc1")
    a("s_branch L_b0")
    a(f"L_not01:\ns_load_dword {sTAG}, s[28:29], 0")
    a(f"s_cmp_ge_u32 {sW}, 4\ns_cbranch_scc1 L_loader")
    consts()
    a(f"""
s_lshl_b32 {t0}, {sJ}, 7
s_add_u32 {t0}, {t0}, {sHB}
s_add_u32 {t0}, {t0}, {CN4}
""")
    a(f"s_and_b32 {t4}, s2, 63\ns_lshl_b32 {t5}, {sG}, 6\ns_or_b32 {t4}, {t4}, {t5}\ns_and_b32 {t5}, s2, 64\ns_lshl_b32 {t5}, {t5}, 1\ns_or_b32 {t4}, {t4}, {t5}")
    cnaddr(t3, t4, t1)
    a(f"""
s_cmp_eq_u32 {sW}, 2
s_cselect_b32 {t0}, {t0}, {t3}
v_mov_b32 v64, 0
v_mov_b32 v65, 0
v_mov_b32 v66, 0
v_mov_b32 v67, 0
s_mov_b64 exec, 0xff
{"s_cbranch_scc1 L_nz" if L4 else ""}
buffer_store_dwordx4 v[64:67], v{vL16}, {S(R_WS)}, {t0} offen sc1
L_nz:
s_mov_b64 exec, -1
""")
    if L1: a(f"s_add_u32 {t0}, {sHB}, {QP+QPL}\nv_lshlrev_b32 v68, 6, v0\nbuffer_load_dword v69, v68, {S(R_WS)}, {t0} offen")
    if N0: a("s_barrier")
    srd(R_B, 10, 4194304)
    a(f"""
s_and_b32 s11, {sW}, 1
v_lshlrev_b32 v28, 13, v{vN}
v_lshl_add_u32 v28, v{vG}, 4, v28
s_lshl_b32 {t1}, s11, 18
s_add_u32 {u0}, {t2}, {t1}
s_add_u32 {u1}, {u0}, 131072
s_add_u32 {t3}, {sHB}, {QP}
v_and_b32 v104, 31, v0
v_lshrrev_b32 v105, 5, v0
v_lshlrev_b32 v106, 11, v105
v_lshl_add_u32 v106, v104, 4, v106
s_waitcnt {"vmcnt(0) " if opt.get("ukd", 0) else ""}lgkmcnt(0)
""")
    for t in range(2):
        for s_ in range(4):
            a(f"buffer_load_dwordx4 {V(UK+16*t+4*s_)}, v28, {S(R_B)}, {u0 if t == 0 else u1} offen offset:{64*s_} {NT}")
    a(f"""
s_lshl_b32 {t1}, s11, 8
s_add_u32 {t1}, {t1}, {L_QS}
v_and_b32 v107, 1, v104
v_lshlrev_b32 v107, 6, v107
v_lshl_add_u32 v107, v105, 5, v107
v_and_b32 v111, 14, v104
v_add_u32 v107, v111, v107
v_and_b32 v111, 16, v104
v_lshl_add_u32 v107, v111, 3, v107
v_add_u32 v107, {t1}, v107
v_lshlrev_b32 v108, 4, v{vG}
v_add_u32 v108, {t1}, v108
v_lshlrev_b32 v109, 5, v{vN}
v_lshl_add_u32 v109, v{vG}, 3, v109
v_lshrrev_b32 v110, 4, v109
s_lshl_b32 {t1}, {sJ}, 7
s_add_u32 {t0}, {sHB}, {t1}
s_lshl_b32 {t1}, s11, 6
s_add_u32 {t0}, {t0}, {t1}
s_add_u32 {t0}, {t0}, {QA}
v_add_u32 v109, {t0}, v109
""")
    mk_tags()
    mk_pat(120, 110)
    a(f"""
v_and_b32 v110, 1, v{vG}
v_cmp_eq_u32 vcc, 1, v110
v_cndmask_b32 v120, v120, v122, vcc
v_cndmask_b32 v121, v121, v123, vcc
v_mov_b32 v110, {L_RI}
s_setprio 3
s_barrier
""")
    G1 = 64
    sc = (128 ** -0.5) * math.log2(math.e)
    a(f"v_mov_b32 v111, 0x{f2u(sc):08x}")
    if L1:
        a(f"s_add_u32 {t0}, {t3}, {QPL}\ns_mov_b32 {sCNT}, {NL}\nL_l1:")
        for u in range(4): a(f"buffer_load_dwordx4 {V(G1+4*u)}, v106, {S(R_WS)}, {t0} offen offset:{u*512} sc1")
        a("s_waitcnt vmcnt(0)")
        check([("0xff", [(G1 + k, vT8) for k in range(16)])], 96)
        a(f"s_cbranch_vccz L_l1d\ns_mov_b64 exec, vcc\ns_sub_u32 {sCNT}, {sCNT}, 1\ns_cbranch_scc0 L_l1")
    gather([f"buffer_load_dwordx4 {V(G1+4*u)}, v106, {S(R_WS)}, {t3} offen offset:{u*512} sc1" for u in range(4)],
           [("0xff", [(G1 + k, vT8) for k in range(16)])], 96, "L_h1")
    if L1: a("L_l1d:\ns_mov_b64 exec, -1")
    stamp(4)
    for e in (0, 2): a(f"v_pk_add_f32 {V(G1+e,2)}, {V(G1+e,2)}, {V(G1+4+e,2)}\nv_pk_add_f32 {V(G1+8+e,2)}, {V(G1+8+e,2)}, {V(G1+12+e,2)}")
    for e in (0, 2): a(f"v_pk_add_f32 {V(G1+e,2)}, {V(G1+e,2)}, {V(G1+8+e,2)}")
    a(f"""
v_permlane32_swap_b32 v{G1}, v{G1+2}
v_permlane32_swap_b32 v{G1+1}, v{G1+3}
v_pk_add_f32 {V(G1,2)}, {V(G1,2)}, {V(G1+2,2)}
v_mul_f32 v{G1}, v111, v{G1}
v_mul_f32 v{G1+1}, v111, v{G1+1}
v_cvt_pk_bf16_f32 v{G1}, v{G1}, v{G1+1}
ds_write_b16 v107, v{G1}
ds_write_b16_d16_hi v107, v{G1} offset:16
s_waitcnt lgkmcnt(0)
""")
    for s_ in range(4): a(f"ds_read_b128 {V(80+4*s_)}, v108 offset:{64*s_}")
    for s_ in range(4):
        a(f"s_waitcnt lgkmcnt({3-s_})")
        for t in range(2):
            a(f"v_mfma_f32_16x16x32_bf16 {V(112+4*t)}, {V(UK+16*t+4*s_)}, {V(80+4*s_)}, {'0' if s_ == 0 else V(112+4*t)}")
    a(f"""
s_mov_b32 exec_lo, 0x00020002
s_mov_b32 exec_hi, 0x00020002
v_mov_b32 v112, v116
v_mov_b32 v113, v117
v_mov_b32 v114, v118
v_mov_b32 v115, v119
s_mov_b32 exec_lo, 0x00030003
s_mov_b32 exec_hi, 0x00030003
v_add_u32 v112, 0x10000, v112
v_add_u32 v113, 0x10000, v113
v_add_u32 v114, 0x10000, v114
v_add_u32 v115, 0x10000, v115
v_perm_b32 v12, v113, v112, {sHI}
v_perm_b32 v13, v115, v114, {sHI}
v_bfi_b32 v12, {sM1}, v120, v12
v_bfi_b32 v13, {sM1}, v121, v13
buffer_store_dwordx2 v[12:13], v109, {S(R_WS)}, 0 offen sc1
s_mov_b64 exec, -1
""")
    stamp(5)
    a("s_branch L_b0")
    a("L_loader:")
    srd(R_A, 6, 16777216)
    consts()
    a("s_waitcnt lgkmcnt(0)")
    mk_tags()
    GUAT = opt.get("guat", 2)
    a(f"""
s_mul_i32 {u1}, {sJ}, {64*3584}
s_lshl_b32 {t3}, {sFG}, 7
s_add_u32 {u1}, {u1}, {t3}
s_and_b32 {t1}, {sW}, 1
s_mul_i32 {t1}, {t1}, {32*3584}
s_add_u32 {u1}, {u1}, {t1}
s_cmp_lt_u32 {sFG}, 28
s_cselect_b32 s{R_B+2}, 1835008, 0
s_bitcmp0_b32 {sW}, 1
s_cselect_b64 s[{R_B}:{R_B+1}], s[18:19], s[20:21]
s_mov_b32 s{R_B+3}, 0x00020000
v_mul_u32_u24 v13, {4*3584}, v{vR8}
v_lshl_add_u32 v13, v{vM8}, 4, v13
v_add_u32 v14, 7168, v13
s_sub_u32 {t0}, {sW}, 4
""")
    if SPREAD:
        a(f"""
s_lshl_b32 {t1}, {t0}, 4
s_add_u32 {t1}, {t1}, {sI}
s_and_b32 {t1}, {t1}, 127
s_xor_b32 {t3}, {t1}, 64
s_add_u32 {t3}, {t3}, 512
s_lshl_b32 {t2}, {t0}, 7
s_add_u32 {t1}, {t1}, {t2}
s_add_u32 {t3}, {t3}, {t2}
s_lshl_b32 {t1}, {t1}, 14
s_lshl_b32 {t3}, {t3}, 14
s_mul_i32 {t2}, {t0}, {16*RS}
""")
    else:
        a(f"""
s_lshl_b32 {t1}, {sI}, 17
s_lshl_b32 {t2}, {t0}, 14
s_add_u32 {t1}, {t1}, {t2}
s_add_u32 {t3}, {t1}, 65536
s_mul_i32 {t2}, {t0}, {16*RS}
""")
    if N0: a("s_barrier")
    c0, c1, c2 = "s8", "s9", "s10"
    a(f"s_mov_b32 {c0}, {t1}\ns_mov_b32 {c1}, {t2}\ns_mov_b32 {c2}, {t3}")
    def cgroup(grp, R):
        if grp == N0: a("s_barrier")
        if grp == GUAT:
            for k in range(4):
                a(f"buffer_load_dwordx4 {V(WB+16+4*k)}, v{13+(k>>1)}, {S(R_B)}, {u1} offen offset:{3584*(k&1)} {NT}")
                if THR: a(f"s_waitcnt vmcnt({THR})")
        for r in range(4):
            a(f"s_add_u32 m0, {c1}, {32*r}")
            a(f"buffer_load_dwordx4 v{vL16}, {S(R)}, {c0} offen offset:{1024*r} {NTC} lds")
            if THR: a(f"s_waitcnt vmcnt({THR})")
        if grp == 3: a(f"s_mov_b32 {c0}, {c2}\ns_add_u32 {c1}, {c1}, {52*RS}")
        elif grp < 7: a(f"s_add_u32 {c0}, {c0}, 4096\ns_add_u32 {c1}, {c1}, {4*RS}")
    for grp in range(B0AT): cgroup(grp, R_A)
    stamp(1)
    a(f"s_waitcnt vmcnt({4*(B0AT-4)})")
    a("L_b0:")
    srd(R_O, 14, 4194304)
    srd(R_D, 22, 1835008)
    srd(R_A, 12, 4194304)
    srd(R_B, 6, 16777216)
    a(f"""
s_lshl_b32 {t0}, {sG}, 6
s_lshl_b32 {t1}, {sW}, 3
s_add_u32 {t0}, {t0}, {t1}
s_and_b32 {t1}, s2, 7
s_add_u32 {t0}, {t0}, {t1}
""")
    cnaddr("s11", t0, t1)
    a(f"s_lshl_b32 {t0}, {sG}, 6\ns_lshl_b32 {t1}, {sJ}, 3\ns_add_u32 {t0}, {t0}, {t1}\ns_add_u32 {t0}, {t0}, {sW}")
    cnaddr("s18", t0, t1)
    a(f"""
v_mul_u32_u24 v8, {RS}, v{vN}
v_lshl_add_u32 v8, v{vG}, 4, v8
s_mul_i32 {t0}, {sW}, {16*RS}
v_add_u32 v9, {t0}, v8
v_add_u32 v8, {L_Q}, v8
v_lshrrev_b32 v10, 2, v0
v_mul_u32_u24 v10, {RS}, v10
v_and_b32 v11, 3, v0
v_lshl_add_u32 v10, v11, 3, v10
s_lshl_b32 {t0}, {sW}, 7
v_add_u32 v10, {t0}, v10
v_add_u32 v11, {64*RS}, v10
s_lshl_b32 {t0}, {sJ}, 19
s_lshl_b32 {t1}, {sH}, 8
s_add_u32 {t0}, {t0}, {t1}
s_and_b32 {t1}, {sW}, 3
s_lshl_b32 {t1}, {t1}, 17
s_add_u32 {u0}, {t0}, {t1}
s_lshl_b32 {t1}, {sJ}, 10
s_add_u32 {u1}, {sFB}, {t1}
s_and_b32 {t1}, {sW}, 3
s_lshl_b32 {t1}, {t1}, 8
s_add_u32 {u1}, {u1}, {t1}
s_add_u32 {u1}, {u1}, {FP}
s_and_b32 {t1}, {sW}, 1
s_lshl_b32 {t1}, {t1}, 6
s_add_u32 {t1}, {t1}, {L_XN}
v_lshl_add_u32 v15, v{vR8}, 3, {t1}
v_lshlrev_b32 v13, 11, v{vR8}
v_lshl_add_u32 v13, v{vM8}, 4, v13
v_lshlrev_b32 v14, 13, v{vR8}
v_lshl_add_u32 v14, v{vM8}, 4, v14
v_lshrrev_b32 v28, 1, v{vN}
v_xor_b32 v28, v28, v{vG}
v_lshlrev_b32 v28, 5, v28
v_and_b32 v29, 1, v0
v_lshl_add_u32 v28, v29, 4, v28
v_lshl_add_u32 v28, v{vG}, 13, v28
v_xor_b32 v29, 128, v28
v_add_u32 v29, 32768, v29
v_mul_u32_u24 v30, {OH}, v{vM8}
v_lshl_add_u32 v30, v{vG}, 4, v30
v_and_b32 v31, 8, v0
v_lshl_add_u32 v30, v31, 3, v30
s_mul_i32 {t3}, {sG}, {16*OH}
s_mul_i32 {t4}, {sW}, {IB}
s_add_u32 {t3}, {t3}, {t4}
s_lshl_b32 {t4}, {sI}, 7
s_add_u32 {t3}, {t3}, {t4}
s_add_u32 {t3}, {t3}, {OP}
v_add_u32 v30, {t3}, v30
v_add_u32 v31, {8*OH}, v30
v_lshlrev_b32 v6, 4, v{vN}
v_add_u32 v6, {L_MX}, v6
s_lshl_b32 {t2}, {sH}, 17
s_lshl_b32 {t3}, {sJ}, 14
s_add_u32 {t2}, {t2}, {t3}
s_lshl_b32 {t5}, {sW}, 7
s_add_u32 {w0_}, {t2}, {t5}
s_lshl_b32 {t3}, {sFG}, 16
s_add_u32 {t5}, {t5}, {t3}
s_lshl_b32 {t3}, {sJ}, 10
s_add_u32 {w1_}, {t5}, {t3}
s_mul_i32 {t3}, {sW}, {4*RS}
s_add_u32 {t3}, {t3}, {L_Q}
v_add_u32 v12, {t3}, v{vL16}
s_mul_i32 {t0}, {sW}, {4*HB}
s_add_u32 {t0}, {t0}, {sGB}
s_add_u32 {t0}, {t0}, {QA}
s_add_u32 {t1}, {t0}, {HB}
s_add_u32 {t2}, {t1}, {HB}
s_add_u32 {t3}, {t2}, {HB}
s_add_u32 {t4}, {u0}, 65536
s_cmp_ge_u32 {sW}, 4
""")
    wol = [f"buffer_load_dwordx4 {V(WO)}, v13, {S(R_O)}, {w0_} offen {NT}", f"buffer_load_dwordx4 {V(WO+4)}, v13, {S(R_O)}, {w0_} offen offset:1024 {NT}",
           f"buffer_load_dwordx4 {V(WD)}, v14, {S(R_D)}, {w1_} offen {NT}"]
    WO03 = opt.get("wo03", "ba")
    if WO03 == "b0":
        a("s_cbranch_scc1 L_nwo")
        for l in wol: a(l)
        a("L_nwo:")
    a("s_waitcnt lgkmcnt(0)\ns_barrier")
    def rdTh(ks, T, half):
        r = TF + 16 * ks + 4 * T + 2 * half
        a(f"ds_read_b64_tr_b16 {V(r,2)}, {'v11' if half else 'v10'} offset:{16*ks*RS + 32*T}")
    G2 = 64
    h2loads = [f"buffer_load_dwordx4 {V(G2+4*k)}, v{vL16}, {S(R_WS)}, {[t0,t1,t2,t3][k]} offen sc1" for k in range(4)]
    T1T = opt.get("t1t", THR)
    NE = opt.get("ne", 7)
    LT = opt.get("lt", "")
    if LT: NE = 0
    tl = [f"buffer_load_dwordx4 {V(WB+4*k)}, v{28+(k&1)}, {S(R_A)}, {u0 if k < 2 else t4} offen {NT}" for k in range(4)] + wol
    PFR = 80
    a("s_cbranch_scc1 L_ng")
    for l in h2loads: a(l)
    stamp(6)
    for ks in range(4):
        if ks == 2: a("s_waitcnt lgkmcnt(7)")
        for T in range(4): rdTh(ks, T, 0)
    gather(h2loads, [(sM1, [(G2 + 4 * k + e, PATL + e) for k in range(4) for e in range(4)])], 96, "L_h2g", sel="quad", issue=False)
    a("s_waitcnt lgkmcnt(8)")
    for k in range(4): a(f"ds_write_b128 v12, {V(G2+4*k)} offset:{k*RS}")
    if not LT:
        for l in wol: a(l)
    a(f"s_setprio 0\nv_add_u32 v76, {L_P}, v{vL16}\ns_waitcnt lgkmcnt(0)\ns_barrier")
    stamp(7)
    for ks in range(4):
        if ks == 2: a("s_waitcnt lgkmcnt(7)")
        for T in range(4): rdTh(ks, T, 1)
    a(f"""
s_waitcnt lgkmcnt(7)
s_barrier
ds_read_b128 v[68:71], v6
s_waitcnt lgkmcnt(0)
v_max3_f32 v66, v68, v69, v70
v_max_f32 v66, v66, v71
v_and_b32 v66, {sM8}, v66
s_barrier
""")
    for ks in range(4): a(f"ds_read_b128 {V(PFR+4*ks)}, v76 offset:{1024*ks}")
    a("s_branch L_pv\nL_ng:")
    for grp in range(B0AT, 8): cgroup(grp, R_B)
    stamp(6)
    a(f"v_subrev_u32 v12, {64*RS}, v9\nds_read_b64 {V(XP,2)}, v15")
    for s in range(8): a(f"ds_read_b128 {V(AF+4*s)}, v12 offset:{64*s}")
    for l in tl[:min(4, NE)]:
        if T1T: a(f"s_waitcnt vmcnt({T1T-1})")
        a(l)
    a("s_waitcnt lgkmcnt(7)")
    for s in range(8, 16): a(f"ds_read_b128 {V(AF+4*s)}, v12 offset:{64*s}")
    gemv(WB + 16, 64, 72, 18, nk=2)
    tag8(18)
    a("v_lshlrev_b32 v19, 2, v0")
    for l in tl[4:NE]:
        if T1T: a(f"s_waitcnt vmcnt({T1T-1})")
        a(l)
    a(f"s_waitcnt vmcnt({NE}) lgkmcnt(0)")
    stamp(8)
    for s in range(8): a(f"ds_read_b128 {V(TF+4*s)}, v9 offset:{64*s}")
    a("s_waitcnt lgkmcnt(7)")
    for s in range(8, 16): a(f"ds_read_b128 {V(TF+4*s)}, v9 offset:{64*s}")
    if not LT:
        for l in tl[NE:]: a(l)
    else: a(f"v_mov_b32 v60, v28\nv_mov_b32 v61, v29\ns_mov_b32 s19, {t4}")
    a(f"""
buffer_store_dword v18, v19, {S(R_WS)}, {u1} offen sc1
s_and_b32 {t0}, {sW}, 3
s_lshl_b32 {t2}, {t0}, 2
s_lshl_b32 {t0}, {t0}, 10
s_add_u32 {t3}, {t0}, {L_P}
v_add_u32 v28, {t2}, v6
v_add_u32 v29, {t3}, v{vL16}
s_setprio 3
s_barrier
""")
    stamp(7)
    PRE = 12
    SA = 12; SB_ = 124
    a("s_waitcnt lgkmcnt(3)")
    for s in range(PRE): a(f"ds_read_b128 {V(QF+4*s)}, v8 offset:{64*s}")
    for s in range(16):
        rem = min(16, s + PRE) - (s + 1)
        a(f"s_waitcnt lgkmcnt({rem})")
        a(f"v_mfma_f32_16x16x32_bf16 {V(SA)}, {V(AF+4*s)}, {V(QF+4*(s%12))}, {'0' if s == 0 else V(SA)}")
        a(f"v_mfma_f32_16x16x32_bf16 {V(SB_)}, {V(TF+4*s)}, {V(QF+4*(s%12))}, {'0' if s == 0 else V(SB_)}")
        if s + PRE < 16: a(f"ds_read_b128 {V(QF+4*((s+PRE)%12))}, v8 offset:{64*(s+PRE)}")
    tfs = [(ks, T, h) for ks in range(4) for T in range(4) for h in range(2)]
    def tf(n):
        for _ in range(n): rdTh(*tfs.pop(0))
    tf(6)
    a(f"""
v_max3_f32 v66, v{SA}, v{SA+1}, v{SA+2}
v_max3_f32 v67, v{SB_}, v{SB_+1}, v{SB_+2}
v_max3_f32 v66, v66, v{SA+3}, v{SB_+3}
v_max_f32 v66, v66, v67
""")
    allred_hi(66, 67, "v_max_f32")
    a("ds_write_b32 v28, v66")
    stamp3(1)
    tf(8)
    a(f"v_add_u32 v76, {L_P}, v{vL16}\ns_waitcnt lgkmcnt({0 if DIAG == 3 else 8})\ns_barrier")
    if DIAG == 3: stamp3(2); a("s_waitcnt lgkmcnt(0)")
    a("ds_read_b128 v[68:71], v6")
    tf(6)
    a(f"""
s_waitcnt lgkmcnt(6)
v_max3_f32 v66, v68, v69, v70
v_max_f32 v66, v66, v71
v_and_b32 v66, {sM8}, v66
""")
    for b in (SA, SB_):
        for r in range(4): a(f"v_sub_f32 v{b+r}, v{b+r}, v66")
    for b in (SA, SB_):
        for r in range(4): a(f"v_exp_f32 v{b+r}, v{b+r}")
    a(f"""
v_cvt_pk_bf16_f32 v68, v{SA}, v{SA+1}
v_cvt_pk_bf16_f32 v69, v{SA+2}, v{SA+3}
v_cvt_pk_bf16_f32 v70, v{SB_}, v{SB_+1}
v_cvt_pk_bf16_f32 v71, v{SB_+2}, v{SB_+3}
ds_write_b128 v29, v[68:71]
""")
    tf(8)
    if DIAG == 3: stamp3(3); a("s_waitcnt lgkmcnt(0)")
    a("s_waitcnt lgkmcnt(8)\ns_setprio 0\ns_barrier")
    if DIAG == 3: stamp3(4); a("s_waitcnt lgkmcnt(0)")
    a("s_waitcnt lgkmcnt(7)")
    tf(4)
    for ks in range(4): a(f"ds_read_b128 {V(PFR+4*ks)}, v76 offset:{1024*ks}")
    a("L_pv:")
    def late_tail():
        L = a.label("L_lt")
        a(f"""
v_lshlrev_b32 v62, 11, v{vR8}
v_lshl_add_u32 v62, v{vM8}, 4, v62
v_lshlrev_b32 v63, 13, v{vR8}
v_lshl_add_u32 v63, v{vM8}, 4, v63
s_cmp_lt_u32 {sW}, 4
s_cbranch_scc1 {L}
""")
        for k in range(4): a(f"buffer_load_dwordx4 {V(WB+4*k)}, v{60+(k&1)}, {S(R_A)}, {u0 if k < 2 else 's19'} offen {NT}")
        a(f"{L}:")
        for l in wol: a(l.replace("v13,", "v62,").replace("v14,", "v63,"))
    if LT == "b3": late_tail()
    OA = AF; LA = AF + 16; ONE = AF + 20
    a(f"v_mov_b32 v77, 1\ns_cmp_lg_u32 {sW}, 2\ns_cbranch_scc1 L_noml")
    for r in range(4): a(f"v_mov_b32 v{ONE+r}, 0x3f803f80")
    a(f"""
v_lshlrev_b32 v75, 3, v0
s_lshl_b32 {t3}, {sG}, 14
s_lshl_b32 {t4}, {sI}, 7
s_add_u32 {t3}, {t3}, {t4}
s_add_u32 {t3}, {t3}, {ML}
v_or_b32 v108, v66, v{vT8}
""")
    for ks in range(4):
        a(f"s_waitcnt lgkmcnt({3-ks})")
        a(f"v_mfma_f32_16x16x32_bf16 {V(LA)}, {V(ONE)}, {V(PFR+4*ks)}, {'0' if ks == 0 else V(LA)}")
    a(f"""
v_and_or_b32 v109, v{LA}, {sM8}, v{vT8}
s_mov_b64 exec, 0xffff
buffer_store_dwordx2 v[108:109], v75, {S(R_WS)}, {t3} offen sc1
s_mov_b64 exec, -1
L_noml:
""")
    for ks in range(4):
        a(f"s_waitcnt lgkmcnt({3-ks})")
        for T in range(4):
            a(f"v_mfma_f32_16x16x32_bf16 {V(OA+4*T)}, {V(TF+16*ks+4*T)}, {V(PFR+4*ks)}, {'0' if ks == 0 else V(OA+4*T)}")
    EA3 = opt.get("ea3", 1); EA5 = opt.get("ea5", 1)
    if EA3 == 2: a(f"s_mov_b64 exec, 1\nbuffer_atomic_add v77, off, {S(R_WS)}, s11 sc1\ns_mov_b64 exec, -1")
    for T in range(4):
        a(f"v_cvt_pk_bf16_f32 v{96+2*T}, v{OA+4*T}, v{OA+4*T+1}\nv_cvt_pk_bf16_f32 v{97+2*T}, v{OA+4*T+2}, v{OA+4*T+3}")
        if T < 2:
            a(f"v_bfi_b32 v{104+2*T}, {sM1}, v{PATG+2*T}, v{96+2*T}\nv_bfi_b32 v{105+2*T}, {sM1}, v{PATG+2*T+1}, v{97+2*T}")
        a(f"v_bfi_b32 v{96+2*T}, {sM1}, v{PATG+(2*T)%4}, v{96+2*T}\nv_bfi_b32 v{97+2*T}, {sM1}, v{PATG+(2*T+1)%4}, v{97+2*T}")
    stamp3(5)
    if EA3 == 1: a(f"s_mov_b64 exec, 1\nbuffer_atomic_add v77, off, {S(R_WS)}, s11 sc1\ns_mov_b64 exec, -1")
    for e in range(4): a(f"v_mov_b32_dpp v{96+e}, v{100+e} row_ror:8 row_mask:0xf bank_mask:0xc")
    a(f"buffer_store_dwordx4 v[96:99], v30, {S(R_WS)}, 0 offen sc1")
    for e in range(4): a(f"v_mov_b32_dpp v{100+e}, v{104+e} row_ror:8 row_mask:0xf bank_mask:0x3")
    a(f"buffer_store_dwordx4 v[100:103], v31, {S(R_WS)}, 0 offen sc1")
    a("s_mov_b64 exec, 1" if EA3 else f"s_mov_b64 exec, 1\nbuffer_atomic_add v77, off, {S(R_WS)}, s11 sc1")
    stamp(9)
    if LT == "pv": a("s_mov_b64 exec, -1"); late_tail(); a("s_mov_b64 exec, 1")
    hfloads = [f"buffer_load_dword v{104+k}, v10, {S(R_WS)}, {t4} offen offset:{256*k} sc1" for k in range(4)]
    def ffn2s():
        for e in range(4):
            a(f"v_lshlrev_b32 v{168+2*e}, 16, v{WD+e}\nv_and_b32 v{169+2*e}, {sMSK}, v{WD+e}")
        for e in range(4):
            a(f"v_perm_b32 v{WOP+2*e}, v{WO+4+e}, v{WO+e}, {sLO}\nv_perm_b32 v{WOP+2*e+1}, v{WO+4+e}, v{WO+e}, {sHI}")
    def fin_addr():
        a(f"""
s_lshr_b32 s14, s2, 4
s_and_b32 s14, s14, 7
s_lshl_b32 s15, {sW}, 3
s_add_u32 s15, s15, s14
s_add_u32 s15, s15, 128
""")
        cnaddr("s12", "s15", "s14")
        a(f"""
s_sub_u32 s13, {sFG}, 24
s_and_b32 s13, s13, 7
s_lshl_b32 s15, s13, 3
s_add_u32 s14, s15, {sW}
s_add_u32 s14, s14, 128
""")
        cnaddr("s11", "s14", "s10")
        a(f"""
s_add_u32 s15, s15, {sJ}
s_mul_i32 s8, s15, {SB}
s_lshl_b32 s9, {sW}, 10
s_add_u32 s8, s8, s9
s_add_u32 s8, s8, {SP}
s_add_u32 s9, s8, 8192
s_lshl_b32 s13, s13, 6
s_add_u32 s13, s13, {sJ}
s_lshl_b32 s13, s13, 1
v_lshl_add_u32 v176, v{vM8}, 4, s13
v_bfe_u32 v177, v0, 4, 1
v_lshlrev_b32 v177, 8, v177
v_and_b32 v178, 3, v0
v_lshl_add_u32 v177, v178, 6, v177
v_lshrrev_b32 v178, 5, v0
v_lshl_add_u32 v177, v178, 5, v177
s_lshl_b32 s14, {sW}, 2
s_add_u32 s14, s14, {L_FIN}
v_add_u32 v177, s14, v177
v_lshlrev_b32 v178, 5, v{vM8}
v_add_u32 v178, {L_FIN}, v178
""")
    def mid3():
        fin_addr()
        a(f"""
s_cmp_lt_u32 {sW}, 4
s_cbranch_scc1 L_pc0
s_lshl_b32 {t0}, {sW}, 12
s_add_u32 {t0}, {t0}, {L_UV - 4*4096}
v_add_u32 v9, {t0}, v{vL16}
s_waitcnt vmcnt({ {'': 8, 'b3': 7, 'pv': 4}[LT] })
""")
        for u in range(4): a(f"ds_write_b128 v9, {V(WB+4*u)} offset:{1024*u}")
        a(f"""
L_pc0:
v_lshlrev_b32 v8, 7, v{vR8}
s_lshl_b32 {t0}, {sG}, 14
s_lshl_b32 {t1}, {sW}, 11
s_add_u32 {t0}, {t0}, {t1}
s_and_b32 {t1}, {sH}, 15
s_lshl_b32 {t1}, {t1}, 3
s_add_u32 {t0}, {t0}, {t1}
s_add_u32 {t0}, {t0}, {ML}
s_mul_i32 {t1}, {sH}, {OH}
s_mul_i32 {t2}, {sJ}, {IB}
s_add_u32 {t1}, {t1}, {t2}
s_lshl_b32 {t2}, {sW}, 11
s_add_u32 {t1}, {t1}, {t2}
s_add_u32 {t1}, {t1}, {OP}
s_lshl_b32 {t2}, {sW}, 3
s_add_u32 {t2}, {t2}, {L_ST2}
v_mov_b32 v74, {t2}
v_bfe_u32 v75, v0, 3, 1
v_mul_u32_u24 v75, 160, v75
v_lshl_add_u32 v75, v{vM8}, 4, v75
v_lshl_add_u32 v75, v{vG}, 2, v75
s_mul_i32 {t2}, {sW}, 320
s_add_u32 {t2}, {t2}, {L_OR}
v_add_u32 v75, {t2}, v75
v_mul_u32_u24 v76, 160, v{vN}
v_lshl_add_u32 v76, v{vG}, 4, v76
v_add_u32 v76, {L_OR}, v76
v_lshrrev_b32 v77, 2, v0
v_and_b32 v78, 7, v77
v_xor_b32 v78, {sW}, v78
v_lshlrev_b32 v77, 8, v77
v_lshl_add_u32 v77, v78, 5, v77
v_and_b32 v78, 3, v0
v_lshl_add_u32 v77, v78, 3, v77
v_add_u32 v77, {L_UV}, v77
v_lshlrev_b32 v78, 3, v{vM8}
v_add_u32 v78, {L_ST2}, v78
v_lshlrev_b32 v79, 4, v{vG}
v_add_u32 v79, {L_ST2}, v79
v_mov_b32 v14, {sH8}
s_lshl_b32 {t2}, {sW}, 9
s_add_u32 {t2}, {sHB}, {t2}
s_lshl_b32 {t3}, {sJ}, 6
s_add_u32 {t2}, {t2}, {t3}
s_add_u32 {t2}, {t2}, {CP}
v_lshl_add_u32 v15, v0, 2, {t2}
s_lshl_b32 {t2}, {sJ}, 9
s_add_u32 {t2}, {sHB}, {t2}
s_add_u32 {t2}, {t2}, {CP}
v_lshlrev_b32 v9, 6, v{vM8}
v_lshl_add_u32 v9, v{vR8}, 3, v9
v_mul_u32_u24 v11, {SB}, v{vR8}
v_lshl_add_u32 v11, v{vM8}, 3, v11
s_mul_i32 {t3}, {sW}, {8*SB}
s_lshl_b32 {t4}, s2, 6
s_add_u32 {t3}, {t3}, {t4}
s_add_u32 {t3}, {t3}, {SP}
v_lshlrev_b32 v10, 10, v{vM8}
v_lshl_add_u32 v10, v{vR8}, 2, v10
s_lshl_b32 {t4}, {sJ}, 5
s_add_u32 {t4}, {sFB}, {t4}
s_add_u32 {t4}, {t4}, {FP}
s_lshl_b32 {u0}, {sW}, 7
s_add_u32 {u0}, {u0}, {sHB}
s_add_u32 {u0}, {u0}, {CN4}
s_lshl_b32 {u1}, {sJ}, 7
s_add_u32 {u1}, {u1}, {sHB}
s_add_u32 {u1}, {u1}, {CN4}
v_mov_b32 v12, 1
v_lshlrev_b32 v13, 3, v{vR8}
v_add_u32 v13, {L_HS}, v13
s_and_b32 {t5}, s2, 7
""")
    hint("s18", 16, "L_c3", mid=mid3, execset=True)
    stamp(10)
    h3loads = [f"buffer_load_dwordx2 v[64:65], v8, {S(R_WS)}, {t0} offen sc1",
            f"buffer_load_dwordx2 v[68:69], v8, {S(R_WS)}, {t0} offen offset:1024 sc1",
            f"buffer_load_dwordx4 v[80:83], v{vL16}, {S(R_WS)}, {t1} offen sc1",
            f"buffer_load_dwordx4 v[84:87], v{vL16}, {S(R_WS)}, {t1} offen offset:1024 sc1"]
    a(f"s_mov_b32 {sCNT}, {SPIN}\ns_cmp_lg_u32 {t5}, {sW}\ns_cbranch_scc1 L_h3")
    for l in hfloads: a(l)
    a("L_h3:")
    for l in h3loads: a(l)
    ffn2s()
    a(f"""
s_waitcnt vmcnt(2)
v_xor_b32 v64, v64, v{vT8}
v_xor_b32 v68, v68, v{vT8}
v_xor_b32 v65, v65, v{vT8}
v_xor_b32 v69, v69, v{vT8}
v_max_f32 v72, v64, v68
v_or3_b32 v70, v64, v65, v68
v_or_b32 v70, v70, v69
""")
    dpp("v_max_f32", 72, 72, "row_ror:8")
    a("v_and_b32 v70, 0xff, v70")
    allred_hi(72, 73, "v_max_f32")
    a("v_sub_f32 v64, v64, v72\nv_sub_f32 v68, v68, v72\nv_exp_f32 v64, v64\nv_exp_f32 v68, v68")
    a("v_mul_f32 v73, v64, v65\nv_fmac_f32 v73, v68, v69\nv_mov_b32 v65, v64\nv_mov_b32 v69, v68")
    dpp("v_add_f32", 73, 73, "row_ror:8")
    allred_hi(73, 71, "v_add_f32")
    a("s_waitcnt vmcnt(0)")
    for k in range(8): a(f"v_xor_b32 v{80+k}, v{80+k}, v{PATL+(k&3)}")
    a(f"""
v_or3_b32 v71, v80, v81, v82
v_or3_b32 v71, v83, v84, v71
v_or3_b32 v71, v85, v86, v71
v_or_b32 v71, v87, v71
v_and_or_b32 v70, v71, {sM1}, v70
v_cmp_ne_u32 vcc, 0, v70
s_cbranch_vccz L_h3d
s_sub_u32 {sCNT}, {sCNT}, 1
s_cbranch_scc0 L_h3
L_h3d:
""")
    stamp(11)
    def unp(d, s):
        a(f"v_lshl_or_b32 v{d}, v{s}, 16, v14\nv_and_or_b32 v{d+1}, v{s}, {sMSK}, v14")
    a("ds_write_b64 v74, v[72:73]")
    for e in range(4): unp(88 + 2 * e, 80 + e)
    for e in range(4): unp(96 + 2 * e, 84 + e)
    for e in range(0, 8, 2): a(f"v_pk_mul_f32 v[{88+e}:{89+e}], v[64:65], v[{88+e}:{89+e}]")
    for e in range(0, 8, 2): a(f"v_pk_fma_f32 v[{88+e}:{89+e}], v[68:69], v[{96+e}:{97+e}], v[{88+e}:{89+e}]")
    for c in range(4): a(f"v_permlane32_swap_b32 v{88+c}, v{92+c}")
    a("v_pk_add_f32 v[88:89], v[88:89], v[92:93]\nv_pk_add_f32 v[90:91], v[90:91], v[94:95]")
    for c in range(2): a(f"v_permlane16_swap_b32 v{88+c}, v{90+c}")
    a("v_pk_add_f32 v[88:89], v[88:89], v[90:91]")
    a(f"""
v_cvt_pk_bf16_f32 v88, v88, v89
ds_write_b32 v75, v88
s_cmp_lg_u32 {t5}, {sW}
s_cbranch_scc1 L_nhf
""")
    gather(hfloads, [("0xff", [(104 + k, vT8) for k in range(4)])], 108, "L_hf", sel="wave", issue=False)
    a("v_add_f32 v104, v104, v105\nv_add_f32 v105, v106, v107")
    allred_lo8([104, 105], "v_add_f32")
    a("ds_write_b64 v13, v[104:105]\nL_nhf:\ns_waitcnt lgkmcnt(0)")
    stamp2(3)
    a("s_barrier")
    stamp2(4)
    a(f"""
ds_read_b64 v[64:65], v78
ds_read_b128 v[80:83], v76
ds_read_b64_tr_b16 v[88:89], v77
ds_read_b64_tr_b16 v[90:91], v77 offset:4096
ds_read_b128 v[84:87], v76 offset:64
ds_read_b64_tr_b16 v[92:93], v77 offset:8192
ds_read_b64_tr_b16 v[94:95], v77 offset:12288
ds_read_b128 v[68:71], v79
""")
    a("ds_read_b64 v[124:125], v13\ns_waitcnt lgkmcnt(8)")
    a("v_max_f32_dpp v66, v64, v64 quad_perm:[1,0,3,2] row_mask:0xf bank_mask:0xf")
    a("s_waitcnt lgkmcnt(5)\nv_mfma_f32_16x16x32_bf16 v[96:99], v[80:83], v[88:91], 0")
    dpp("v_max_f32", 66, 66, "quad_perm:[2,3,0,1]")
    a("s_waitcnt lgkmcnt(2)\nv_mfma_f32_16x16x32_bf16 v[96:99], v[84:87], v[92:95], v[96:99]")
    dpp("v_max_f32", 66, 66, "row_half_mirror")
    a("""
s_waitcnt lgkmcnt(0)
v_sub_f32 v64, v64, v66
v_sub_f32 v68, v68, v66
v_sub_f32 v70, v70, v66
v_exp_f32 v64, v64
v_exp_f32 v68, v68
v_exp_f32 v70, v70
v_mul_f32 v64, v64, v65
v_add_f32 v96, v96, v97
v_add_f32 v98, v98, v99
""")
    dpp("v_add_f32", 64, 64, "quad_perm:[1,0,3,2]")
    a("v_mul_f32 v96, v96, v68\nv_fmac_f32 v96, v98, v70")
    dpp("v_add_f32", 64, 64, "quad_perm:[2,3,0,1]")
    a("v_mov_b32 v97, v96")
    dpp("v_add_f32", 64, 64, "row_half_mirror")
    a("v_permlane16_swap_b32 v96, v97\nv_rcp_f32 v64, v64\nv_add_f32 v96, v96, v97\nv_mov_b32 v97, v96\nv_permlane32_swap_b32 v96, v97\nv_add_f32 v96, v96, v97")
    a("v_mul_f32 v96, v96, v64")
    tag8(96)
    if L4:
        a(f"""
s_mov_b32 {u0}, 0x1000
s_add_u32 {u1}, {t2}, 0x1000
s_mov_b64 exec, 0xffff
buffer_store_dword v96, v15, {S(R_WS)}, {u0} offen
s_mov_b64 exec, -1
""")
    else:
        a(f"""
s_mov_b64 exec, 0xffff
buffer_store_dword v96, v15, {S(R_WS)}, 0 offen sc1
s_mov_b64 exec, 1
buffer_atomic_add v12, off, {S(R_WS)}, {u0} sc1
""")
    stamp(12)
    c1 = -2.0 * math.sqrt(2 / math.pi) * math.log2(math.e)
    def ffn2():
        a(f"""
v_cvt_pk_bf16_f32 v124, v124, v125
v_and_b32 v125, {sMSK}, v124
v_lshlrev_b32 v124, 16, v124
v_mul_f32 v100, v124, v124
v_mov_b32 v101, 0x{f2u(c1):08x}
v_fmac_f32 v101, 0x{f2u(c1*0.044715):08x}, v100
v_mul_f32 v100, v101, v124
v_exp_f32 v100, v100
v_add_f32 v100, 1.0, v100
v_rcp_f32 v100, v100
v_mul_f32 v124, v124, v100
""")
        bfround(124, 124)
        a("v_mul_f32 v124, v124, v125")
        bfround(13, 124)
        for e in range(8): a(f"v_mul_f32 v{168+e}, v13, v{168+e}")
        rs8(168, 125)
        tag8(125)
    gpub = f"s_mov_b64 exec, 0xffff\nbuffer_store_dword v96, v15, {S(R_WS)}, 0 offen sc1\ns_mov_b64 exec, -1"
    if L4:
        if opt.get("f2f", 0): ffn2()
        a(f"buffer_load_dwordx2 v[104:105], v9, {S(R_WS)}, {u1} offen sc1")
        if EA5 == 3: a(f"s_mov_b64 exec, 1\nbuffer_atomic_add v12, off, {S(R_WS)}, s12 sc1\ns_mov_b64 exec, -1")
        if not opt.get("f2f", 0): ffn2()
        if EA5 == 2: a(f"s_mov_b64 exec, 1\nbuffer_atomic_add v12, off, {S(R_WS)}, s12 sc1\ns_mov_b64 exec, -1")
        a(f"s_mov_b32 {sCNT}, {NL}\ns_waitcnt vmcnt({1 if EA5 >= 2 else 0})\ns_branch L_l4w\nL_l4:\nbuffer_load_dwordx2 v[104:105], v9, {S(R_WS)}, {u1} offen sc1\ns_waitcnt vmcnt(0)\nL_l4w:")
        check([("0xff", [(104, vT8), (105, vT8)])], 68)
        a(f"s_cbranch_vccz L_l4d\ns_sub_u32 {sCNT}, {sCNT}, 1\ns_cbranch_scc0 L_l4")
        a(gpub)
        gather([f"buffer_load_dwordx2 v[104:105], v9, {S(R_WS)}, {t2} offen sc1"], [("0xff", [(104, vT8), (105, vT8)])], 68, "L_h4", sel="wave")
        a("L_l4d:")
    else:
        hint(u1, 8, "L_c4", mid=ffn2, execset=True)
        stamp2(8)
        gather([f"buffer_load_dwordx2 v[104:105], v9, {S(R_WS)}, {t2} offen sc1"], [("0xff", [(104, vT8), (105, vT8)])], 68, "L_h4", sel="wave")
    stamp(13)
    if EA5 == 1: a(f"s_mov_b64 exec, 1\nbuffer_atomic_add v12, off, {S(R_WS)}, s12 sc1\ns_mov_b64 exec, -1")
    allred_lo8([104, 105], "v_add_f32")
    a("v_cvt_pk_bf16_f32 v64, v104, v105")
    for c in range(8): a(f"v_dot2_f32_bf16 v{72+c}, v{WOP+c}, v64, 0")
    rs8(72, 124)
    tag8(124)
    a(f"buffer_store_dwordx2 v[124:125], v11, {S(R_WS)}, {t3} offen sc1")
    if not EA5: a(f"s_mov_b64 exec, 1\nbuffer_atomic_add v12, off, {S(R_WS)}, s12 sc1\ns_mov_b64 exec, -1")
    stamp(14)
    if L4 and not opt.get("gp2", 1): a(gpub)
    if L4 and opt.get("gp2", 1):
        a(f"s_cmp_ge_u32 {sFG}, 24\ns_cbranch_scc1 L_isf\n{gpub}\ns_branch L_fin\nL_isf:")
    else: a(f"s_cmp_lt_u32 {sFG}, 24\ns_cbranch_scc1 L_fin")
    hint("s11", 32, "L_c5", mid=lambda: a("global_load_ushort v127, v176, s[4:5]" + (("\n" + gpub) if (L4 and opt.get("gp2", 1)) else "")))
    stamp2(7)
    gather([f"buffer_load_dwordx4 {V(64+4*k)}, v{vL16}, {S(R_WS)}, {['s8','s9'][k]} offen sc1" for k in range(2)],
           [("0xff", [(64 + k, vT8) for k in range(8)])], 80, "L_h5")
    stamp(1)
    a("""
v_pk_add_f32 v[64:65], v[64:65], v[68:69]
v_pk_add_f32 v[66:67], v[66:67], v[70:71]
v_permlane32_swap_b32 v64, v66
v_permlane32_swap_b32 v65, v67
v_pk_add_f32 v[64:65], v[64:65], v[66:67]
v_permlane16_swap_b32 v64, v65
v_add_f32 v64, v64, v65
""")
    dpp("v_add_f32", 64, 64, "row_ror:8"); dpp("v_add_f32", 64, 64, "row_ror:4")
    a(f"""
ds_write_b32 v177, v64
s_waitcnt lgkmcnt(0)
s_barrier
s_cmp_lg_u32 {sW}, 0
s_cbranch_scc1 L_fin
ds_read_b128 v[72:75], v178 offset:256
ds_read_b128 v[76:79], v178 offset:272
ds_read_b128 v[64:67], v178
ds_read_b128 v[68:71], v178 offset:16
s_waitcnt lgkmcnt(2)
v_pk_add_f32 v[72:73], v[72:73], v[74:75]
v_pk_add_f32 v[76:77], v[76:77], v[78:79]
v_pk_add_f32 v[72:73], v[72:73], v[76:77]
v_add_f32 v72, v72, v73
""")
    bfround(72, 72)
    a(f"""
v_mul_f32 v73, 0x{f2u(-math.log2(math.e)):08x}, v72
v_exp_f32 v73, v73
s_waitcnt lgkmcnt(0)
v_pk_add_f32 v[64:65], v[64:65], v[66:67]
v_pk_add_f32 v[68:69], v[68:69], v[70:71]
v_add_f32 v73, 1.0, v73
v_rcp_f32 v73, v73
v_pk_add_f32 v[64:65], v[64:65], v[68:69]
v_add_f32 v64, v64, v65
v_mul_f32 v72, v72, v73
v_cvt_pk_bf16_f32 v64, v64, v72
v_lshlrev_b32 v65, 16, v64
v_and_b32 v64, {sMSK}, v64
v_mul_f32 v64, v64, v65
""")
    bfround(64, 64)
    a(f"""
v_lshlrev_b32 v12, 16, v127
v_add_f32 v64, v64, v12
v_cvt_pk_bf16_f32 v64, v64, v64
s_mov_b64 exec, 0xff
global_store_short v176, v64, s[24:25]
s_cmp_lg_u32 s13, 0
s_cbranch_scc1 L_fin0
s_mov_b64 exec, 1
v_mov_b32 v65, {sTAG}
buffer_store_dword v65, off, {S(R_WS)}, 0 sc1
L_fin0:
s_mov_b64 exec, -1
L_fin:
""")
    if opt.get("hold", 0):
        if "holdwg" in opt: a(f"s_cmp_lg_u32 s2, {opt['holdwg']}\ns_cbranch_scc1 L_end")
        a(f"s_add_u32 s{ST0+4}, s{ST0}, {opt['hold']}\nL_hold:\ns_memrealtime s[{ST0+2}:{ST0+3}]\ns_waitcnt lgkmcnt(0)\ns_sub_u32 s{ST0+5}, s{ST0+2}, s{ST0+4}\ns_cmp_lt_i32 s{ST0+5}, 0\ns_cbranch_scc1 L_hold")
    if DIAG:
        stamp(15)
        for k in range(16): a(f"v_mov_b32 v{64+k}, s{ST0+2*k}")
        a(f"""
s_lshl_b32 {t0}, s2, 3
s_add_u32 {t0}, {t0}, {sW}
s_lshl_b32 {t0}, {t0}, 6
s_add_u32 {t0}, {t0}, {STAMP}
v_mov_b32 v8, 0
s_mov_b64 exec, 1
""")
        for k in range(4): a(f"buffer_store_dwordx4 {V(64+4*k)}, v8, {S(R_WS)}, {t0} offen offset:{16*k}")
    a("L_end:\ns_endpgm")
    if opt.get("nost", 0):
        out = []; seen_b = False
        for l in a.lines:
            if l.strip() == "L_ba:": seen_b = True
            if not seen_b and "sc1" in l and ("store" in l or (opt["nost"] >= 2 and "load" in l)): l = "    s_nop 0"
            out.append(l)
        a.lines = out
    lines, n = hazard.fix(a.lines)
    body = "\n".join(lines) + "\n"
    return wrap_single(body, 256, 512, LDS_BYTES, 256), n

if __name__ == "__main__":
    name = sys.argv[1]
    opt = {}
    for kv in sys.argv[2:]:
        k, v = kv.split("=")
        try: opt[k] = int(v, 0)
        except ValueError: opt[k] = v
    s, n = gen(opt)
    open(name, "w").write(s)
    print("wrote", name, "nops inserted", n, "lines", s.count("\n"))
```

```python
import sys, math, struct
from asmlib import *
import hazard

def f2u(x): return struct.unpack("<I", struct.pack("<f", x))[0]

STAMP = 0x2000000
KTAG = 0x9E3779B9
RS = 1056
L_P = 128 * RS
L_MX = L_P + 4096
L_ST2 = L_MX + 512
L_QS = L_ST2 + 64
L_XN = L_QS + 512
L_RI = L_XN + 128
L_HS = L_RI + 16
L_FIN = L_HS + 64
L_OR = L_FIN + 1024
L_Q = (L_OR + 2560 + 255) // 256 * 256
L_UV = L_Q
LDS_BYTES = L_Q + 16 * RS
assert LDS_BYTES <= 163840, LDS_BYTES

def gen(opt):
    SPREAD = opt.get("spread", 0)
    DIAG = opt.get("diag", 0)
    THR = opt.get("thr", 8)
    N0 = opt.get("n0", 0); N3 = opt.get("n3", 8); UKE = opt.get("uke", 0)
    REL = opt.get("rel", "iss")
    NT = opt.get("nt", "nt")
    NTC = opt.get("ntc", NT)
    if NT == "-": NT = ""
    if NTC == "-": NTC = ""
    SPIN = opt.get("spin", 100000)
    HINT = opt.get("hint", 200)
    T1AT = opt.get("t1at", "s")
    WOAT = opt.get("woat", "h3")
    H4C = opt.get("h4c", 1)
    H2C = opt.get("h2c", 0)
    H1C = opt.get("h1c", 0)
    C5 = opt.get("c5", 0); L4 = opt.get("l4", 1); NL = opt.get("nl", 24); L1 = opt.get("l1", 0); RELP = opt.get("relp", 1)
    PP = opt.get("pp", 0)
    LNF = opt.get("lnf", 1)
    B0AT = opt.get("b0at", 6)
    HB = opt.get("hb", 0x41000)
    IB = 16384 + 384
    OH = 8 * IB
    SB = 16384 + 192
    QP = 0x10000; CP = QP + 0x1000; FP = QP + 0x4000; QA = QP + 0x3000
    CN = QP + 0x3800
    CN4 = QP + 0x3C00
    CN1 = CN4 + 64
    ML = 0x900000
    OP = 0xA00000
    SP = 0x1400000
    if opt.get("compact", 0):
        HB = 0x6000; ML = 0xE0000; SP = 0xF0000; OP = 0x200000
    QPL = 0x6000
    assert HB >= 0x7000 and QP + 32 * HB <= ML
    a = Asm()
    sW = "s3"
    sX, sIDX, sG, sJ, sH, sI, sFG, sTAG = "s30", "s31", "s32", "s33", "s34", "s35", "s36", "s37"
    sLO, sHI, sCNT = "s38", "s39", "s40"
    t0, t1, t2, t3, t4, t5 = "s41", "s42", "s43", "s44", "s45", "s46"
    u0, u1 = "s26", "s27"
    w0_, w1_ = "s6", "s7"
    sMSK = "s47"
    R_WS, R_A, R_B, R_O, R_D = 48, 52, 56, 60, 64
    sM8, sM1 = "s68", "s69"
    sHB, sFB, sGB, sH8 = "s30", "s31", "s17", "s16"
    ST0 = 70
    def srd(d, p, n):
        a(f"s_mov_b32 s{d}, s{p}\ns_mov_b32 s{d+1}, s{p+1}\ns_mov_b32 s{d+2}, {n}\ns_mov_b32 s{d+3}, 0x00020000")
    def S(r): return f"s[{r}:{r+3}]"
    def V(r, n=4): return f"v[{r}:{r+n-1}]"
    def stamp2(k):
        if DIAG == 2: a(f"s_memrealtime s[{ST0+2*k}:{ST0+2*k+1}]\ns_waitcnt lgkmcnt(0)")
    def stamp3(k):
        if DIAG == 3: a(f"s_memrealtime s[{ST0+2*k}:{ST0+2*k+1}]")
    def stamp(k):
        if DIAG == 3 and 1 <= k <= 6: return
        if DIAG == 2 and 1 <= k <= 8: return
        if DIAG: a(f"s_memrealtime s[{ST0+2*k}:{ST0+2*k+1}]\ns_waitcnt lgkmcnt(0)")
    vL16, vN, vG, vM8, vR8 = 1, 2, 3, 4, 5
    vT8 = 7
    XP = 16; PATL = 20; PATG = 24; WB = 32
    QF = 64; AF = 128; TF = 192
    WO = 48; WD = 56; WOP = 160
    def allred_hi(v, tmp, op):
        a(f"v_mov_b32 v{tmp}, v{v}\nv_permlane16_swap_b32 v{v}, v{tmp}\n{op} v{v}, v{v}, v{tmp}")
        a(f"v_mov_b32 v{tmp}, v{v}\nv_permlane32_swap_b32 v{v}, v{tmp}\n{op} v{v}, v{v}, v{tmp}")
    def dpp(op, d, s, mode, bank="0xf"):
        a(f"{op}_dpp v{d}, v{s}, v{s} {mode} row_mask:0xf bank_mask:{bank}")
    def allred_lo8(vs, op):
        if isinstance(vs, int): vs = [vs]
        for m in ("quad_perm:[1,0,3,2]", "quad_perm:[2,3,0,1]", "row_half_mirror"):
            for v in vs: dpp(op, v, v, m)
    def wave_sum(v, tmp):
        allred_lo8(v, "v_add_f32"); dpp("v_add_f32", v, v, "row_mirror"); allred_hi(v, tmp, "v_add_f32")
    def rs8(acc, out):
        for c in range(4): a(f"v_permlane32_swap_b32 v{acc+c}, v{acc+c+4}")
        a(f"v_pk_add_f32 {V(acc,2)}, {V(acc,2)}, {V(acc+4,2)}\nv_pk_add_f32 {V(acc+2,2)}, {V(acc+2,2)}, {V(acc+6,2)}")
        for c in range(2): a(f"v_permlane16_swap_b32 v{acc+c}, v{acc+c+2}")
        a(f"v_pk_add_f32 {V(acc,2)}, {V(acc,2)}, {V(acc+2,2)}")
        dpp("v_add_f32", out, acc, "row_ror:8", "0x3"); dpp("v_add_f32", out, acc + 1, "row_ror:8", "0xc")
    def bfround(d, s):
        a(f"v_cvt_pk_bf16_f32 v{d}, v{s}, v{s}\nv_lshlrev_b32 v{d}, 16, v{d}")
    def gemv(W, P, acc, out, waits=None, nk=4):
        for k in range(nk):
            if waits: waits(k)
            for e in range(4):
                a(f"v_perm_b32 v{P+2*e}, v{W+8*k+4+e}, v{W+8*k+e}, {sLO}")
                a(f"v_perm_b32 v{P+2*e+1}, v{W+8*k+4+e}, v{W+8*k+e}, {sHI}")
            for c in range(8):
                a(f"v_dot2_f32_bf16 v{acc+c}, v{P+c}, v{XP+k}, {'0' if k == 0 else 'v%d' % (acc+c)}")
        rs8(acc, out)
    def tag8(v): a(f"v_and_or_b32 v{v}, v{v}, {sM8}, v{vT8}")
    def check(checks, bad):
        for gi, (mask, pairs) in enumerate(checks):
            b = bad + gi
            for d, e in pairs: a(f"v_xor_b32 v{d}, v{d}, v{e}")
            ds = [d for d, e in pairs]
            if len(ds) == 2: a(f"v_or_b32 v{b}, v{ds[0]}, v{ds[1]}")
            else:
                a(f"v_or3_b32 v{b}, v{ds[0]}, v{ds[1]}, v{ds[2]}")
                k = 3
                while k < len(ds):
                    if k + 1 < len(ds): a(f"v_or3_b32 v{b}, v{ds[k]}, v{ds[k+1]}, v{b}"); k += 2
                    else: a(f"v_or_b32 v{b}, v{ds[k]}, v{b}"); k += 1
            if gi == 0: a(f"v_and_b32 v{b}, {mask}, v{b}")
            else: a(f"v_and_or_b32 v{bad}, v{b}, {mask}, v{bad}")
        a(f"v_cmp_ne_u32 vcc, 0, v{bad}")
    def gather(loads, checks, bad, name, sel="lane", mid=None, issue=True):
        L = a.label(name); D = a.label(name + "d")
        if issue:
            for l in loads: a(l)
        if mid: mid()
        a(f"s_mov_b32 {sCNT}, {SPIN}")
        a(f"{L}:\ns_waitcnt vmcnt(0)")
        check(checks, bad)
        a(f"s_cbranch_vccz {D}\ns_sub_u32 {sCNT}, {sCNT}, 1\ns_cbranch_scc1 {D}")
        if sel == "quad": a("s_wqm_b64 exec, vcc")
        elif sel == "lane": a("s_mov_b64 exec, vcc")
        for l in loads: a(l)
        a(f"s_branch {L}\n{D}:")
        if sel != "wave": a("s_mov_b64 exec, -1")
    def hint(soff, target, name, mid=None, execset=False, lanes=1, voff=None):
        L = a.label(name); D = a.label(name + "d"); W = a.label(name + "w")
        em = (1 << lanes) - 1
        at = f"buffer_atomic_add v126, off, {S(R_WS)}, {soff} sc0 sc1" if voff is None else f"buffer_atomic_add v126, {voff}, {S(R_WS)}, {soff} offen sc0 sc1"
        if not execset: a(f"s_mov_b64 exec, {em}")
        a(f"v_mov_b32 v126, 0\n{at}")
        if mid:
            a("s_mov_b64 exec, -1"); mid(); a(f"s_mov_b64 exec, {em}")
        a(f"""
s_mov_b32 {sCNT}, {HINT}
s_branch {W}
{L}:
{"s_mov_b64 exec, vcc" if lanes > 1 else ""}
v_mov_b32 v126, 0
{at}
s_sub_u32 {sCNT}, {sCNT}, 1
s_cbranch_scc1 {D}
{W}:
s_waitcnt vmcnt(0)
v_cmp_gt_u32 vcc, {target}, v126
s_cbranch_vccnz {L}
{D}:
s_mov_b64 exec, -1
""")
    def cnaddr(dst, k, tmp):
        a(f"s_and_b32 {tmp}, {k}, 31\ns_mul_i32 {tmp}, {tmp}, {HB}\ns_lshr_b32 {dst}, {k}, 5\ns_lshl_b32 {dst}, {dst}, 7\ns_add_u32 {dst}, {dst}, {tmp}\ns_add_u32 {dst}, {dst}, {CN}")
    def mk_pat(dst, sel):
        a(f"""
v_and_b32 v{dst}, 1, v{sel}
v_lshlrev_b32 v{dst}, 16, v{dst}
v_and_b32 v{dst+2}, 2, v{sel}
v_lshlrev_b32 v{dst+2}, 15, v{dst+2}
v_or_b32 v{dst+2}, 1, v{dst+2}
v_mov_b32 v{dst+1}, {t4}
v_mov_b32 v{dst+3}, {t5}
""")
    def mk_tags():
        a(f"""
s_add_u32 {sTAG}, {sTAG}, {KTAG}
s_and_b32 {t5}, {sTAG}, 0xff
v_mov_b32 v{vT8}, {t5}
s_and_b32 {t4}, {sTAG}, 3
s_mul_i32 {t4}, {t4}, 0x8001
s_and_b32 {t4}, {t4}, {sM1}
s_bfe_u32 {t5}, {sTAG}, 0x20002
s_mul_i32 {t5}, {t5}, 0x8001
s_and_b32 {t5}, {t5}, {sM1}
""")
        mk_pat(PATL, 0); mk_pat(PATG, vG)
    def consts():
        a(f"""
s_mov_b32 {sLO}, 0x05040100
s_mov_b32 {sHI}, 0x07060302
s_mov_b32 {sMSK}, 0xffff0000
s_mov_b32 {sM8}, 0xffffff00
s_mov_b32 {sM1}, 0x00010001
s_mov_b32 {sH8}, 0x8000
s_mul_i32 {sHB}, {sH}, {HB}
s_mul_i32 {sFB}, {sFG}, {HB}
s_mul_i32 {sGB}, {sG}, {16*HB}
""")
        if DIAG:
            for k in range(1, 16): a(f"s_mov_b32 s{ST0+2*k}, 0")
        srd(R_WS, 28, 0x10000000)

    stamp_entry = f"s_memrealtime s[{ST0}:{ST0+1}]" if (DIAG or opt.get("hold", 0)) else ""
    a(f"""
{stamp_entry}
s_getpc_b64 s[{R_B}:{R_B+1}]
L_pc:
v_subrev_u32 v8, 256, v0
v_lshlrev_b32 v8, 6, v8
v_cmp_gt_u32 vcc, L_end-L_pc, v8
s_and_saveexec_b64 s[4:5], vcc
s_cbranch_execz L_npf
global_load_dword v9, v8, s[{R_B}:{R_B+1}]
L_npf:
s_mov_b64 exec, s[4:5]
s_cmp_ge_u32 s2, 256
s_cbranch_scc1 L_end
s_load_dwordx16 s[4:19], s[0:1], 0
s_load_dwordx8 s[20:27], s[0:1], 64
s_load_dwordx2 s[28:29], s[0:1], 96
v_lshrrev_b32 v1, 6, v0
v_and_b32 v0, 63, v0
v_readfirstlane_b32 {sW}, v1
v_lshlrev_b32 v{vL16}, 4, v0
v_mov_b32 v19, 0
v_mov_b32 v60, 0
v_mov_b32 v61, 0
v_and_b32 v{vN}, 15, v0
v_lshrrev_b32 v{vG}, 4, v0
v_and_b32 v{vM8}, 7, v0
v_lshrrev_b32 v{vR8}, 3, v0
s_and_b32 {sX}, s2, 7
s_lshr_b32 {sIDX}, s2, 3
s_lshr_b32 {sG}, {sIDX}, 4
s_and_b32 {sJ}, {sIDX}, 7
s_lshr_b32 {t0}, {sIDX}, 3
s_and_b32 {t1}, {t0}, 1
s_lshl_b32 {sH}, {sG}, 4
s_lshl_b32 {t2}, {sX}, 1
s_add_u32 {sH}, {sH}, {t2}
s_add_u32 {sH}, {sH}, {t1}
s_lshl_b32 {sI}, {sX}, 4
s_and_b32 {t1}, {sIDX}, 15
s_add_u32 {sI}, {sI}, {t1}
s_lshl_b32 {sFG}, {t0}, 3
s_add_u32 {sFG}, {sFG}, {sX}
v_lshlrev_b32 v64, 4, v{vR8}
s_lshl_b32 {t0}, {sJ}, 7
v_add_u32 v64, {t0}, v64
v_lshlrev_b32 v65, 16, v{vR8}
v_lshl_add_u32 v65, v{vM8}, 4, v65
s_lshl_b32 {t0}, {sJ}, 19
s_lshl_b32 {t1}, {sH}, 8
s_add_u32 {t2}, {t0}, {t1}
s_lshl_b32 {t1}, {sW}, 7
s_add_u32 {t0}, {t2}, {t1}
s_mov_b32 s{R_A+2}, 4194304
s_mov_b32 s{R_A+3}, 0x00020000
s_cmp_ge_u32 {sW}, 2
s_waitcnt lgkmcnt(0)
s_cbranch_scc1 L_not01
s_mov_b64 s[{R_A}:{R_A+1}], s[8:9]
s_setprio 3
global_load_dwordx4 v[8:11], v{vL16}, s[4:5]
global_load_dwordx4 v[12:15], v64, s[4:5]
""")
    for u in range(8):
        a(f"buffer_load_dwordx4 {V(WB+4*u)}, v65, {S(R_A)}, {t0} offen {NT}")
        if u < 7: a(f"s_add_u32 {t0}, {t0}, 8192")
    a(f"s_load_dword {sTAG}, s[28:29], 0")
    if N0: a("s_barrier")
    UK = 128
    consts()
    a(f"""
s_add_u32 {t3}, {sHB}, {QP}
s_lshl_b32 {t0}, {sJ}, 9
s_add_u32 {t0}, {t0}, {t3}
s_lshl_b32 {t1}, {sW}, 8
s_add_u32 {t0}, {t0}, {t1}
v_lshl_add_u32 v29, v0, 2, {t0}
s_waitcnt vmcnt(9)
""")
    for e in range(4):
        a(f"v_lshlrev_b32 v{64+2*e}, 16, v{8+e}\nv_and_b32 v{65+2*e}, {sMSK}, v{8+e}")
    a("""
v_pk_add_f32 v[72:73], v[64:65], v[66:67]
v_pk_add_f32 v[74:75], v[68:69], v[70:71]
v_pk_add_f32 v[72:73], v[72:73], v[74:75]
v_add_f32 v72, v72, v73
""")
    wave_sum(72, 73)
    a(f"v_mul_f32 v72, 0x{f2u(1/512):08x}, v72")
    bfround(76, 72)
    for e in range(8): a(f"v_sub_f32 v{64+e}, v{64+e}, v72")
    a("v_mul_f32 v74, v64, v64\nv_mul_f32 v75, v65, v65")
    for e in range(2, 8): a(f"v_fmac_f32 v{74+(e&1)}, v{64+e}, v{64+e}")
    a("v_add_f32 v74, v74, v75")
    wave_sum(74, 73)
    a(f"v_mul_f32 v74, 0x{f2u(1/512):08x}, v74")
    bfround(74, 74)
    a(f"v_add_f32 v74, 0x{f2u(1e-5):08x}, v74")
    bfround(74, 74)
    a("v_sqrt_f32 v74, v74")
    bfround(74, 74)
    a("v_rcp_f32 v74, v74")
    a("s_waitcnt vmcnt(8)")
    for e in range(4):
        a(f"v_lshlrev_b32 v{80+2*e}, 16, v{12+e}\nv_and_b32 v{81+2*e}, {sMSK}, v{12+e}")
    for e in range(8): a(f"v_sub_f32 v{80+e}, v{80+e}, v76")
    for e in range(4): a(f"v_cvt_pk_bf16_f32 v{XP+e}, v{80+2*e}, v{81+2*e}")
    for e in range(4):
        a(f"v_lshlrev_b32 v{64+2*e}, 16, v{XP+e}\nv_and_b32 v{65+2*e}, {sMSK}, v{XP+e}")
    for e in range(8): a(f"v_mul_f32 v{64+e}, v{64+e}, v74")
    for e in range(4): a(f"v_cvt_pk_bf16_f32 v{XP+e}, v{64+2*e}, v{65+2*e}")
    a(f"""
s_waitcnt lgkmcnt(0)
s_add_u32 {t5}, {sTAG}, {KTAG}
s_and_b32 {t5}, {t5}, 0xff
v_mov_b32 v{vT8}, {t5}
""")
    stamp(1)
    gemv(WB, 80, 96, 30, waits=lambda k: a(f"s_waitcnt vmcnt({6-2*k})"))
    tag8(30)
    if L1: a(f"s_movk_i32 {t0}, {QPL}\nbuffer_store_dword v30, v29, {S(R_WS)}, {t0} offen")
    else: a(f"buffer_store_dword v30, v29, {S(R_WS)}, 0 offen sc1")
    stamp(2)
    a(f"v_lshlrev_b32 v104, 4, v{vR8}\nv_add_u32 v104, {L_XN}, v104\nds_write_b128 v104, {V(XP)}")
    a("s_waitcnt lgkmcnt(0)" if (L1 and RELP) else "s_waitcnt vmcnt(0) lgkmcnt(0)")
    stamp(3)
    a("s_barrier")
    if L4: a(f"s_lshl_b32 {t0}, {sJ}, 9\ns_add_u32 {t0}, {t0}, {sHB}\ns_add_u32 {t0}, {t0}, {CP+0x1000}\nv_lshlrev_b32 v64, 3, v0\nbuffer_load_dword v65, v64, {S(R_WS)}, {t0} offen")
    mk_tags()
    if L1: a(f"s_sleep 32\nbuffer_store_dword v30, v29, {S(R_WS)}, 0 offen sc1" if opt.get("gdel", 0) else f"buffer_store_dword v30, v29, {S(R_WS)}, 0 offen sc1")
    a("s_branch L_b0")
    a(f"L_not01:\ns_load_dword {sTAG}, s[28:29], 0")
    a(f"s_cmp_ge_u32 {sW}, 4\ns_cbranch_scc1 L_loader")
    consts()
    a(f"""
s_lshl_b32 {t0}, {sJ}, 7
s_add_u32 {t0}, {t0}, {sHB}
s_add_u32 {t0}, {t0}, {CN4}
""")
    a(f"s_and_b32 {t4}, s2, 63\ns_lshl_b32 {t5}, {sG}, 6\ns_or_b32 {t4}, {t4}, {t5}\ns_and_b32 {t5}, s2, 64\ns_lshl_b32 {t5}, {t5}, 1\ns_or_b32 {t4}, {t4}, {t5}")
    cnaddr(t3, t4, t1)
    a(f"""
s_cmp_eq_u32 {sW}, 2
s_cselect_b32 {t0}, {t0}, {t3}
v_mov_b32 v64, 0
v_mov_b32 v65, 0
v_mov_b32 v66, 0
v_mov_b32 v67, 0
s_mov_b64 exec, 0xff
{"s_cbranch_scc1 L_nz" if (L4 and not C5) else ""}
buffer_store_dwordx4 v[64:67], v{vL16}, {S(R_WS)}, {t0} offen sc1
L_nz:
s_mov_b64 exec, -1
""")
    if L1: a(f"s_add_u32 {t0}, {sHB}, {QP+QPL}\nv_lshlrev_b32 v68, 6, v0\nbuffer_load_dword v69, v68, {S(R_WS)}, {t0} offen")
    if N0: a("s_barrier")
    srd(R_B, 10, 4194304)
    a(f"""
s_and_b32 s11, {sW}, 1
v_lshlrev_b32 v28, 13, v{vN}
v_lshl_add_u32 v28, v{vG}, 4, v28
s_lshl_b32 {t1}, s11, 18
s_add_u32 {u0}, {t2}, {t1}
s_add_u32 {u1}, {u0}, 131072
s_add_u32 {t3}, {sHB}, {QP}
v_and_b32 v104, 31, v0
v_lshrrev_b32 v105, 5, v0
v_lshlrev_b32 v106, 11, v105
v_lshl_add_u32 v106, v104, 4, v106
s_waitcnt {"vmcnt(0) " if opt.get("ukd", 0) else ""}lgkmcnt(0)
""")
    for t in range(2):
        for s_ in range(4):
            a(f"buffer_load_dwordx4 {V(UK+16*t+4*s_)}, v28, {S(R_B)}, {u0 if t == 0 else u1} offen offset:{64*s_} {NT}")
    a(f"""
s_lshl_b32 {t1}, s11, 8
s_add_u32 {t1}, {t1}, {L_QS}
v_and_b32 v107, 1, v104
v_lshlrev_b32 v107, 6, v107
v_lshl_add_u32 v107, v105, 5, v107
v_and_b32 v111, 14, v104
v_add_u32 v107, v111, v107
v_and_b32 v111, 16, v104
v_lshl_add_u32 v107, v111, 3, v107
v_add_u32 v107, {t1}, v107
v_lshlrev_b32 v108, 4, v{vG}
v_add_u32 v108, {t1}, v108
v_lshlrev_b32 v109, 5, v{vN}
v_lshl_add_u32 v109, v{vG}, 3, v109
v_lshrrev_b32 v110, 4, v109
s_lshl_b32 {t1}, {sJ}, 7
s_add_u32 {t0}, {sHB}, {t1}
s_lshl_b32 {t1}, s11, 6
s_add_u32 {t0}, {t0}, {t1}
s_add_u32 {t0}, {t0}, {QA}
v_add_u32 v109, {t0}, v109
""")
    mk_tags()
    mk_pat(120, 110)
    a(f"""
v_and_b32 v110, 1, v{vG}
v_cmp_eq_u32 vcc, 1, v110
v_cndmask_b32 v120, v120, v122, vcc
v_cndmask_b32 v121, v121, v123, vcc
v_mov_b32 v110, {L_RI}
s_setprio 3
s_barrier
""")
    G1 = 64
    sc = (128 ** -0.5) * math.log2(math.e)
    a(f"v_mov_b32 v111, 0x{f2u(sc):08x}")
    if L1:
        a(f"s_add_u32 {t0}, {t3}, {QPL}\ns_mov_b32 {sCNT}, {NL}\nL_l1:")
        for u in range(4): a(f"buffer_load_dwordx4 {V(G1+4*u)}, v106, {S(R_WS)}, {t0} offen offset:{u*512} sc1")
        a("s_waitcnt vmcnt(0)")
        check([("0xff", [(G1 + k, vT8) for k in range(16)])], 96)
        a(f"s_cbranch_vccz L_l1d\ns_mov_b64 exec, vcc\ns_sub_u32 {sCNT}, {sCNT}, 1\ns_cbranch_scc0 L_l1")
    gather([f"buffer_load_dwordx4 {V(G1+4*u)}, v106, {S(R_WS)}, {t3} offen offset:{u*512} sc1" for u in range(4)],
           [("0xff", [(G1 + k, vT8) for k in range(16)])], 96, "L_h1")
    if L1: a("L_l1d:\ns_mov_b64 exec, -1")
    stamp(4)
    for e in (0, 2): a(f"v_pk_add_f32 {V(G1+e,2)}, {V(G1+e,2)}, {V(G1+4+e,2)}\nv_pk_add_f32 {V(G1+8+e,2)}, {V(G1+8+e,2)}, {V(G1+12+e,2)}")
    for e in (0, 2): a(f"v_pk_add_f32 {V(G1+e,2)}, {V(G1+e,2)}, {V(G1+8+e,2)}")
    a(f"""
v_permlane32_swap_b32 v{G1}, v{G1+2}
v_permlane32_swap_b32 v{G1+1}, v{G1+3}
v_pk_add_f32 {V(G1,2)}, {V(G1,2)}, {V(G1+2,2)}
v_mul_f32 v{G1}, v111, v{G1}
v_mul_f32 v{G1+1}, v111, v{G1+1}
v_cvt_pk_bf16_f32 v{G1}, v{G1}, v{G1+1}
ds_write_b16 v107, v{G1}
ds_write_b16_d16_hi v107, v{G1} offset:16
s_waitcnt lgkmcnt(0)
""")
    for s_ in range(4): a(f"ds_read_b128 {V(80+4*s_)}, v108 offset:{64*s_}")
    for s_ in range(4):
        a(f"s_waitcnt lgkmcnt({3-s_})")
        for t in range(2):
            a(f"v_mfma_f32_16x16x32_bf16 {V(112+4*t)}, {V(UK+16*t+4*s_)}, {V(80+4*s_)}, {'0' if s_ == 0 else V(112+4*t)}")
    a(f"""
s_mov_b32 exec_lo, 0x00020002
s_mov_b32 exec_hi, 0x00020002
v_mov_b32 v112, v116
v_mov_b32 v113, v117
v_mov_b32 v114, v118
v_mov_b32 v115, v119
s_mov_b32 exec_lo, 0x00030003
s_mov_b32 exec_hi, 0x00030003
v_add_u32 v112, 0x10000, v112
v_add_u32 v113, 0x10000, v113
v_add_u32 v114, 0x10000, v114
v_add_u32 v115, 0x10000, v115
v_perm_b32 v12, v113, v112, {sHI}
v_perm_b32 v13, v115, v114, {sHI}
v_bfi_b32 v12, {sM1}, v120, v12
v_bfi_b32 v13, {sM1}, v121, v13
buffer_store_dwordx2 v[12:13], v109, {S(R_WS)}, 0 offen sc1
s_mov_b64 exec, -1
""")
    stamp(5)
    a("s_branch L_b0")
    a("L_loader:")
    srd(R_A, 6, 16777216)
    consts()
    a("s_waitcnt lgkmcnt(0)")
    mk_tags()
    GUAT = opt.get("guat", 2)
    a(f"""
s_mul_i32 {u1}, {sJ}, {64*3584}
s_lshl_b32 {t3}, {sFG}, 7
s_add_u32 {u1}, {u1}, {t3}
s_and_b32 {t1}, {sW}, 1
s_mul_i32 {t1}, {t1}, {32*3584}
s_add_u32 {u1}, {u1}, {t1}
s_cmp_lt_u32 {sFG}, 28
s_cselect_b32 s{R_B+2}, 1835008, 0
s_bitcmp0_b32 {sW}, 1
s_cselect_b64 s[{R_B}:{R_B+1}], s[18:19], s[20:21]
s_mov_b32 s{R_B+3}, 0x00020000
v_mul_u32_u24 v13, {4*3584}, v{vR8}
v_lshl_add_u32 v13, v{vM8}, 4, v13
v_add_u32 v14, 7168, v13
s_sub_u32 {t0}, {sW}, 4
""")
    if SPREAD:
        a(f"""
s_lshl_b32 {t1}, {t0}, 4
s_add_u32 {t1}, {t1}, {sI}
s_and_b32 {t1}, {t1}, 127
s_xor_b32 {t3}, {t1}, 64
s_add_u32 {t3}, {t3}, 512
s_lshl_b32 {t2}, {t0}, 7
s_add_u32 {t1}, {t1}, {t2}
s_add_u32 {t3}, {t3}, {t2}
s_lshl_b32 {t1}, {t1}, 14
s_lshl_b32 {t3}, {t3}, 14
s_mul_i32 {t2}, {t0}, {16*RS}
""")
    else:
        a(f"""
s_lshl_b32 {t1}, {sI}, 17
s_lshl_b32 {t2}, {t0}, 14
s_add_u32 {t1}, {t1}, {t2}
s_add_u32 {t3}, {t1}, 65536
s_mul_i32 {t2}, {t0}, {16*RS}
""")
    if N0: a("s_barrier")
    c0, c1, c2 = "s8", "s9", "s10"
    a(f"s_mov_b32 {c0}, {t1}\ns_mov_b32 {c1}, {t2}\ns_mov_b32 {c2}, {t3}")
    def cgroup(grp, R):
        if grp == N0: a("s_barrier")
        if grp == GUAT:
            for k in range(4):
                a(f"buffer_load_dwordx4 {V(WB+16+4*k)}, v{13+(k>>1)}, {S(R_B)}, {u1} offen offset:{3584*(k&1)} {NT}")
                if THR: a(f"s_waitcnt vmcnt({THR})")
        for r in range(4):
            a(f"s_add_u32 m0, {c1}, {32*r}")
            a(f"buffer_load_dwordx4 v{vL16}, {S(R)}, {c0} offen offset:{1024*r} {NTC} lds")
            if THR: a(f"s_waitcnt vmcnt({THR})")
        if grp == 3: a(f"s_mov_b32 {c0}, {c2}\ns_add_u32 {c1}, {c1}, {52*RS}")
        elif grp < 7: a(f"s_add_u32 {c0}, {c0}, 4096\ns_add_u32 {c1}, {c1}, {4*RS}")
    for grp in range(B0AT): cgroup(grp, R_A)
    stamp(1)
    a(f"s_waitcnt vmcnt({4*(B0AT-4)})")
    a("L_b0:")
    srd(R_O, 14, 4194304)
    srd(R_D, 22, 1835008)
    srd(R_A, 12, 4194304)
    srd(R_B, 6, 16777216)
    a(f"""
s_lshl_b32 {t0}, {sG}, 6
s_lshl_b32 {t1}, {sW}, 3
s_add_u32 {t0}, {t0}, {t1}
s_and_b32 {t1}, s2, 7
s_add_u32 {t0}, {t0}, {t1}
""")
    cnaddr("s11", t0, t1)
    a(f"s_lshl_b32 {t0}, {sG}, 6\ns_lshl_b32 {t1}, {sJ}, 3\ns_add_u32 {t0}, {t0}, {t1}\ns_add_u32 {t0}, {t0}, {sW}")
    cnaddr("s18", t0, t1)
    a(f"""
v_mul_u32_u24 v8, {RS}, v{vN}
v_lshl_add_u32 v8, v{vG}, 4, v8
s_mul_i32 {t0}, {sW}, {16*RS}
v_add_u32 v9, {t0}, v8
v_add_u32 v8, {L_Q}, v8
v_lshrrev_b32 v10, 2, v0
v_mul_u32_u24 v10, {RS}, v10
v_and_b32 v11, 3, v0
v_lshl_add_u32 v10, v11, 3, v10
s_lshl_b32 {t0}, {sW}, 7
v_add_u32 v10, {t0}, v10
v_add_u32 v11, {64*RS}, v10
s_lshl_b32 {t0}, {sJ}, 19
s_lshl_b32 {t1}, {sH}, 8
s_add_u32 {t0}, {t0}, {t1}
s_and_b32 {t1}, {sW}, 3
s_lshl_b32 {t1}, {t1}, 17
s_add_u32 {u0}, {t0}, {t1}
s_lshl_b32 {t1}, {sJ}, 10
s_add_u32 {u1}, {sFB}, {t1}
s_and_b32 {t1}, {sW}, 3
s_lshl_b32 {t1}, {t1}, 8
s_add_u32 {u1}, {u1}, {t1}
s_add_u32 {u1}, {u1}, {FP}
s_and_b32 {t1}, {sW}, 1
s_lshl_b32 {t1}, {t1}, 6
s_add_u32 {t1}, {t1}, {L_XN}
v_lshl_add_u32 v15, v{vR8}, 3, {t1}
v_lshlrev_b32 v13, 11, v{vR8}
v_lshl_add_u32 v13, v{vM8}, 4, v13
v_lshlrev_b32 v14, 13, v{vR8}
v_lshl_add_u32 v14, v{vM8}, 4, v14
v_lshrrev_b32 v28, 1, v{vN}
v_xor_b32 v28, v28, v{vG}
v_lshlrev_b32 v28, 5, v28
v_and_b32 v29, 1, v0
v_lshl_add_u32 v28, v29, 4, v28
v_lshl_add_u32 v28, v{vG}, 13, v28
v_xor_b32 v29, 128, v28
v_add_u32 v29, 32768, v29
v_mul_u32_u24 v30, {OH}, v{vM8}
v_lshl_add_u32 v30, v{vG}, 4, v30
v_and_b32 v31, 8, v0
v_lshl_add_u32 v30, v31, 3, v30
s_mul_i32 {t3}, {sG}, {16*OH}
s_mul_i32 {t4}, {sW}, {IB}
s_add_u32 {t3}, {t3}, {t4}
s_lshl_b32 {t4}, {sI}, 7
s_add_u32 {t3}, {t3}, {t4}
s_add_u32 {t3}, {t3}, {OP}
v_add_u32 v30, {t3}, v30
v_add_u32 v31, {8*OH}, v30
v_lshlrev_b32 v6, 4, v{vN}
v_add_u32 v6, {L_MX}, v6
s_lshl_b32 {t2}, {sH}, 17
s_lshl_b32 {t3}, {sJ}, 14
s_add_u32 {t2}, {t2}, {t3}
s_lshl_b32 {t5}, {sW}, 7
s_add_u32 {w0_}, {t2}, {t5}
s_lshl_b32 {t3}, {sFG}, 16
s_add_u32 {t5}, {t5}, {t3}
s_lshl_b32 {t3}, {sJ}, 10
s_add_u32 {w1_}, {t5}, {t3}
s_mul_i32 {t3}, {sW}, {4*RS}
s_add_u32 {t3}, {t3}, {L_Q}
v_add_u32 v12, {t3}, v{vL16}
s_mul_i32 {t0}, {sW}, {4*HB}
s_add_u32 {t0}, {t0}, {sGB}
s_add_u32 {t0}, {t0}, {QA}
s_add_u32 {t1}, {t0}, {HB}
s_add_u32 {t2}, {t1}, {HB}
s_add_u32 {t3}, {t2}, {HB}
s_add_u32 {t4}, {u0}, 65536
s_cmp_ge_u32 {sW}, 4
""")
    wol = [f"buffer_load_dwordx4 {V(WO)}, v13, {S(R_O)}, {w0_} offen {NT}", f"buffer_load_dwordx4 {V(WO+4)}, v13, {S(R_O)}, {w0_} offen offset:1024 {NT}",
           f"buffer_load_dwordx4 {V(WD)}, v14, {S(R_D)}, {w1_} offen {NT}"]
    WO03 = opt.get("wo03", "ba")
    if WO03 == "b0":
        a("s_cbranch_scc1 L_nwo")
        for l in wol: a(l)
        a("L_nwo:")
    a("s_waitcnt lgkmcnt(0)\ns_barrier")
    def rdTh(ks, T, half):
        r = TF + 16 * ks + 4 * T + 2 * half
        a(f"ds_read_b64_tr_b16 {V(r,2)}, {'v11' if half else 'v10'} offset:{16*ks*RS + 32*T}")
    G2 = 64
    h2loads = [f"buffer_load_dwordx4 {V(G2+4*k)}, v{vL16}, {S(R_WS)}, {[t0,t1,t2,t3][k]} offen sc1" for k in range(4)]
    T1T = opt.get("t1t", THR)
    NE = opt.get("ne", 7)
    LT = opt.get("lt", "")
    if LT: NE = 0
    tl = [f"buffer_load_dwordx4 {V(WB+4*k)}, v{28+(k&1)}, {S(R_A)}, {u0 if k < 2 else t4} offen {NT}" for k in range(4)] + wol
    PFR = 80
    a("s_cbranch_scc1 L_ng")
    for l in h2loads: a(l)
    stamp(6)
    for ks in range(4):
        if ks == 2: a("s_waitcnt lgkmcnt(7)")
        for T in range(4): rdTh(ks, T, 0)
    gather(h2loads, [(sM1, [(G2 + 4 * k + e, PATL + e) for k in range(4) for e in range(4)])], 96, "L_h2g", sel="quad", issue=False)
    a("s_waitcnt lgkmcnt(8)")
    for k in range(4): a(f"ds_write_b128 v12, {V(G2+4*k)} offset:{k*RS}")
    W3 = opt.get("w3", "bq")
    a(f"s_setprio 0\nv_add_u32 v76, {L_P}, v{vL16}\ns_waitcnt lgkmcnt(0)\ns_barrier")
    stamp(7)
    if W3 == "bq":
        for l in wol: a(l)
    a("s_barrier\nds_read_b128 v[68:71], v6")
    for ks in range(4):
        if ks == 3: a("s_waitcnt lgkmcnt(7)")
        for T in range(4): rdTh(ks, T, 1)
    if W3 == "b2":
        for l in wol: a(l)
    a(f"""
v_max3_f32 v66, v68, v69, v70
v_max_f32 v66, v66, v71
v_and_b32 v66, {sM8}, v66
s_barrier
""")
    for ks in range(4): a(f"ds_read_b128 {V(PFR+4*ks)}, v76 offset:{1024*ks}")
    a("s_branch L_pv\nL_ng:")
    AFa = TF; AFb = AF; SA = 12; SB_ = 60
    a(f"v_subrev_u32 v12, {64*RS}, v9\nds_read_b64 {V(XP,2)}, v15")
    for s in range(8): a(f"ds_read_b128 {V(AFa+4*s)}, v12 offset:{64*s}")
    for grp in range(B0AT, 8):
        cgroup(grp, R_B)
        if grp == B0AT:
            a("s_waitcnt lgkmcnt(0)")
            for s in range(8, 16): a(f"ds_read_b128 {V(AFa+4*s)}, v12 offset:{64*s}")
    stamp(6)
    gemv(WB + 16, 64, 72, 18, nk=2)
    tag8(18)
    a(f"""
v_lshlrev_b32 v19, 2, v0
v_mov_b32 v16, v13
v_mov_b32 v17, v14
s_waitcnt lgkmcnt(0)
s_barrier
""")
    stamp(7)
    tl2 = [l.replace("v13,", "v16,").replace("v14,", "v17,") for l in tl]
    PRE = 12
    for s in range(PRE): a(f"ds_read_b128 {V(QF+4*s)}, v8 offset:{64*s}")
    for s in range(16):
        rem = min(16, s + PRE) - (s + 1)
        a(f"s_waitcnt lgkmcnt({rem})")
        a(f"v_mfma_f32_16x16x32_bf16 {V(SA)}, {V(AFa+4*s)}, {V(QF+4*s)}, {'0' if s == 0 else V(SA)}")
        if s + PRE < 16: a(f"ds_read_b128 {V(QF+4*(s+PRE))}, v8 offset:{64*(s+PRE)}")
    for ks in range(2):
        for T in range(4): rdTh(ks, T, 0)
    for l in tl2[:NE]:
        if T1T: a(f"s_waitcnt vmcnt({T1T-1})")
        a(l)
    a("s_waitcnt lgkmcnt(7)")
    for ks in range(2, 4):
        for T in range(4): rdTh(ks, T, 0)
    a(f"s_setprio 3\ns_waitcnt vmcnt({NE}) lgkmcnt(3)")
    stamp(8)
    for s in range(PRE): a(f"ds_read_b128 {V(AFb+4*s)}, v9 offset:{64*s}")
    for l in tl2[NE:]: a(l)
    a(f"""
buffer_store_dword v18, v19, {S(R_WS)}, {u1} offen sc1
s_and_b32 {t0}, {sW}, 3
s_lshl_b32 {t2}, {t0}, 2
s_lshl_b32 {t0}, {t0}, 10
s_add_u32 {t3}, {t0}, {L_P}
v_add_u32 v28, {t2}, v6
v_add_u32 v29, {t3}, v{vL16}
v_max3_f32 v16, v{SA}, v{SA+1}, v{SA+2}
""")
    for s in range(16):
        rem = min(16, s + PRE) - (s + 1)
        a(f"s_waitcnt lgkmcnt({rem})")
        a(f"v_mfma_f32_16x16x32_bf16 {V(SB_)}, {V(AFb+4*s)}, {V(QF+4*s)}, {'0' if s == 0 else V(SB_)}")
        if s + PRE < 16: a(f"ds_read_b128 {V(AFb+4*(s+PRE))}, v9 offset:{64*(s+PRE)}")
    a(f"""
v_add_u32 v76, {L_P}, v{vL16}
v_max3_f32 v67, v{SB_}, v{SB_+1}, v{SB_+2}
v_max3_f32 v66, v16, v{SA+3}, v{SB_+3}
v_max_f32 v66, v66, v67
""")
    allred_hi(66, 67, "v_max_f32")
    a("ds_write_b32 v28, v66")
    stamp3(1)
    a("s_waitcnt lgkmcnt(0)\ns_barrier")
    if DIAG == 3: stamp3(2); a("s_waitcnt lgkmcnt(0)")
    a("ds_read_b128 v[68:71], v6")
    for ks in range(2):
        for T in range(4): rdTh(ks, T, 1)
    a(f"""
s_waitcnt lgkmcnt(8)
v_max3_f32 v66, v68, v69, v70
v_max_f32 v66, v66, v71
v_and_b32 v66, {sM8}, v66
""")
    for b in (SA, SB_):
        for r in range(4): a(f"v_sub_f32 v{b+r}, v{b+r}, v66")
    for b in (SA, SB_):
        for r in range(4): a(f"v_exp_f32 v{b+r}, v{b+r}")
    a(f"""
v_cvt_pk_bf16_f32 v68, v{SA}, v{SA+1}
v_cvt_pk_bf16_f32 v69, v{SA+2}, v{SA+3}
v_cvt_pk_bf16_f32 v70, v{SB_}, v{SB_+1}
v_cvt_pk_bf16_f32 v71, v{SB_+2}, v{SB_+3}
s_waitcnt lgkmcnt(6)
ds_write_b128 v29, v[68:71]
""")
    for ks in range(2, 4):
        for T in range(4): rdTh(ks, T, 1)
    if DIAG == 3: stamp3(3); a("s_waitcnt lgkmcnt(0)")
    a("s_waitcnt lgkmcnt(8)\ns_setprio 0\ns_barrier")
    if DIAG == 3: stamp3(4); a("s_waitcnt lgkmcnt(0)")
    for ks in range(4): a(f"ds_read_b128 {V(PFR+4*ks)}, v76 offset:{1024*ks}")
    a("L_pv:")
    def late_tail():
        L = a.label("L_lt")
        a(f"""
v_lshlrev_b32 v62, 11, v{vR8}
v_lshl_add_u32 v62, v{vM8}, 4, v62
v_lshlrev_b32 v63, 13, v{vR8}
v_lshl_add_u32 v63, v{vM8}, 4, v63
s_cmp_lt_u32 {sW}, 4
s_cbranch_scc1 {L}
""")
        for k in range(4): a(f"buffer_load_dwordx4 {V(WB+4*k)}, v{60+(k&1)}, {S(R_A)}, {u0 if k < 2 else 's19'} offen {NT}")
        a(f"{L}:")
        for l in wol: a(l.replace("v13,", "v62,").replace("v14,", "v63,"))
    if LT == "b3": late_tail()
    OA = AF; LA = AF + 16; ONE = AF + 20
    a(f"v_mov_b32 v77, 1\ns_cmp_lg_u32 {sW}, 2\ns_cbranch_scc1 L_noml")
    for r in range(4): a(f"v_mov_b32 v{ONE+r}, 0x3f803f80")
    a(f"""
v_lshlrev_b32 v75, 3, v0
s_lshl_b32 {t3}, {sG}, 14
s_lshl_b32 {t4}, {sI}, 7
s_add_u32 {t3}, {t3}, {t4}
s_add_u32 {t3}, {t3}, {ML}
v_or_b32 v108, v66, v{vT8}
""")
    for ks in range(4):
        a(f"s_waitcnt lgkmcnt({3-ks})")
        a(f"v_mfma_f32_16x16x32_bf16 {V(LA)}, {V(ONE)}, {V(PFR+4*ks)}, {'0' if ks == 0 else V(LA)}")
    a(f"""
v_and_or_b32 v109, v{LA}, {sM8}, v{vT8}
s_mov_b64 exec, 0xffff
buffer_store_dwordx2 v[108:109], v75, {S(R_WS)}, {t3} offen sc1
s_mov_b64 exec, -1
L_noml:
""")
    for ks in range(4):
        a(f"s_waitcnt lgkmcnt({3-ks})")
        for T in range(4):
            a(f"v_mfma_f32_16x16x32_bf16 {V(OA+4*T)}, {V(TF+16*ks+4*T)}, {V(PFR+4*ks)}, {'0' if ks == 0 else V(OA+4*T)}")
    EA3 = opt.get("ea3", 1); EA5 = opt.get("ea5", 1)
    if EA3 == 2: a(f"s_mov_b64 exec, 1\nbuffer_atomic_add v77, off, {S(R_WS)}, s11 sc1\ns_mov_b64 exec, -1")
    for T in range(4):
        a(f"v_cvt_pk_bf16_f32 v{96+2*T}, v{OA+4*T}, v{OA+4*T+1}\nv_cvt_pk_bf16_f32 v{97+2*T}, v{OA+4*T+2}, v{OA+4*T+3}")
        if T < 2:
            a(f"v_bfi_b32 v{104+2*T}, {sM1}, v{PATG+2*T}, v{96+2*T}\nv_bfi_b32 v{105+2*T}, {sM1}, v{PATG+2*T+1}, v{97+2*T}")
        a(f"v_bfi_b32 v{96+2*T}, {sM1}, v{PATG+(2*T)%4}, v{96+2*T}\nv_bfi_b32 v{97+2*T}, {sM1}, v{PATG+(2*T+1)%4}, v{97+2*T}")
    stamp3(5)
    if EA3 == 1: a(f"s_mov_b64 exec, 1\nbuffer_atomic_add v77, off, {S(R_WS)}, s11 sc1\ns_mov_b64 exec, -1")
    for e in range(4): a(f"v_mov_b32_dpp v{96+e}, v{100+e} row_ror:8 row_mask:0xf bank_mask:0xc")
    a(f"buffer_store_dwordx4 v[96:99], v30, {S(R_WS)}, 0 offen sc1")
    for e in range(4): a(f"v_mov_b32_dpp v{100+e}, v{104+e} row_ror:8 row_mask:0xf bank_mask:0x3")
    a(f"buffer_store_dwordx4 v[100:103], v31, {S(R_WS)}, 0 offen sc1")
    a("s_mov_b64 exec, 1" if EA3 else f"s_mov_b64 exec, 1\nbuffer_atomic_add v77, off, {S(R_WS)}, s11 sc1")
    stamp(9)
    if LT == "pv": a("s_mov_b64 exec, -1"); late_tail(); a("s_mov_b64 exec, 1")
    hfloads = [f"buffer_load_dword v{104+k}, v10, {S(R_WS)}, {t4} offen offset:{256*k} sc1" for k in range(4)]
    def ffn2s():
        for e in range(4):
            a(f"v_lshlrev_b32 v{168+2*e}, 16, v{WD+e}\nv_and_b32 v{169+2*e}, {sMSK}, v{WD+e}")
        for e in range(4):
            a(f"v_perm_b32 v{WOP+2*e}, v{WO+4+e}, v{WO+e}, {sLO}\nv_perm_b32 v{WOP+2*e+1}, v{WO+4+e}, v{WO+e}, {sHI}")
    def fin_addr():
        a(f"""
s_lshr_b32 s14, s2, 4
s_and_b32 s14, s14, 7
s_lshl_b32 s15, {sW}, 3
s_add_u32 s15, s15, s14
s_add_u32 s15, s15, 128
""")
        if C5:
            a(f"s_lshl_b32 s14, s14, 2\ns_and_b32 s15, s2, 3\ns_add_u32 s14, s14, s15\ns_mul_i32 s14, s14, {HB}\ns_lshl_b32 s15, {sW}, 7\ns_add_u32 s12, s14, s15\ns_add_u32 s12, s12, {CN4}")
        else: cnaddr("s12", "s15", "s14")
        a(f"""
s_sub_u32 s13, {sFG}, 24
s_and_b32 s13, s13, 7
s_lshl_b32 s15, s13, 3
s_add_u32 s14, s15, {sW}
s_add_u32 s14, s14, 128
""")
        if C5:
            a(f"s_mul_i32 s14, {sW}, {4*HB}\ns_lshl_b32 s11, s13, 7\ns_add_u32 s11, s11, s14\ns_add_u32 s11, s11, {CN4}\nv_mul_u32_u24 v179, {HB}, v0")
        else: cnaddr("s11", "s14", "s10")
        a(f"""
s_add_u32 s15, s15, {sJ}
s_mul_i32 s8, s15, {SB}
s_lshl_b32 s9, {sW}, 10
s_add_u32 s8, s8, s9
s_add_u32 s8, s8, {SP}
s_add_u32 s9, s8, 8192
s_lshl_b32 s13, s13, 6
s_add_u32 s13, s13, {sJ}
s_lshl_b32 s13, s13, 1
v_lshl_add_u32 v176, v{vM8}, 4, s13
v_bfe_u32 v177, v0, 4, 1
v_lshlrev_b32 v177, 8, v177
v_and_b32 v178, 3, v0
v_lshl_add_u32 v177, v178, 6, v177
v_lshrrev_b32 v178, 5, v0
v_lshl_add_u32 v177, v178, 5, v177
s_lshl_b32 s14, {sW}, 2
s_add_u32 s14, s14, {L_FIN}
v_add_u32 v177, s14, v177
v_lshlrev_b32 v178, 5, v{vM8}
v_add_u32 v178, {L_FIN}, v178
""")
    def mid3():
        fin_addr()
        a(f"""
s_cmp_lt_u32 {sW}, 4
s_cbranch_scc1 L_pc0
s_lshl_b32 {t0}, {sW}, 12
s_add_u32 {t0}, {t0}, {L_UV - 4*4096}
v_add_u32 v9, {t0}, v{vL16}
s_waitcnt vmcnt({ {'': 8, 'b3': 7, 'pv': 4}[LT] })
""")
        for u in range(4): a(f"ds_write_b128 v9, {V(WB+4*u)} offset:{1024*u}")
        a(f"""
L_pc0:
v_lshlrev_b32 v8, 7, v{vR8}
s_lshl_b32 {t0}, {sG}, 14
s_lshl_b32 {t1}, {sW}, 11
s_add_u32 {t0}, {t0}, {t1}
s_and_b32 {t1}, {sH}, 15
s_lshl_b32 {t1}, {t1}, 3
s_add_u32 {t0}, {t0}, {t1}
s_add_u32 {t0}, {t0}, {ML}
s_mul_i32 {t1}, {sH}, {OH}
s_mul_i32 {t2}, {sJ}, {IB}
s_add_u32 {t1}, {t1}, {t2}
s_lshl_b32 {t2}, {sW}, 11
s_add_u32 {t1}, {t1}, {t2}
s_add_u32 {t1}, {t1}, {OP}
s_lshl_b32 {t2}, {sW}, 3
s_add_u32 {t2}, {t2}, {L_ST2}
v_mov_b32 v74, {t2}
v_bfe_u32 v75, v0, 3, 1
v_mul_u32_u24 v75, 160, v75
v_lshl_add_u32 v75, v{vM8}, 4, v75
v_lshl_add_u32 v75, v{vG}, 2, v75
s_mul_i32 {t2}, {sW}, 320
s_add_u32 {t2}, {t2}, {L_OR}
v_add_u32 v75, {t2}, v75
v_mul_u32_u24 v76, 160, v{vN}
v_lshl_add_u32 v76, v{vG}, 4, v76
v_add_u32 v76, {L_OR}, v76
v_lshrrev_b32 v77, 2, v0
v_and_b32 v78, 7, v77
v_xor_b32 v78, {sW}, v78
v_lshlrev_b32 v77, 8, v77
v_lshl_add_u32 v77, v78, 5, v77
v_and_b32 v78, 3, v0
v_lshl_add_u32 v77, v78, 3, v77
v_add_u32 v77, {L_UV}, v77
v_lshlrev_b32 v78, 3, v{vM8}
v_add_u32 v78, {L_ST2}, v78
v_lshlrev_b32 v79, 4, v{vG}
v_add_u32 v79, {L_ST2}, v79
v_mov_b32 v14, {sH8}
s_lshl_b32 {t2}, {sW}, 9
s_add_u32 {t2}, {sHB}, {t2}
s_lshl_b32 {t3}, {sJ}, 6
s_add_u32 {t2}, {t2}, {t3}
s_add_u32 {t2}, {t2}, {CP}
v_lshl_add_u32 v15, v0, 2, {t2}
s_lshl_b32 {t2}, {sJ}, 9
s_add_u32 {t2}, {sHB}, {t2}
s_add_u32 {t2}, {t2}, {CP}
v_lshlrev_b32 v9, 6, v{vM8}
v_lshl_add_u32 v9, v{vR8}, 3, v9
v_mul_u32_u24 v11, {SB}, v{vR8}
v_lshl_add_u32 v11, v{vM8}, 3, v11
s_mul_i32 {t3}, {sW}, {8*SB}
s_lshl_b32 {t4}, s2, 6
s_add_u32 {t3}, {t3}, {t4}
s_add_u32 {t3}, {t3}, {SP}
v_lshlrev_b32 v10, 10, v{vM8}
v_lshl_add_u32 v10, v{vR8}, 2, v10
s_lshl_b32 {t4}, {sJ}, 5
s_add_u32 {t4}, {sFB}, {t4}
s_add_u32 {t4}, {t4}, {FP}
s_lshl_b32 {u0}, {sW}, 7
s_add_u32 {u0}, {u0}, {sHB}
s_add_u32 {u0}, {u0}, {CN4}
s_lshl_b32 {u1}, {sJ}, 7
s_add_u32 {u1}, {u1}, {sHB}
s_add_u32 {u1}, {u1}, {CN4}
v_mov_b32 v12, 1
v_lshlrev_b32 v13, 3, v{vR8}
v_add_u32 v13, {L_HS}, v13
s_and_b32 {t5}, s2, 7
""")
    hint("s18", 16, "L_c3", mid=mid3, execset=True)
    stamp(10)
    h3loads = [f"buffer_load_dwordx2 v[64:65], v8, {S(R_WS)}, {t0} offen sc1",
            f"buffer_load_dwordx2 v[68:69], v8, {S(R_WS)}, {t0} offen offset:1024 sc1",
            f"buffer_load_dwordx4 v[80:83], v{vL16}, {S(R_WS)}, {t1} offen sc1",
            f"buffer_load_dwordx4 v[84:87], v{vL16}, {S(R_WS)}, {t1} offen offset:1024 sc1"]
    a(f"s_mov_b32 {sCNT}, {SPIN}\ns_cmp_lg_u32 {t5}, {sW}\ns_cbranch_scc1 L_h3")
    for l in hfloads: a(l)
    a("L_h3:")
    for l in h3loads: a(l)
    ffn2s()
    a(f"""
s_waitcnt vmcnt(2)
v_xor_b32 v64, v64, v{vT8}
v_xor_b32 v68, v68, v{vT8}
v_xor_b32 v65, v65, v{vT8}
v_xor_b32 v69, v69, v{vT8}
v_max_f32 v72, v64, v68
v_or3_b32 v70, v64, v65, v68
v_or_b32 v70, v70, v69
""")
    dpp("v_max_f32", 72, 72, "row_ror:8")
    a("v_and_b32 v70, 0xff, v70")
    allred_hi(72, 73, "v_max_f32")
    a("v_sub_f32 v64, v64, v72\nv_sub_f32 v68, v68, v72\nv_exp_f32 v64, v64\nv_exp_f32 v68, v68")
    a("v_mul_f32 v73, v64, v65\nv_fmac_f32 v73, v68, v69\nv_mov_b32 v65, v64\nv_mov_b32 v69, v68")
    dpp("v_add_f32", 73, 73, "row_ror:8")
    allred_hi(73, 71, "v_add_f32")
    a("s_waitcnt vmcnt(0)")
    for k in range(8): a(f"v_xor_b32 v{80+k}, v{80+k}, v{PATL+(k&3)}")
    a(f"""
v_or3_b32 v71, v80, v81, v82
v_or3_b32 v71, v83, v84, v71
v_or3_b32 v71, v85, v86, v71
v_or_b32 v71, v87, v71
v_and_or_b32 v70, v71, {sM1}, v70
v_cmp_ne_u32 vcc, 0, v70
s_cbranch_vccz L_h3d
s_sub_u32 {sCNT}, {sCNT}, 1
s_cbranch_scc0 L_h3
L_h3d:
""")
    stamp(11)
    def unp(d, s):
        a(f"v_lshl_or_b32 v{d}, v{s}, 16, v14\nv_and_or_b32 v{d+1}, v{s}, {sMSK}, v14")
    a("ds_write_b64 v74, v[72:73]")
    for e in range(4): unp(88 + 2 * e, 80 + e)
    for e in range(4): unp(96 + 2 * e, 84 + e)
    for e in range(0, 8, 2): a(f"v_pk_mul_f32 v[{88+e}:{89+e}], v[64:65], v[{88+e}:{89+e}]")
    for e in range(0, 8, 2): a(f"v_pk_fma_f32 v[{88+e}:{89+e}], v[68:69], v[{96+e}:{97+e}], v[{88+e}:{89+e}]")
    for c in range(4): a(f"v_permlane32_swap_b32 v{88+c}, v{92+c}")
    a("v_pk_add_f32 v[88:89], v[88:89], v[92:93]\nv_pk_add_f32 v[90:91], v[90:91], v[94:95]")
    for c in range(2): a(f"v_permlane16_swap_b32 v{88+c}, v{90+c}")
    a("v_pk_add_f32 v[88:89], v[88:89], v[90:91]")
    a(f"""
v_cvt_pk_bf16_f32 v88, v88, v89
ds_write_b32 v75, v88
s_cmp_lg_u32 {t5}, {sW}
s_cbranch_scc1 L_nhf
""")
    gather(hfloads, [("0xff", [(104 + k, vT8) for k in range(4)])], 108, "L_hf", sel="wave", issue=False)
    a("v_add_f32 v104, v104, v105\nv_add_f32 v105, v106, v107")
    allred_lo8([104, 105], "v_add_f32")
    a("ds_write_b64 v13, v[104:105]\nL_nhf:\ns_waitcnt lgkmcnt(0)")
    stamp2(3)
    a("s_barrier")
    stamp2(4)
    a(f"""
ds_read_b64 v[64:65], v78
ds_read_b128 v[80:83], v76
ds_read_b64_tr_b16 v[88:89], v77
ds_read_b64_tr_b16 v[90:91], v77 offset:4096
ds_read_b128 v[84:87], v76 offset:64
ds_read_b64_tr_b16 v[92:93], v77 offset:8192
ds_read_b64_tr_b16 v[94:95], v77 offset:12288
ds_read_b128 v[68:71], v79
""")
    a("ds_read_b64 v[124:125], v13\ns_waitcnt lgkmcnt(8)")
    a("v_max_f32_dpp v66, v64, v64 quad_perm:[1,0,3,2] row_mask:0xf bank_mask:0xf")
    a("s_waitcnt lgkmcnt(5)\nv_mfma_f32_16x16x32_bf16 v[96:99], v[80:83], v[88:91], 0")
    dpp("v_max_f32", 66, 66, "quad_perm:[2,3,0,1]")
    a("s_waitcnt lgkmcnt(2)\nv_mfma_f32_16x16x32_bf16 v[96:99], v[84:87], v[92:95], v[96:99]")
    dpp("v_max_f32", 66, 66, "row_half_mirror")
    a("""
s_waitcnt lgkmcnt(0)
v_sub_f32 v64, v64, v66
v_sub_f32 v68, v68, v66
v_sub_f32 v70, v70, v66
v_exp_f32 v64, v64
v_exp_f32 v68, v68
v_exp_f32 v70, v70
v_mul_f32 v64, v64, v65
v_add_f32 v96, v96, v97
v_add_f32 v98, v98, v99
""")
    dpp("v_add_f32", 64, 64, "quad_perm:[1,0,3,2]")
    a("v_mul_f32 v96, v96, v68\nv_fmac_f32 v96, v98, v70")
    dpp("v_add_f32", 64, 64, "quad_perm:[2,3,0,1]")
    a("v_mov_b32 v97, v96")
    dpp("v_add_f32", 64, 64, "row_half_mirror")
    a("v_permlane16_swap_b32 v96, v97\nv_rcp_f32 v64, v64\nv_add_f32 v96, v96, v97\nv_mov_b32 v97, v96\nv_permlane32_swap_b32 v96, v97\nv_add_f32 v96, v96, v97")
    a("v_mul_f32 v96, v96, v64")
    tag8(96)
    if L4:
        a(f"""
s_mov_b32 {u0}, 0x1000
s_add_u32 {u1}, {t2}, 0x1000
s_mov_b64 exec, 0xffff
buffer_store_dword v96, v15, {S(R_WS)}, {u0} offen
s_mov_b64 exec, -1
""")
    else:
        a(f"""
s_mov_b64 exec, 0xffff
buffer_store_dword v96, v15, {S(R_WS)}, 0 offen sc1
s_mov_b64 exec, 1
buffer_atomic_add v12, off, {S(R_WS)}, {u0} sc1
""")
    stamp(12)
    c1 = -2.0 * math.sqrt(2 / math.pi) * math.log2(math.e)
    def ffn2():
        a(f"""
v_cvt_pk_bf16_f32 v124, v124, v125
v_and_b32 v125, {sMSK}, v124
v_lshlrev_b32 v124, 16, v124
v_mul_f32 v100, v124, v124
v_mov_b32 v101, 0x{f2u(c1):08x}
v_fmac_f32 v101, 0x{f2u(c1*0.044715):08x}, v100
v_mul_f32 v100, v101, v124
v_exp_f32 v100, v100
v_add_f32 v100, 1.0, v100
v_rcp_f32 v100, v100
v_mul_f32 v124, v124, v100
""")
        bfround(124, 124)
        a("v_mul_f32 v124, v124, v125")
        bfround(13, 124)
        for e in range(8): a(f"v_mul_f32 v{168+e}, v13, v{168+e}")
        rs8(168, 125)
        tag8(125)
    gpub = f"s_mov_b64 exec, 0xffff\nbuffer_store_dword v96, v15, {S(R_WS)}, 0 offen sc1\ns_mov_b64 exec, -1"
    if L4:
        if opt.get("f2f", 0): ffn2()
        a(f"buffer_load_dwordx2 v[104:105], v9, {S(R_WS)}, {u1} offen sc1")
        if EA5 == 3: a(f"s_mov_b64 exec, 1\nbuffer_atomic_add v12, off, {S(R_WS)}, s12 sc1\ns_mov_b64 exec, -1")
        if not opt.get("f2f", 0): ffn2()
        if EA5 == 2: a(f"s_mov_b64 exec, 1\nbuffer_atomic_add v12, off, {S(R_WS)}, s12 sc1\ns_mov_b64 exec, -1")
        a(f"s_mov_b32 {sCNT}, {NL}\ns_waitcnt vmcnt({1 if EA5 >= 2 else 0})\ns_branch L_l4w\nL_l4:\nbuffer_load_dwordx2 v[104:105], v9, {S(R_WS)}, {u1} offen sc1\ns_waitcnt vmcnt(0)\nL_l4w:")
        check([("0xff", [(104, vT8), (105, vT8)])], 68)
        a(f"s_cbranch_vccz L_l4d\ns_sub_u32 {sCNT}, {sCNT}, 1\ns_cbranch_scc0 L_l4")
        a(gpub)
        gather([f"buffer_load_dwordx2 v[104:105], v9, {S(R_WS)}, {t2} offen sc1"], [("0xff", [(104, vT8), (105, vT8)])], 68, "L_h4", sel="wave")
        a("L_l4d:")
    else:
        hint(u1, 8, "L_c4", mid=ffn2, execset=True)
        stamp2(8)
        gather([f"buffer_load_dwordx2 v[104:105], v9, {S(R_WS)}, {t2} offen sc1"], [("0xff", [(104, vT8), (105, vT8)])], 68, "L_h4", sel="wave")
    stamp(13)
    if EA5 == 1: a(f"s_mov_b64 exec, 1\nbuffer_atomic_add v12, off, {S(R_WS)}, s12 sc1\ns_mov_b64 exec, -1")
    allred_lo8([104, 105], "v_add_f32")
    a("v_cvt_pk_bf16_f32 v64, v104, v105")
    for c in range(8): a(f"v_dot2_f32_bf16 v{72+c}, v{WOP+c}, v64, 0")
    rs8(72, 124)
    tag8(124)
    a(f"buffer_store_dwordx2 v[124:125], v11, {S(R_WS)}, {t3} offen sc1")
    if not EA5: a(f"s_mov_b64 exec, 1\nbuffer_atomic_add v12, off, {S(R_WS)}, s12 sc1\ns_mov_b64 exec, -1")
    stamp(14)
    if L4 and not opt.get("gp2", 1): a(gpub)
    if L4 and opt.get("gp2", 1):
        a(f"s_cmp_ge_u32 {sFG}, 24\ns_cbranch_scc1 L_isf\n{gpub}\ns_branch L_fin\nL_isf:")
    else: a(f"s_cmp_lt_u32 {sFG}, 24\ns_cbranch_scc1 L_fin")
    hint("s11", 8 if C5 else 32, "L_c5", lanes=4 if C5 else 1, voff="v179" if C5 else None, mid=lambda: a("global_load_ushort v127, v176, s[4:5]" + (("\n" + gpub) if (L4 and opt.get("gp2", 1)) else "")))
    stamp2(7)
    gather([f"buffer_load_dwordx4 {V(64+4*k)}, v{vL16}, {S(R_WS)}, {['s8','s9'][k]} offen sc1" for k in range(2)],
           [("0xff", [(64 + k, vT8) for k in range(8)])], 80, "L_h5")
    stamp(1)
    a("""
v_pk_add_f32 v[64:65], v[64:65], v[68:69]
v_pk_add_f32 v[66:67], v[66:67], v[70:71]
v_permlane32_swap_b32 v64, v66
v_permlane32_swap_b32 v65, v67
v_pk_add_f32 v[64:65], v[64:65], v[66:67]
v_permlane16_swap_b32 v64, v65
v_add_f32 v64, v64, v65
""")
    dpp("v_add_f32", 64, 64, "row_ror:8"); dpp("v_add_f32", 64, 64, "row_ror:4")
    a(f"""
ds_write_b32 v177, v64
s_waitcnt lgkmcnt(0)
s_barrier
s_cmp_lg_u32 {sW}, 0
s_cbranch_scc1 L_fin
ds_read_b128 v[72:75], v178 offset:256
ds_read_b128 v[76:79], v178 offset:272
ds_read_b128 v[64:67], v178
ds_read_b128 v[68:71], v178 offset:16
s_waitcnt lgkmcnt(2)
v_pk_add_f32 v[72:73], v[72:73], v[74:75]
v_pk_add_f32 v[76:77], v[76:77], v[78:79]
v_pk_add_f32 v[72:73], v[72:73], v[76:77]
v_add_f32 v72, v72, v73
""")
    bfround(72, 72)
    a(f"""
v_mul_f32 v73, 0x{f2u(-math.log2(math.e)):08x}, v72
v_exp_f32 v73, v73
s_waitcnt lgkmcnt(0)
v_pk_add_f32 v[64:65], v[64:65], v[66:67]
v_pk_add_f32 v[68:69], v[68:69], v[70:71]
v_add_f32 v73, 1.0, v73
v_rcp_f32 v73, v73
v_pk_add_f32 v[64:65], v[64:65], v[68:69]
v_add_f32 v64, v64, v65
v_mul_f32 v72, v72, v73
v_cvt_pk_bf16_f32 v64, v64, v72
v_lshlrev_b32 v65, 16, v64
v_and_b32 v64, {sMSK}, v64
v_mul_f32 v64, v64, v65
""")
    bfround(64, 64)
    a(f"""
v_lshlrev_b32 v12, 16, v127
v_add_f32 v64, v64, v12
v_cvt_pk_bf16_f32 v64, v64, v64
s_mov_b64 exec, 0xff
global_store_short v176, v64, s[24:25]
s_cmp_lg_u32 s13, 0
s_cbranch_scc1 L_fin0
s_mov_b64 exec, 1
v_mov_b32 v65, {sTAG}
buffer_store_dword v65, off, {S(R_WS)}, 0 sc1
L_fin0:
s_mov_b64 exec, -1
L_fin:
""")
    if opt.get("hold", 0):
        if "holdwg" in opt: a(f"s_cmp_lg_u32 s2, {opt['holdwg']}\ns_cbranch_scc1 L_end")
        a(f"s_add_u32 s{ST0+4}, s{ST0}, {opt['hold']}\nL_hold:\ns_memrealtime s[{ST0+2}:{ST0+3}]\ns_waitcnt lgkmcnt(0)\ns_sub_u32 s{ST0+5}, s{ST0+2}, s{ST0+4}\ns_cmp_lt_i32 s{ST0+5}, 0\ns_cbranch_scc1 L_hold")
    if DIAG:
        stamp(15)
        for k in range(16): a(f"v_mov_b32 v{64+k}, s{ST0+2*k}")
        a(f"""
s_lshl_b32 {t0}, s2, 3
s_add_u32 {t0}, {t0}, {sW}
s_lshl_b32 {t0}, {t0}, 6
s_add_u32 {t0}, {t0}, {STAMP}
v_mov_b32 v8, 0
s_mov_b64 exec, 1
""")
        for k in range(4): a(f"buffer_store_dwordx4 {V(64+4*k)}, v8, {S(R_WS)}, {t0} offen offset:{16*k}")
    a("L_end:\ns_endpgm")
    if opt.get("nost", 0):
        out = []; seen_b = False
        for l in a.lines:
            if l.strip() == "L_ba:": seen_b = True
            if not seen_b and "sc1" in l and ("store" in l or (opt["nost"] >= 2 and "load" in l)): l = "    s_nop 0"
            out.append(l)
        a.lines = out
    lines, n = hazard.fix(a.lines)
    body = "\n".join(lines) + "\n"
    return wrap_single(body, 256, 512, LDS_BYTES, 256), n

if __name__ == "__main__":
    name = sys.argv[1]
    opt = {}
    for kv in sys.argv[2:]:
        k, v = kv.split("=")
        try: opt[k] = int(v, 0)
        except ValueError: opt[k] = v
    s, n = gen(opt)
    open(name, "w").write(s)
    print("wrote", name, "nops inserted", n, "lines", s.count("\n"))
```

```python
import sys, math, struct
from asmlib import *
import hazard

def f2u(x): return struct.unpack("<I", struct.pack("<f", x))[0]

STAMP = 0x2000000
KTAG = 0x9E3779B9
RS = 1056
L_P = 128 * RS
L_MX = L_P + 4096
L_ST2 = L_MX + 512
L_QS = L_ST2 + 64
L_XN = L_QS + 512
L_RI = L_XN + 128
L_HS = L_RI + 16
L_FIN = L_HS + 64
L_OR = L_FIN + 1024
L_Q = (L_OR + 2560 + 255) // 256 * 256
L_UV = L_Q
LDS_BYTES = L_Q + 16 * RS
assert LDS_BYTES <= 163840, LDS_BYTES

def gen(opt):
    SPREAD = opt.get("spread", 0)
    DIAG = opt.get("diag", 0)
    THR = opt.get("thr", 8)
    N0 = opt.get("n0", 0); N3 = opt.get("n3", 8); UKE = opt.get("uke", 0)
    REL = opt.get("rel", "iss")
    NT = opt.get("nt", "nt")
    NTC = opt.get("ntc", NT)
    if NT == "-": NT = ""
    if NTC == "-": NTC = ""
    SPIN = opt.get("spin", 100000)
    HINT = opt.get("hint", 200)
    T1AT = opt.get("t1at", "s")
    WOAT = opt.get("woat", "h3")
    H4C = opt.get("h4c", 1)
    H2C = opt.get("h2c", 0)
    H1C = opt.get("h1c", 0)
    C5 = opt.get("c5", 0); L4 = opt.get("l4", 1); NL = opt.get("nl", 24); L1 = opt.get("l1", 0); RELP = opt.get("relp", 1)
    PP = opt.get("pp", 0)
    LNF = opt.get("lnf", 1)
    B0AT = opt.get("b0at", 6)
    HB = opt.get("hb", 0x41000)
    IB = 16384 + 384
    OH = 8 * IB
    SB = 16384 + 192
    QP = 0x10000; CP = QP + 0x1000; FP = QP + 0x4000; QA = QP + 0x3000
    CN = QP + 0x3800
    CN4 = QP + 0x3C00
    CN1 = CN4 + 64
    ML = 0x900000
    OP = 0xA00000
    SP = 0x1400000
    if opt.get("compact", 0):
        HB = 0x6000; ML = 0xE0000; SP = 0xF0000; OP = 0x200000
    QPL = 0x6000
    assert HB >= 0x7000 and QP + 32 * HB <= ML
    a = Asm()
    sW = "s3"
    sX, sIDX, sG, sJ, sH, sI, sFG, sTAG = "s30", "s31", "s32", "s33", "s34", "s35", "s36", "s37"
    sLO, sHI, sCNT = "s38", "s39", "s40"
    t0, t1, t2, t3, t4, t5 = "s41", "s42", "s43", "s44", "s45", "s46"
    u0, u1 = "s26", "s27"
    w0_, w1_ = "s6", "s7"
    sMSK = "s47"
    R_WS, R_A, R_B, R_O, R_D = 48, 52, 56, 60, 64
    sM8, sM1 = "s68", "s69"
    sHB, sFB, sGB, sH8 = "s30", "s31", "s17", "s16"
    ST0 = 70
    def srd(d, p, n):
        a(f"s_mov_b32 s{d}, s{p}\ns_mov_b32 s{d+1}, s{p+1}\ns_mov_b32 s{d+2}, {n}\ns_mov_b32 s{d+3}, 0x00020000")
    def S(r): return f"s[{r}:{r+3}]"
    def V(r, n=4): return f"v[{r}:{r+n-1}]"
    def stamp2(k):
        if DIAG == 2: a(f"s_memrealtime s[{ST0+2*k}:{ST0+2*k+1}]\ns_waitcnt lgkmcnt(0)")
    def stamp3(k):
        if DIAG == 3: a(f"s_memrealtime s[{ST0+2*k}:{ST0+2*k+1}]")
    def stamp(k):
        if DIAG == 3 and 1 <= k <= 6: return
        if DIAG == 2 and 1 <= k <= 8: return
        if DIAG: a(f"s_memrealtime s[{ST0+2*k}:{ST0+2*k+1}]\ns_waitcnt lgkmcnt(0)")
    vL16, vN, vG, vM8, vR8 = 1, 2, 3, 4, 5
    vT8 = 7
    XP = 16; PATL = 20; PATG = 24; WB = 32
    QF = 64; AF = 128; TF = 192
    WO = 48; WD = 56; WOP = 160
    def allred_hi(v, tmp, op):
        a(f"v_mov_b32 v{tmp}, v{v}\nv_permlane16_swap_b32 v{v}, v{tmp}\n{op} v{v}, v{v}, v{tmp}")
        a(f"v_mov_b32 v{tmp}, v{v}\nv_permlane32_swap_b32 v{v}, v{tmp}\n{op} v{v}, v{v}, v{tmp}")
    def dpp(op, d, s, mode, bank="0xf"):
        a(f"{op}_dpp v{d}, v{s}, v{s} {mode} row_mask:0xf bank_mask:{bank}")
    def allred_lo8(vs, op):
        if isinstance(vs, int): vs = [vs]
        for m in ("quad_perm:[1,0,3,2]", "quad_perm:[2,3,0,1]", "row_half_mirror"):
            for v in vs: dpp(op, v, v, m)
    def wave_sum(v, tmp):
        allred_lo8(v, "v_add_f32"); dpp("v_add_f32", v, v, "row_mirror"); allred_hi(v, tmp, "v_add_f32")
    def rs8(acc, out):
        for c in range(4): a(f"v_permlane32_swap_b32 v{acc+c}, v{acc+c+4}")
        a(f"v_pk_add_f32 {V(acc,2)}, {V(acc,2)}, {V(acc+4,2)}\nv_pk_add_f32 {V(acc+2,2)}, {V(acc+2,2)}, {V(acc+6,2)}")
        for c in range(2): a(f"v_permlane16_swap_b32 v{acc+c}, v{acc+c+2}")
        a(f"v_pk_add_f32 {V(acc,2)}, {V(acc,2)}, {V(acc+2,2)}")
        dpp("v_add_f32", out, acc, "row_ror:8", "0x3"); dpp("v_add_f32", out, acc + 1, "row_ror:8", "0xc")
    def bfround(d, s):
        a(f"v_cvt_pk_bf16_f32 v{d}, v{s}, v{s}\nv_lshlrev_b32 v{d}, 16, v{d}")
    def gemv(W, P, acc, out, waits=None, nk=4):
        for k in range(nk):
            if waits: waits(k)
            for e in range(4):
                a(f"v_perm_b32 v{P+2*e}, v{W+8*k+4+e}, v{W+8*k+e}, {sLO}")
                a(f"v_perm_b32 v{P+2*e+1}, v{W+8*k+4+e}, v{W+8*k+e}, {sHI}")
            for c in range(8):
                a(f"v_dot2_f32_bf16 v{acc+c}, v{P+c}, v{XP+k}, {'0' if k == 0 else 'v%d' % (acc+c)}")
        rs8(acc, out)
    def tag8(v): a(f"v_and_or_b32 v{v}, v{v}, {sM8}, v{vT8}")
    def check(checks, bad):
        for gi, (mask, pairs) in enumerate(checks):
            b = bad + gi
            for d, e in pairs: a(f"v_xor_b32 v{d}, v{d}, v{e}")
            ds = [d for d, e in pairs]
            if len(ds) == 2: a(f"v_or_b32 v{b}, v{ds[0]}, v{ds[1]}")
            else:
                a(f"v_or3_b32 v{b}, v{ds[0]}, v{ds[1]}, v{ds[2]}")
                k = 3
                while k < len(ds):
                    if k + 1 < len(ds): a(f"v_or3_b32 v{b}, v{ds[k]}, v{ds[k+1]}, v{b}"); k += 2
                    else: a(f"v_or_b32 v{b}, v{ds[k]}, v{b}"); k += 1
            if gi == 0: a(f"v_and_b32 v{b}, {mask}, v{b}")
            else: a(f"v_and_or_b32 v{bad}, v{b}, {mask}, v{bad}")
        a(f"v_cmp_ne_u32 vcc, 0, v{bad}")
    def gather(loads, checks, bad, name, sel="lane", mid=None, issue=True):
        L = a.label(name); D = a.label(name + "d")
        if issue:
            for l in loads: a(l)
        if mid: mid()
        a(f"s_mov_b32 {sCNT}, {SPIN}")
        a(f"{L}:\ns_waitcnt vmcnt(0)")
        check(checks, bad)
        a(f"s_cbranch_vccz {D}\ns_sub_u32 {sCNT}, {sCNT}, 1\ns_cbranch_scc1 {D}")
        if sel == "quad": a("s_wqm_b64 exec, vcc")
        elif sel == "lane": a("s_mov_b64 exec, vcc")
        for l in loads: a(l)
        a(f"s_branch {L}\n{D}:")
        if sel != "wave": a("s_mov_b64 exec, -1")
    def hint(soff, target, name, mid=None, execset=False, lanes=1, voff=None):
        L = a.label(name); D = a.label(name + "d"); W = a.label(name + "w")
        em = (1 << lanes) - 1
        at = f"buffer_atomic_add v126, off, {S(R_WS)}, {soff} sc0 sc1" if voff is None else f"buffer_atomic_add v126, {voff}, {S(R_WS)}, {soff} offen sc0 sc1"
        if not execset: a(f"s_mov_b64 exec, {em}")
        a(f"v_mov_b32 v126, 0\n{at}")
        if mid:
            a("s_mov_b64 exec, -1"); mid(); a(f"s_mov_b64 exec, {em}")
        a(f"""
s_mov_b32 {sCNT}, {HINT}
s_branch {W}
{L}:
{"s_mov_b64 exec, vcc" if lanes > 1 else ""}
v_mov_b32 v126, 0
{at}
s_sub_u32 {sCNT}, {sCNT}, 1
s_cbranch_scc1 {D}
{W}:
s_waitcnt vmcnt(0)
v_cmp_gt_u32 vcc, {target}, v126
s_cbranch_vccnz {L}
{D}:
s_mov_b64 exec, -1
""")
    def cnaddr(dst, k, tmp):
        a(f"s_and_b32 {tmp}, {k}, 31\ns_mul_i32 {tmp}, {tmp}, {HB}\ns_lshr_b32 {dst}, {k}, 5\ns_lshl_b32 {dst}, {dst}, 7\ns_add_u32 {dst}, {dst}, {tmp}\ns_add_u32 {dst}, {dst}, {CN}")
    def mk_pat(dst, sel):
        a(f"""
v_and_b32 v{dst}, 1, v{sel}
v_lshlrev_b32 v{dst}, 16, v{dst}
v_and_b32 v{dst+2}, 2, v{sel}
v_lshlrev_b32 v{dst+2}, 15, v{dst+2}
v_or_b32 v{dst+2}, 1, v{dst+2}
v_mov_b32 v{dst+1}, {t4}
v_mov_b32 v{dst+3}, {t5}
""")
    def mk_tags():
        a(f"""
s_add_u32 {sTAG}, {sTAG}, {KTAG}
s_and_b32 {t5}, {sTAG}, 0xff
v_mov_b32 v{vT8}, {t5}
s_and_b32 {t4}, {sTAG}, 3
s_mul_i32 {t4}, {t4}, 0x8001
s_and_b32 {t4}, {t4}, {sM1}
s_bfe_u32 {t5}, {sTAG}, 0x20002
s_mul_i32 {t5}, {t5}, 0x8001
s_and_b32 {t5}, {t5}, {sM1}
""")
        mk_pat(PATL, 0); mk_pat(PATG, vG)
    def consts():
        a(f"""
s_mov_b32 {sLO}, 0x05040100
s_mov_b32 {sHI}, 0x07060302
s_mov_b32 {sMSK}, 0xffff0000
s_mov_b32 {sM8}, 0xffffff00
s_mov_b32 {sM1}, 0x00010001
s_mov_b32 {sH8}, 0x8000
s_mul_i32 {sHB}, {sH}, {HB}
s_mul_i32 {sFB}, {sFG}, {HB}
s_mul_i32 {sGB}, {sG}, {16*HB}
""")
        if DIAG:
            for k in range(1, 16): a(f"s_mov_b32 s{ST0+2*k}, 0")
        srd(R_WS, 28, 0x10000000)

    stamp_entry = f"s_memrealtime s[{ST0}:{ST0+1}]" if (DIAG or opt.get("hold", 0)) else ""
    a(f"""
{stamp_entry}
s_getpc_b64 s[{R_B}:{R_B+1}]
L_pc:
v_subrev_u32 v8, 256, v0
v_lshlrev_b32 v8, 6, v8
v_cmp_gt_u32 vcc, L_end-L_pc, v8
s_and_saveexec_b64 s[4:5], vcc
s_cbranch_execz L_npf
global_load_dword v9, v8, s[{R_B}:{R_B+1}]
L_npf:
s_mov_b64 exec, s[4:5]
s_cmp_ge_u32 s2, 256
s_cbranch_scc1 L_end
s_load_dwordx16 s[4:19], s[0:1], 0
s_load_dwordx8 s[20:27], s[0:1], 64
s_load_dwordx2 s[28:29], s[0:1], 96
v_lshrrev_b32 v1, 6, v0
v_and_b32 v0, 63, v0
v_readfirstlane_b32 {sW}, v1
v_lshlrev_b32 v{vL16}, 4, v0
v_mov_b32 v19, 0
v_mov_b32 v60, 0
v_mov_b32 v61, 0
v_and_b32 v{vN}, 15, v0
v_lshrrev_b32 v{vG}, 4, v0
v_and_b32 v{vM8}, 7, v0
v_lshrrev_b32 v{vR8}, 3, v0
s_and_b32 {sX}, s2, 7
s_lshr_b32 {sIDX}, s2, 3
s_lshr_b32 {sG}, {sIDX}, 4
s_and_b32 {sJ}, {sIDX}, 7
s_lshr_b32 {t0}, {sIDX}, 3
s_and_b32 {t1}, {t0}, 1
s_lshl_b32 {sH}, {sG}, 4
s_lshl_b32 {t2}, {sX}, 1
s_add_u32 {sH}, {sH}, {t2}
s_add_u32 {sH}, {sH}, {t1}
s_lshl_b32 {sI}, {sX}, 4
s_and_b32 {t1}, {sIDX}, 15
s_add_u32 {sI}, {sI}, {t1}
s_lshl_b32 {sFG}, {t0}, 3
s_add_u32 {sFG}, {sFG}, {sX}
v_lshlrev_b32 v64, 4, v{vR8}
s_lshl_b32 {t0}, {sJ}, 7
v_add_u32 v64, {t0}, v64
v_lshlrev_b32 v65, 16, v{vR8}
v_lshl_add_u32 v65, v{vM8}, 4, v65
s_lshl_b32 {t0}, {sJ}, 19
s_lshl_b32 {t1}, {sH}, 8
s_add_u32 {t2}, {t0}, {t1}
s_lshl_b32 {t1}, {sW}, 7
s_add_u32 {t0}, {t2}, {t1}
s_mov_b32 s{R_A+2}, 4194304
s_mov_b32 s{R_A+3}, 0x00020000
s_cmp_ge_u32 {sW}, 2
s_waitcnt lgkmcnt(0)
s_cbranch_scc1 L_not01
s_mov_b64 s[{R_A}:{R_A+1}], s[8:9]
s_setprio 3
global_load_dwordx4 v[8:11], v{vL16}, s[4:5]
global_load_dwordx4 v[12:15], v64, s[4:5]
""")
    for u in range(8):
        a(f"buffer_load_dwordx4 {V(WB+4*u)}, v65, {S(R_A)}, {t0} offen {NT}")
        if u < 7: a(f"s_add_u32 {t0}, {t0}, 8192")
    a(f"s_load_dword {sTAG}, s[28:29], 0")
    BSAT = opt.get("bsat", "start")
    if N0 and BSAT == "start": a("s_barrier")
    UK = 128
    consts()
    a(f"""
s_add_u32 {t3}, {sHB}, {QP}
s_lshl_b32 {t0}, {sJ}, 9
s_add_u32 {t0}, {t0}, {t3}
s_lshl_b32 {t1}, {sW}, 8
s_add_u32 {t0}, {t0}, {t1}
v_lshl_add_u32 v29, v0, 2, {t0}
s_waitcnt vmcnt(9)
""")
    for e in range(4):
        a(f"v_lshlrev_b32 v{64+2*e}, 16, v{8+e}\nv_and_b32 v{65+2*e}, {sMSK}, v{8+e}")
    a("""
v_pk_add_f32 v[72:73], v[64:65], v[66:67]
v_pk_add_f32 v[74:75], v[68:69], v[70:71]
v_pk_add_f32 v[72:73], v[72:73], v[74:75]
v_add_f32 v72, v72, v73
""")
    wave_sum(72, 73)
    a(f"v_mul_f32 v72, 0x{f2u(1/512):08x}, v72")
    bfround(76, 72)
    for e in range(8): a(f"v_sub_f32 v{64+e}, v{64+e}, v72")
    a("v_mul_f32 v74, v64, v64\nv_mul_f32 v75, v65, v65")
    for e in range(2, 8): a(f"v_fmac_f32 v{74+(e&1)}, v{64+e}, v{64+e}")
    a("v_add_f32 v74, v74, v75")
    wave_sum(74, 73)
    a(f"v_mul_f32 v74, 0x{f2u(1/512):08x}, v74")
    bfround(74, 74)
    a(f"v_add_f32 v74, 0x{f2u(1e-5):08x}, v74")
    bfround(74, 74)
    a("v_sqrt_f32 v74, v74")
    bfround(74, 74)
    a("v_rcp_f32 v74, v74")
    a("s_waitcnt vmcnt(8)")
    for e in range(4):
        a(f"v_lshlrev_b32 v{80+2*e}, 16, v{12+e}\nv_and_b32 v{81+2*e}, {sMSK}, v{12+e}")
    for e in range(8): a(f"v_sub_f32 v{80+e}, v{80+e}, v76")
    for e in range(4): a(f"v_cvt_pk_bf16_f32 v{XP+e}, v{80+2*e}, v{81+2*e}")
    for e in range(4):
        a(f"v_lshlrev_b32 v{64+2*e}, 16, v{XP+e}\nv_and_b32 v{65+2*e}, {sMSK}, v{XP+e}")
    for e in range(8): a(f"v_mul_f32 v{64+e}, v{64+e}, v74")
    for e in range(4): a(f"v_cvt_pk_bf16_f32 v{XP+e}, v{64+2*e}, v{65+2*e}")
    a(f"""
s_waitcnt lgkmcnt(0)
s_add_u32 {t5}, {sTAG}, {KTAG}
s_and_b32 {t5}, {t5}, 0xff
v_mov_b32 v{vT8}, {t5}
""")
    stamp(1)
    if N0 and BSAT == "ln": a("s_barrier")
    gemv(WB, 80, 96, 30, waits=lambda k: a(f"s_waitcnt vmcnt({6-2*k})"))
    tag8(30)
    if L1: a(f"s_movk_i32 {t0}, {QPL}\nbuffer_store_dword v30, v29, {S(R_WS)}, {t0} offen")
    else: a(f"buffer_store_dword v30, v29, {S(R_WS)}, 0 offen sc1")
    if N0 and BSAT == "pub": a("s_barrier")
    stamp(2)
    a(f"v_lshlrev_b32 v104, 4, v{vR8}\nv_add_u32 v104, {L_XN}, v104\nds_write_b128 v104, {V(XP)}")
    a("s_waitcnt lgkmcnt(0)" if (L1 and RELP) else "s_waitcnt vmcnt(0) lgkmcnt(0)")
    stamp(3)
    a("s_barrier")
    if L4: a(f"s_lshl_b32 {t0}, {sJ}, 9\ns_add_u32 {t0}, {t0}, {sHB}\ns_add_u32 {t0}, {t0}, {CP+0x1000}\nv_lshlrev_b32 v64, 3, v0\nbuffer_load_dword v65, v64, {S(R_WS)}, {t0} offen")
    mk_tags()
    if L1: a(f"s_sleep 32\nbuffer_store_dword v30, v29, {S(R_WS)}, 0 offen sc1" if opt.get("gdel", 0) else f"buffer_store_dword v30, v29, {S(R_WS)}, 0 offen sc1")
    a("s_branch L_b0")
    a(f"L_not01:\ns_load_dword {sTAG}, s[28:29], 0")
    a(f"s_cmp_ge_u32 {sW}, 4\ns_cbranch_scc1 L_loader")
    consts()
    a(f"""
s_lshl_b32 {t0}, {sJ}, 7
s_add_u32 {t0}, {t0}, {sHB}
s_add_u32 {t0}, {t0}, {CN4}
""")
    a(f"s_and_b32 {t4}, s2, 63\ns_lshl_b32 {t5}, {sG}, 6\ns_or_b32 {t4}, {t4}, {t5}\ns_and_b32 {t5}, s2, 64\ns_lshl_b32 {t5}, {t5}, 1\ns_or_b32 {t4}, {t4}, {t5}")
    cnaddr(t3, t4, t1)
    a(f"""
s_cmp_eq_u32 {sW}, 2
s_cselect_b32 {t0}, {t0}, {t3}
v_mov_b32 v64, 0
v_mov_b32 v65, 0
v_mov_b32 v66, 0
v_mov_b32 v67, 0
s_mov_b64 exec, 0xff
{"s_cbranch_scc1 L_nz" if (L4 and not C5) else ""}
buffer_store_dwordx4 v[64:67], v{vL16}, {S(R_WS)}, {t0} offen sc1
L_nz:
s_mov_b64 exec, -1
""")
    if L1: a(f"s_add_u32 {t0}, {sHB}, {QP+QPL}\nv_lshlrev_b32 v68, 6, v0\nbuffer_load_dword v69, v68, {S(R_WS)}, {t0} offen")
    if N0 and BSAT == "start": a("s_barrier")
    srd(R_B, 10, 4194304)
    a(f"""
s_and_b32 s11, {sW}, 1
v_lshlrev_b32 v28, 13, v{vN}
v_lshl_add_u32 v28, v{vG}, 4, v28
s_lshl_b32 {t1}, s11, 18
s_add_u32 {u0}, {t2}, {t1}
s_add_u32 {u1}, {u0}, 131072
s_add_u32 {t3}, {sHB}, {QP}
v_and_b32 v104, 31, v0
v_lshrrev_b32 v105, 5, v0
v_lshlrev_b32 v106, 11, v105
v_lshl_add_u32 v106, v104, 4, v106
s_waitcnt {"vmcnt(0) " if opt.get("ukd", 0) else ""}lgkmcnt(0)
""")
    for t in range(2):
        for s_ in range(4):
            a(f"buffer_load_dwordx4 {V(UK+16*t+4*s_)}, v28, {S(R_B)}, {u0 if t == 0 else u1} offen offset:{64*s_} {NT}")
    a(f"""
s_lshl_b32 {t1}, s11, 8
s_add_u32 {t1}, {t1}, {L_QS}
v_and_b32 v107, 1, v104
v_lshlrev_b32 v107, 6, v107
v_lshl_add_u32 v107, v105, 5, v107
v_and_b32 v111, 14, v104
v_add_u32 v107, v111, v107
v_and_b32 v111, 16, v104
v_lshl_add_u32 v107, v111, 3, v107
v_add_u32 v107, {t1}, v107
v_lshlrev_b32 v108, 4, v{vG}
v_add_u32 v108, {t1}, v108
v_lshlrev_b32 v109, 5, v{vN}
v_lshl_add_u32 v109, v{vG}, 3, v109
v_lshrrev_b32 v110, 4, v109
s_lshl_b32 {t1}, {sJ}, 7
s_add_u32 {t0}, {sHB}, {t1}
s_lshl_b32 {t1}, s11, 6
s_add_u32 {t0}, {t0}, {t1}
s_add_u32 {t0}, {t0}, {QA}
v_add_u32 v109, {t0}, v109
""")
    mk_tags()
    mk_pat(120, 110)
    a(f"""
v_and_b32 v110, 1, v{vG}
v_cmp_eq_u32 vcc, 1, v110
v_cndmask_b32 v120, v120, v122, vcc
v_cndmask_b32 v121, v121, v123, vcc
s_setprio 3
{"s_barrier" if (N0 and BSAT != "start") else ""}
{"" if L1 == 2 else "s_barrier"}
""")
    G1 = 64
    sc = (128 ** -0.5) * math.log2(math.e)
    a(f"v_mov_b32 v111, 0x{f2u(sc):08x}")
    if L1:
        a(f"s_add_u32 {t0}, {t3}, {QPL}\ns_mov_b32 {sCNT}, {NL if L1 == 1 else 40}\nL_l1:")
        for u in range(4): a(f"buffer_load_dwordx4 {V(G1+4*u)}, v106, {S(R_WS)}, {t0} offen offset:{u*512} sc1")
        a("s_waitcnt vmcnt(0)")
        check([("0xff", [(G1 + k, vT8) for k in range(16)])], 96)
        if L1 == 2:
            a(f"s_cbranch_vccz L_l1b\ns_mov_b64 exec, vcc\ns_sub_u32 {sCNT}, {sCNT}, 1\ns_cbranch_scc0 L_l1\ns_barrier")
        else: a(f"s_cbranch_vccz L_l1d\ns_mov_b64 exec, vcc\ns_sub_u32 {sCNT}, {sCNT}, 1\ns_cbranch_scc0 L_l1")
    gather([f"buffer_load_dwordx4 {V(G1+4*u)}, v106, {S(R_WS)}, {t3} offen offset:{u*512} sc1" for u in range(4)],
           [("0xff", [(G1 + k, vT8) for k in range(16)])], 96, "L_h1")
    if L1 == 2: a("s_branch L_l1d\nL_l1b:\ns_barrier")
    if L1: a("L_l1d:\ns_mov_b64 exec, -1")
    stamp(4)
    for e in (0, 2): a(f"v_pk_add_f32 {V(G1+e,2)}, {V(G1+e,2)}, {V(G1+4+e,2)}\nv_pk_add_f32 {V(G1+8+e,2)}, {V(G1+8+e,2)}, {V(G1+12+e,2)}")
    for e in (0, 2): a(f"v_pk_add_f32 {V(G1+e,2)}, {V(G1+e,2)}, {V(G1+8+e,2)}")
    a(f"""
v_permlane32_swap_b32 v{G1}, v{G1+2}
v_permlane32_swap_b32 v{G1+1}, v{G1+3}
v_pk_add_f32 {V(G1,2)}, {V(G1,2)}, {V(G1+2,2)}
v_cvt_pk_bf16_f32 v{G1}, v{G1}, v{G1+1}
ds_write_b16 v107, v{G1}
ds_write_b16_d16_hi v107, v{G1} offset:16
s_waitcnt lgkmcnt(0)
""")
    for s_ in range(4): a(f"ds_read_b128 {V(80+4*s_)}, v108 offset:{64*s_}")
    for s_ in range(4):
        a(f"s_waitcnt lgkmcnt({3-s_})")
        for t in range(2):
            a(f"v_mfma_f32_16x16x32_bf16 {V(112+4*t)}, {V(UK+16*t+4*s_)}, {V(80+4*s_)}, {'0' if s_ == 0 else V(112+4*t)}")
    a(f"""
s_mov_b32 exec_lo, 0x00020002
s_mov_b32 exec_hi, 0x00020002
v_mov_b32 v112, v116
v_mov_b32 v113, v117
v_mov_b32 v114, v118
v_mov_b32 v115, v119
s_mov_b32 exec_lo, 0x00030003
s_mov_b32 exec_hi, 0x00030003
v_mul_f32 v112, v111, v112
v_mul_f32 v113, v111, v113
v_mul_f32 v114, v111, v114
v_mul_f32 v115, v111, v115
v_add_u32 v112, 0x10000, v112
v_add_u32 v113, 0x10000, v113
v_add_u32 v114, 0x10000, v114
v_add_u32 v115, 0x10000, v115
v_perm_b32 v12, v113, v112, {sHI}
v_perm_b32 v13, v115, v114, {sHI}
v_bfi_b32 v12, {sM1}, v120, v12
v_bfi_b32 v13, {sM1}, v121, v13
buffer_store_dwordx2 v[12:13], v109, {S(R_WS)}, 0 offen sc1
s_mov_b64 exec, -1
""")
    stamp(5)
    a("s_branch L_b0")
    a("L_loader:")
    srd(R_A, 6, 16777216)
    consts()
    a("s_waitcnt lgkmcnt(0)")
    mk_tags()
    GUAT = opt.get("guat", 2)
    a(f"""
s_mul_i32 {u1}, {sJ}, {64*3584}
s_lshl_b32 {t3}, {sFG}, 7
s_add_u32 {u1}, {u1}, {t3}
s_and_b32 {t1}, {sW}, 1
s_mul_i32 {t1}, {t1}, {32*3584}
s_add_u32 {u1}, {u1}, {t1}
s_cmp_lt_u32 {sFG}, 28
s_cselect_b32 s{R_B+2}, 1835008, 0
s_bitcmp0_b32 {sW}, 1
s_cselect_b64 s[{R_B}:{R_B+1}], s[18:19], s[20:21]
s_mov_b32 s{R_B+3}, 0x00020000
v_mul_u32_u24 v13, {4*3584}, v{vR8}
v_lshl_add_u32 v13, v{vM8}, 4, v13
v_add_u32 v14, 7168, v13
s_sub_u32 {t0}, {sW}, 4
""")
    if SPREAD:
        a(f"""
s_lshl_b32 {t1}, {t0}, 4
s_add_u32 {t1}, {t1}, {sI}
s_and_b32 {t1}, {t1}, 127
s_xor_b32 {t3}, {t1}, 64
s_add_u32 {t3}, {t3}, 512
s_lshl_b32 {t2}, {t0}, 7
s_add_u32 {t1}, {t1}, {t2}
s_add_u32 {t3}, {t3}, {t2}
s_lshl_b32 {t1}, {t1}, 14
s_lshl_b32 {t3}, {t3}, 14
s_mul_i32 {t2}, {t0}, {16*RS}
""")
    else:
        a(f"""
s_lshl_b32 {t1}, {sI}, 17
s_lshl_b32 {t2}, {t0}, 14
s_add_u32 {t1}, {t1}, {t2}
s_add_u32 {t3}, {t1}, 65536
s_mul_i32 {t2}, {t0}, {16*RS}
""")
    if N0: a("s_barrier")
    c0, c1, c2 = "s8", "s9", "s10"
    a(f"s_mov_b32 {c0}, {t1}\ns_mov_b32 {c1}, {t2}\ns_mov_b32 {c2}, {t3}")
    def cgroup(grp, R):
        if grp == N0: a("s_barrier")
        if grp == GUAT:
            for k in range(4):
                a(f"buffer_load_dwordx4 {V(WB+16+4*k)}, v{13+(k>>1)}, {S(R_B)}, {u1} offen offset:{3584*(k&1)} {NT}")
                if THR: a(f"s_waitcnt vmcnt({THR})")
        for r in range(4):
            a(f"s_add_u32 m0, {c1}, {32*r}")
            a(f"buffer_load_dwordx4 v{vL16}, {S(R)}, {c0} offen offset:{1024*r} {NTC} lds")
            if THR: a(f"s_waitcnt vmcnt({THR})")
        if grp == 3: a(f"s_mov_b32 {c0}, {c2}\ns_add_u32 {c1}, {c1}, {52*RS}")
        elif grp < 7: a(f"s_add_u32 {c0}, {c0}, 4096\ns_add_u32 {c1}, {c1}, {4*RS}")
    for grp in range(B0AT): cgroup(grp, R_A)
    stamp(1)
    a(f"s_waitcnt vmcnt({4*(B0AT-4)})")
    a("L_b0:")
    srd(R_O, 14, 4194304)
    srd(R_D, 22, 1835008)
    srd(R_A, 12, 4194304)
    srd(R_B, 6, 16777216)
    a(f"""
s_lshl_b32 {t0}, {sG}, 6
s_lshl_b32 {t1}, {sW}, 3
s_add_u32 {t0}, {t0}, {t1}
s_and_b32 {t1}, s2, 7
s_add_u32 {t0}, {t0}, {t1}
""")
    cnaddr("s11", t0, t1)
    a(f"s_lshl_b32 {t0}, {sG}, 6\ns_lshl_b32 {t1}, {sJ}, 3\ns_add_u32 {t0}, {t0}, {t1}\ns_add_u32 {t0}, {t0}, {sW}")
    cnaddr("s18", t0, t1)
    a(f"""
v_mul_u32_u24 v8, {RS}, v{vN}
v_lshl_add_u32 v8, v{vG}, 4, v8
s_mul_i32 {t0}, {sW}, {16*RS}
v_add_u32 v9, {t0}, v8
v_add_u32 v8, {L_Q}, v8
v_lshrrev_b32 v10, 2, v0
v_mul_u32_u24 v10, {RS}, v10
v_and_b32 v11, 3, v0
v_lshl_add_u32 v10, v11, 3, v10
s_lshl_b32 {t0}, {sW}, 7
v_add_u32 v10, {t0}, v10
v_add_u32 v11, {64*RS}, v10
s_lshl_b32 {t0}, {sJ}, 19
s_lshl_b32 {t1}, {sH}, 8
s_add_u32 {t0}, {t0}, {t1}
s_and_b32 {t1}, {sW}, 3
s_lshl_b32 {t1}, {t1}, 17
s_add_u32 {u0}, {t0}, {t1}
s_lshl_b32 {t1}, {sJ}, 10
s_add_u32 {u1}, {sFB}, {t1}
s_and_b32 {t1}, {sW}, 3
s_lshl_b32 {t1}, {t1}, 8
s_add_u32 {u1}, {u1}, {t1}
s_add_u32 {u1}, {u1}, {FP}
s_and_b32 {t1}, {sW}, 1
s_lshl_b32 {t1}, {t1}, 6
s_add_u32 {t1}, {t1}, {L_XN}
v_lshl_add_u32 v15, v{vR8}, 3, {t1}
v_lshlrev_b32 v13, 11, v{vR8}
v_lshl_add_u32 v13, v{vM8}, 4, v13
v_lshlrev_b32 v14, 13, v{vR8}
v_lshl_add_u32 v14, v{vM8}, 4, v14
v_lshrrev_b32 v28, 1, v{vN}
v_xor_b32 v28, v28, v{vG}
v_lshlrev_b32 v28, 5, v28
v_and_b32 v29, 1, v0
v_lshl_add_u32 v28, v29, 4, v28
v_lshl_add_u32 v28, v{vG}, 13, v28
v_xor_b32 v29, 128, v28
v_add_u32 v29, 32768, v29
v_mul_u32_u24 v30, {OH}, v{vM8}
v_lshl_add_u32 v30, v{vG}, 4, v30
v_and_b32 v31, 8, v0
v_lshl_add_u32 v30, v31, 3, v30
s_mul_i32 {t3}, {sG}, {16*OH}
s_mul_i32 {t4}, {sW}, {IB}
s_add_u32 {t3}, {t3}, {t4}
s_lshl_b32 {t4}, {sI}, 7
s_add_u32 {t3}, {t3}, {t4}
s_add_u32 {t3}, {t3}, {OP}
v_add_u32 v30, {t3}, v30
v_add_u32 v31, {8*OH}, v30
v_lshlrev_b32 v6, 4, v{vN}
v_add_u32 v6, {L_MX}, v6
s_lshl_b32 {t2}, {sH}, 17
s_lshl_b32 {t3}, {sJ}, 14
s_add_u32 {t2}, {t2}, {t3}
s_lshl_b32 {t5}, {sW}, 7
s_add_u32 {w0_}, {t2}, {t5}
s_lshl_b32 {t3}, {sFG}, 16
s_add_u32 {t5}, {t5}, {t3}
s_lshl_b32 {t3}, {sJ}, 10
s_add_u32 {w1_}, {t5}, {t3}
s_mul_i32 {t3}, {sW}, {4*RS}
s_add_u32 {t3}, {t3}, {L_Q}
v_add_u32 v12, {t3}, v{vL16}
s_mul_i32 {t0}, {sW}, {4*HB}
s_add_u32 {t0}, {t0}, {sGB}
s_add_u32 {t0}, {t0}, {QA}
s_add_u32 {t1}, {t0}, {HB}
s_add_u32 {t2}, {t1}, {HB}
s_add_u32 {t3}, {t2}, {HB}
s_add_u32 {t4}, {u0}, 65536
s_cmp_ge_u32 {sW}, 4
""")
    wol = [f"buffer_load_dwordx4 {V(WO)}, v13, {S(R_O)}, {w0_} offen {NT}", f"buffer_load_dwordx4 {V(WO+4)}, v13, {S(R_O)}, {w0_} offen offset:1024 {NT}",
           f"buffer_load_dwordx4 {V(WD)}, v14, {S(R_D)}, {w1_} offen {NT}"]
    WO03 = opt.get("wo03", "ba")
    if WO03 == "b0":
        a("s_cbranch_scc1 L_nwo")
        for l in wol: a(l)
        a("L_nwo:")
    a("s_waitcnt lgkmcnt(0)\ns_barrier")
    def rdTh(ks, T, half):
        r = TF + 16 * ks + 4 * T + 2 * half
        a(f"ds_read_b64_tr_b16 {V(r,2)}, {'v11' if half else 'v10'} offset:{16*ks*RS + 32*T}")
    G2 = 64
    h2loads = [f"buffer_load_dwordx4 {V(G2+4*k)}, v{vL16}, {S(R_WS)}, {[t0,t1,t2,t3][k]} offen sc1" for k in range(4)]
    T1T = opt.get("t1t", THR)
    NE = opt.get("ne", 4)
    LT = opt.get("lt", "")
    if LT: NE = 0
    tl = [f"buffer_load_dwordx4 {V(WB+4*k)}, v{28+(k&1)}, {S(R_A)}, {u0 if k < 2 else t4} offen {NT}" for k in range(4)] + wol
    PFR = 80
    a("s_cbranch_scc1 L_ng")
    for l in h2loads: a(l)
    stamp(6)
    for ks in range(4):
        if ks == 2: a("s_waitcnt lgkmcnt(7)")
        for T in range(4): rdTh(ks, T, 0)
    gather(h2loads, [(sM1, [(G2 + 4 * k + e, PATL + e) for k in range(4) for e in range(4)])], 96, "L_h2g", sel="quad", issue=False)
    a("s_waitcnt lgkmcnt(8)")
    for k in range(4): a(f"ds_write_b128 v12, {V(G2+4*k)} offset:{k*RS}")
    W3 = opt.get("w3", "b2")
    a(f"s_setprio 0\nv_add_u32 v76, {L_P}, v{vL16}\ns_waitcnt lgkmcnt(0)\ns_barrier")
    stamp(7)
    if W3 == "bq":
        for l in wol: a(l)
    a("s_barrier\nds_read_b128 v[68:71], v6")
    for ks in range(4):
        if ks == 3: a("s_waitcnt lgkmcnt(7)")
        for T in range(4): rdTh(ks, T, 1)
    if W3 == "b2":
        for l in wol: a(l)
    a(f"""
v_max3_f32 v66, v68, v69, v70
v_max_f32 v66, v66, v71
v_and_b32 v66, {sM8}, v66
s_barrier
""")
    for ks in range(4): a(f"ds_read_b128 {V(PFR+4*ks)}, v76 offset:{1024*ks}")
    a("s_branch L_pv\nL_ng:")
    AFa = TF; AFb = AF; SA = 12; SB_ = 60
    a(f"v_subrev_u32 v12, {64*RS}, v9\nds_read_b64 {V(XP,2)}, v15")
    for s in range(8): a(f"ds_read_b128 {V(AFa+4*s)}, v12 offset:{64*s}")
    for grp in range(B0AT, 8):
        cgroup(grp, R_B)
        if grp == B0AT:
            a("s_waitcnt lgkmcnt(0)")
            for s in range(8, 16): a(f"ds_read_b128 {V(AFa+4*s)}, v12 offset:{64*s}")
    stamp(6)
    gemv(WB + 16, 64, 72, 18, nk=2)
    tag8(18)
    a(f"""
v_lshlrev_b32 v19, 2, v0
v_mov_b32 v16, v13
v_mov_b32 v17, v14
s_waitcnt lgkmcnt(0)
s_barrier
""")
    stamp(7)
    tl2 = [l.replace("v13,", "v16,").replace("v14,", "v17,") for l in tl]
    PRE = 12
    for s in range(PRE): a(f"ds_read_b128 {V(QF+4*s)}, v8 offset:{64*s}")
    for s in range(16):
        rem = min(16, s + PRE) - (s + 1)
        a(f"s_waitcnt lgkmcnt({rem})")
        a(f"v_mfma_f32_16x16x32_bf16 {V(SA)}, {V(AFa+4*s)}, {V(QF+4*s)}, {'0' if s == 0 else V(SA)}")
        if s + PRE < 16: a(f"ds_read_b128 {V(QF+4*(s+PRE))}, v8 offset:{64*(s+PRE)}")
    for ks in range(2):
        for T in range(4): rdTh(ks, T, 0)
    for l in tl2[:NE]:
        if T1T: a(f"s_waitcnt vmcnt({T1T-1})")
        a(l)
    a("s_waitcnt lgkmcnt(7)")
    for ks in range(2, 4):
        for T in range(4): rdTh(ks, T, 0)
    a(f"s_setprio 3\ns_waitcnt vmcnt({NE}) lgkmcnt(3)")
    stamp(8)
    for s in range(PRE): a(f"ds_read_b128 {V(AFb+4*s)}, v9 offset:{64*s}")
    for l in tl2[NE:]: a(l)
    a(f"""
buffer_store_dword v18, v19, {S(R_WS)}, {u1} offen sc1
s_and_b32 {t0}, {sW}, 3
s_lshl_b32 {t2}, {t0}, 2
s_lshl_b32 {t0}, {t0}, 10
s_add_u32 {t3}, {t0}, {L_P}
v_add_u32 v28, {t2}, v6
v_add_u32 v29, {t3}, v{vL16}
v_max3_f32 v16, v{SA}, v{SA+1}, v{SA+2}
""")
    for s in range(16):
        rem = min(16, s + PRE) - (s + 1)
        a(f"s_waitcnt lgkmcnt({rem})")
        a(f"v_mfma_f32_16x16x32_bf16 {V(SB_)}, {V(AFb+4*s)}, {V(QF+4*s)}, {'0' if s == 0 else V(SB_)}")
        if s + PRE < 16: a(f"ds_read_b128 {V(AFb+4*(s+PRE))}, v9 offset:{64*(s+PRE)}")
    a(f"""
v_add_u32 v76, {L_P}, v{vL16}
v_max3_f32 v67, v{SB_}, v{SB_+1}, v{SB_+2}
v_max3_f32 v66, v16, v{SA+3}, v{SB_+3}
v_max_f32 v66, v66, v67
""")
    allred_hi(66, 67, "v_max_f32")
    a("ds_write_b32 v28, v66")
    stamp3(1)
    a("s_waitcnt lgkmcnt(0)\ns_barrier")
    if DIAG == 3: stamp3(2); a("s_waitcnt lgkmcnt(0)")
    a("ds_read_b128 v[68:71], v6")
    for ks in range(2):
        for T in range(4): rdTh(ks, T, 1)
    a(f"""
s_waitcnt lgkmcnt(8)
v_max3_f32 v66, v68, v69, v70
v_max_f32 v66, v66, v71
v_and_b32 v66, {sM8}, v66
""")
    for b in (SA, SB_):
        for r in range(4): a(f"v_sub_f32 v{b+r}, v{b+r}, v66")
    for b in (SA, SB_):
        for r in range(4): a(f"v_exp_f32 v{b+r}, v{b+r}")
    a(f"""
v_cvt_pk_bf16_f32 v68, v{SA}, v{SA+1}
v_cvt_pk_bf16_f32 v69, v{SA+2}, v{SA+3}
v_cvt_pk_bf16_f32 v70, v{SB_}, v{SB_+1}
v_cvt_pk_bf16_f32 v71, v{SB_+2}, v{SB_+3}
s_waitcnt lgkmcnt(6)
ds_write_b128 v29, v[68:71]
""")
    for ks in range(2, 4):
        for T in range(4): rdTh(ks, T, 1)
    if DIAG == 3: stamp3(3); a("s_waitcnt lgkmcnt(0)")
    a("s_waitcnt lgkmcnt(8)\ns_setprio 0\ns_barrier")
    if DIAG == 3: stamp3(4); a("s_waitcnt lgkmcnt(0)")
    for ks in range(4): a(f"ds_read_b128 {V(PFR+4*ks)}, v76 offset:{1024*ks}")
    a("L_pv:")
    def late_tail():
        L = a.label("L_lt")
        a(f"""
v_lshlrev_b32 v62, 11, v{vR8}
v_lshl_add_u32 v62, v{vM8}, 4, v62
v_lshlrev_b32 v63, 13, v{vR8}
v_lshl_add_u32 v63, v{vM8}, 4, v63
s_cmp_lt_u32 {sW}, 4
s_cbranch_scc1 {L}
""")
        for k in range(4): a(f"buffer_load_dwordx4 {V(WB+4*k)}, v{60+(k&1)}, {S(R_A)}, {u0 if k < 2 else 's19'} offen {NT}")
        a(f"{L}:")
        for l in wol: a(l.replace("v13,", "v62,").replace("v14,", "v63,"))
    if LT == "b3": late_tail()
    OA = AF; LA = AF + 16; ONE = AF + 20
    a(f"v_mov_b32 v77, 1\ns_cmp_lg_u32 {sW}, 2\ns_cbranch_scc1 L_noml")
    for r in range(4): a(f"v_mov_b32 v{ONE+r}, 0x3f803f80")
    a(f"""
v_lshlrev_b32 v75, 3, v0
s_lshl_b32 {t3}, {sG}, 14
s_lshl_b32 {t4}, {sI}, 7
s_add_u32 {t3}, {t3}, {t4}
s_add_u32 {t3}, {t3}, {ML}
v_or_b32 v108, v66, v{vT8}
""")
    for ks in range(4):
        a(f"s_waitcnt lgkmcnt({3-ks})")
        a(f"v_mfma_f32_16x16x32_bf16 {V(LA)}, {V(ONE)}, {V(PFR+4*ks)}, {'0' if ks == 0 else V(LA)}")
    a(f"""
v_and_or_b32 v109, v{LA}, {sM8}, v{vT8}
s_mov_b64 exec, 0xffff
buffer_store_dwordx2 v[108:109], v75, {S(R_WS)}, {t3} offen sc1
s_mov_b64 exec, -1
L_noml:
""")
    for ks in range(4):
        a(f"s_waitcnt lgkmcnt({3-ks})")
        for T in range(4):
            a(f"v_mfma_f32_16x16x32_bf16 {V(OA+4*T)}, {V(TF+16*ks+4*T)}, {V(PFR+4*ks)}, {'0' if ks == 0 else V(OA+4*T)}")
    EA3 = opt.get("ea3", 1); EA5 = opt.get("ea5", 1)
    if EA3 == 2: a(f"s_mov_b64 exec, 1\nbuffer_atomic_add v77, off, {S(R_WS)}, s11 sc1\ns_mov_b64 exec, -1")
    for T in range(4):
        a(f"v_cvt_pk_bf16_f32 v{96+2*T}, v{OA+4*T}, v{OA+4*T+1}\nv_cvt_pk_bf16_f32 v{97+2*T}, v{OA+4*T+2}, v{OA+4*T+3}")
        if T < 2:
            a(f"v_bfi_b32 v{104+2*T}, {sM1}, v{PATG+2*T}, v{96+2*T}\nv_bfi_b32 v{105+2*T}, {sM1}, v{PATG+2*T+1}, v{97+2*T}")
        a(f"v_bfi_b32 v{96+2*T}, {sM1}, v{PATG+(2*T)%4}, v{96+2*T}\nv_bfi_b32 v{97+2*T}, {sM1}, v{PATG+(2*T+1)%4}, v{97+2*T}")
    stamp3(5)
    if EA3 == 1: a(f"s_mov_b64 exec, 1\nbuffer_atomic_add v77, off, {S(R_WS)}, s11 sc1\ns_mov_b64 exec, -1")
    for e in range(4): a(f"v_mov_b32_dpp v{96+e}, v{100+e} row_ror:8 row_mask:0xf bank_mask:0xc")
    a(f"buffer_store_dwordx4 v[96:99], v30, {S(R_WS)}, 0 offen sc1")
    for e in range(4): a(f"v_mov_b32_dpp v{100+e}, v{104+e} row_ror:8 row_mask:0xf bank_mask:0x3")
    a(f"buffer_store_dwordx4 v[100:103], v31, {S(R_WS)}, 0 offen sc1")
    a("s_mov_b64 exec, 1" if EA3 else f"s_mov_b64 exec, 1\nbuffer_atomic_add v77, off, {S(R_WS)}, s11 sc1")
    stamp(9)
    if LT == "pv": a("s_mov_b64 exec, -1"); late_tail(); a("s_mov_b64 exec, 1")
    hfloads = [f"buffer_load_dword v{104+k}, v10, {S(R_WS)}, {t4} offen offset:{256*k} sc1" for k in range(4)]
    def ffn2s():
        for e in range(4):
            a(f"v_lshlrev_b32 v{168+2*e}, 16, v{WD+e}\nv_and_b32 v{169+2*e}, {sMSK}, v{WD+e}")
        for e in range(4):
            a(f"v_perm_b32 v{WOP+2*e}, v{WO+4+e}, v{WO+e}, {sLO}\nv_perm_b32 v{WOP+2*e+1}, v{WO+4+e}, v{WO+e}, {sHI}")
    def fin_addr():
        a(f"""
s_lshr_b32 s14, s2, 4
s_and_b32 s14, s14, 7
s_lshl_b32 s15, {sW}, 3
s_add_u32 s15, s15, s14
s_add_u32 s15, s15, 128
""")
        if C5:
            a(f"s_lshl_b32 s14, s14, 2\ns_and_b32 s15, s2, 3\ns_add_u32 s14, s14, s15\ns_mul_i32 s14, s14, {HB}\ns_lshl_b32 s15, {sW}, 7\ns_add_u32 s12, s14, s15\ns_add_u32 s12, s12, {CN4}")
        else: cnaddr("s12", "s15", "s14")
        a(f"""
s_sub_u32 s13, {sFG}, 24
s_and_b32 s13, s13, 7
s_lshl_b32 s15, s13, 3
s_add_u32 s14, s15, {sW}
s_add_u32 s14, s14, 128
""")
        if C5:
            a(f"s_mul_i32 s14, {sW}, {4*HB}\ns_lshl_b32 s11, s13, 7\ns_add_u32 s11, s11, s14\ns_add_u32 s11, s11, {CN4}\nv_mul_u32_u24 v179, {HB}, v0")
        else: cnaddr("s11", "s14", "s10")
        a(f"""
s_add_u32 s15, s15, {sJ}
s_mul_i32 s8, s15, {SB}
s_lshl_b32 s9, {sW}, 10
s_add_u32 s8, s8, s9
s_add_u32 s8, s8, {SP}
s_add_u32 s9, s8, 8192
s_lshl_b32 s13, s13, 6
s_add_u32 s13, s13, {sJ}
s_lshl_b32 s13, s13, 1
v_lshl_add_u32 v176, v{vM8}, 4, s13
v_bfe_u32 v177, v0, 4, 1
v_lshlrev_b32 v177, 8, v177
v_and_b32 v178, 3, v0
v_lshl_add_u32 v177, v178, 6, v177
v_lshrrev_b32 v178, 5, v0
v_lshl_add_u32 v177, v178, 5, v177
s_lshl_b32 s14, {sW}, 2
s_add_u32 s14, s14, {L_FIN}
v_add_u32 v177, s14, v177
v_lshlrev_b32 v178, 5, v{vM8}
v_add_u32 v178, {L_FIN}, v178
""")
    def mid3():
        fin_addr()
        a(f"""
s_cmp_lt_u32 {sW}, 4
s_cbranch_scc1 L_pc0
s_lshl_b32 {t0}, {sW}, 12
s_add_u32 {t0}, {t0}, {L_UV - 4*4096}
v_add_u32 v9, {t0}, v{vL16}
s_waitcnt vmcnt({ {'': 8, 'b3': 7, 'pv': 4}[LT] })
""")
        for u in range(4): a(f"ds_write_b128 v9, {V(WB+4*u)} offset:{1024*u}")
        a(f"""
L_pc0:
v_lshlrev_b32 v8, 7, v{vR8}
s_lshl_b32 {t0}, {sG}, 14
s_lshl_b32 {t1}, {sW}, 11
s_add_u32 {t0}, {t0}, {t1}
s_and_b32 {t1}, {sH}, 15
s_lshl_b32 {t1}, {t1}, 3
s_add_u32 {t0}, {t0}, {t1}
s_add_u32 {t0}, {t0}, {ML}
s_mul_i32 {t1}, {sH}, {OH}
s_mul_i32 {t2}, {sJ}, {IB}
s_add_u32 {t1}, {t1}, {t2}
s_lshl_b32 {t2}, {sW}, 11
s_add_u32 {t1}, {t1}, {t2}
s_add_u32 {t1}, {t1}, {OP}
s_lshl_b32 {t2}, {sW}, 3
s_add_u32 {t2}, {t2}, {L_ST2}
v_mov_b32 v74, {t2}
v_bfe_u32 v75, v0, 3, 1
v_mul_u32_u24 v75, 160, v75
v_lshl_add_u32 v75, v{vM8}, 4, v75
v_lshl_add_u32 v75, v{vG}, 2, v75
s_mul_i32 {t2}, {sW}, 320
s_add_u32 {t2}, {t2}, {L_OR}
v_add_u32 v75, {t2}, v75
v_mul_u32_u24 v76, 160, v{vN}
v_lshl_add_u32 v76, v{vG}, 4, v76
v_add_u32 v76, {L_OR}, v76
v_lshrrev_b32 v77, 2, v0
v_and_b32 v78, 7, v77
v_xor_b32 v78, {sW}, v78
v_lshlrev_b32 v77, 8, v77
v_lshl_add_u32 v77, v78, 5, v77
v_and_b32 v78, 3, v0
v_lshl_add_u32 v77, v78, 3, v77
v_add_u32 v77, {L_UV}, v77
v_lshlrev_b32 v78, 3, v{vM8}
v_add_u32 v78, {L_ST2}, v78
v_lshlrev_b32 v79, 4, v{vG}
v_add_u32 v79, {L_ST2}, v79
v_mov_b32 v14, {sH8}
s_lshl_b32 {t2}, {sW}, 9
s_add_u32 {t2}, {sHB}, {t2}
s_lshl_b32 {t3}, {sJ}, 6
s_add_u32 {t2}, {t2}, {t3}
s_add_u32 {t2}, {t2}, {CP}
v_lshl_add_u32 v15, v0, 2, {t2}
s_lshl_b32 {t2}, {sJ}, 9
s_add_u32 {t2}, {sHB}, {t2}
s_add_u32 {t2}, {t2}, {CP}
v_lshlrev_b32 v9, 6, v{vM8}
v_lshl_add_u32 v9, v{vR8}, 3, v9
v_mul_u32_u24 v11, {SB}, v{vR8}
v_lshl_add_u32 v11, v{vM8}, 3, v11
s_mul_i32 {t3}, {sW}, {8*SB}
s_lshl_b32 {t4}, s2, 6
s_add_u32 {t3}, {t3}, {t4}
s_add_u32 {t3}, {t3}, {SP}
v_lshlrev_b32 v10, 10, v{vM8}
v_lshl_add_u32 v10, v{vR8}, 2, v10
s_lshl_b32 {t4}, {sJ}, 5
s_add_u32 {t4}, {sFB}, {t4}
s_add_u32 {t4}, {t4}, {FP}
s_lshl_b32 {u0}, {sW}, 7
s_add_u32 {u0}, {u0}, {sHB}
s_add_u32 {u0}, {u0}, {CN4}
s_lshl_b32 {u1}, {sJ}, 7
s_add_u32 {u1}, {u1}, {sHB}
s_add_u32 {u1}, {u1}, {CN4}
v_mov_b32 v12, 1
v_lshlrev_b32 v13, 3, v{vR8}
v_add_u32 v13, {L_HS}, v13
s_and_b32 {t5}, s2, 7
""")
    hint("s18", 16, "L_c3", mid=mid3, execset=True)
    stamp(10)
    h3loads = [f"buffer_load_dwordx2 v[64:65], v8, {S(R_WS)}, {t0} offen sc1",
            f"buffer_load_dwordx2 v[68:69], v8, {S(R_WS)}, {t0} offen offset:1024 sc1",
            f"buffer_load_dwordx4 v[80:83], v{vL16}, {S(R_WS)}, {t1} offen sc1",
            f"buffer_load_dwordx4 v[84:87], v{vL16}, {S(R_WS)}, {t1} offen offset:1024 sc1"]
    a(f"s_mov_b32 {sCNT}, {SPIN}\ns_cmp_lg_u32 {t5}, {sW}\ns_cbranch_scc1 L_h3")
    for l in hfloads: a(l)
    a("L_h3:")
    for l in h3loads: a(l)
    ffn2s()
    a(f"""
s_waitcnt vmcnt(2)
v_xor_b32 v64, v64, v{vT8}
v_xor_b32 v68, v68, v{vT8}
v_xor_b32 v65, v65, v{vT8}
v_xor_b32 v69, v69, v{vT8}
v_max_f32 v72, v64, v68
v_or3_b32 v70, v64, v65, v68
v_or_b32 v70, v70, v69
""")
    dpp("v_max_f32", 72, 72, "row_ror:8")
    a("v_and_b32 v70, 0xff, v70")
    allred_hi(72, 73, "v_max_f32")
    a("v_sub_f32 v64, v64, v72\nv_sub_f32 v68, v68, v72\nv_exp_f32 v64, v64\nv_exp_f32 v68, v68")
    a("v_mul_f32 v73, v64, v65\nv_fmac_f32 v73, v68, v69\nv_mov_b32 v65, v64\nv_mov_b32 v69, v68")
    dpp("v_add_f32", 73, 73, "row_ror:8")
    allred_hi(73, 71, "v_add_f32")
    a("s_waitcnt vmcnt(0)")
    for k in range(8): a(f"v_xor_b32 v{80+k}, v{80+k}, v{PATL+(k&3)}")
    a(f"""
v_or3_b32 v71, v80, v81, v82
v_or3_b32 v71, v83, v84, v71
v_or3_b32 v71, v85, v86, v71
v_or_b32 v71, v87, v71
v_and_or_b32 v70, v71, {sM1}, v70
v_cmp_ne_u32 vcc, 0, v70
s_cbranch_vccz L_h3d
s_sub_u32 {sCNT}, {sCNT}, 1
s_cbranch_scc0 L_h3
L_h3d:
""")
    stamp(11)
    def unp(d, s):
        a(f"v_lshl_or_b32 v{d}, v{s}, 16, v14\nv_and_or_b32 v{d+1}, v{s}, {sMSK}, v14")
    a("ds_write_b64 v74, v[72:73]")
    for e in range(4): unp(88 + 2 * e, 80 + e)
    for e in range(4): unp(96 + 2 * e, 84 + e)
    for e in range(0, 8, 2): a(f"v_pk_mul_f32 v[{88+e}:{89+e}], v[64:65], v[{88+e}:{89+e}]")
    for e in range(0, 8, 2): a(f"v_pk_fma_f32 v[{88+e}:{89+e}], v[68:69], v[{96+e}:{97+e}], v[{88+e}:{89+e}]")
    for c in range(4): a(f"v_permlane32_swap_b32 v{88+c}, v{92+c}")
    a("v_pk_add_f32 v[88:89], v[88:89], v[92:93]\nv_pk_add_f32 v[90:91], v[90:91], v[94:95]")
    for c in range(2): a(f"v_permlane16_swap_b32 v{88+c}, v{90+c}")
    a("v_pk_add_f32 v[88:89], v[88:89], v[90:91]")
    a(f"""
v_cvt_pk_bf16_f32 v88, v88, v89
ds_write_b32 v75, v88
s_cmp_lg_u32 {t5}, {sW}
s_cbranch_scc1 L_nhf
""")
    gather(hfloads, [("0xff", [(104 + k, vT8) for k in range(4)])], 108, "L_hf", sel="wave", issue=False)
    a("v_add_f32 v104, v104, v105\nv_add_f32 v105, v106, v107")
    allred_lo8([104, 105], "v_add_f32")
    a("ds_write_b64 v13, v[104:105]\nL_nhf:\ns_waitcnt lgkmcnt(0)")
    stamp2(3)
    a("s_barrier")
    stamp2(4)
    a(f"""
ds_read_b64 v[64:65], v78
ds_read_b128 v[80:83], v76
ds_read_b64_tr_b16 v[88:89], v77
ds_read_b64_tr_b16 v[90:91], v77 offset:4096
ds_read_b128 v[84:87], v76 offset:64
ds_read_b64_tr_b16 v[92:93], v77 offset:8192
ds_read_b64_tr_b16 v[94:95], v77 offset:12288
ds_read_b128 v[68:71], v79
""")
    a("ds_read_b64 v[124:125], v13\ns_waitcnt lgkmcnt(8)")
    a("v_max_f32_dpp v66, v64, v64 quad_perm:[1,0,3,2] row_mask:0xf bank_mask:0xf")
    a("s_waitcnt lgkmcnt(5)\nv_mfma_f32_16x16x32_bf16 v[96:99], v[80:83], v[88:91], 0")
    dpp("v_max_f32", 66, 66, "quad_perm:[2,3,0,1]")
    a("s_waitcnt lgkmcnt(2)\nv_mfma_f32_16x16x32_bf16 v[96:99], v[84:87], v[92:95], v[96:99]")
    dpp("v_max_f32", 66, 66, "row_half_mirror")
    a("""
s_waitcnt lgkmcnt(0)
v_sub_f32 v64, v64, v66
v_sub_f32 v68, v68, v66
v_sub_f32 v70, v70, v66
v_exp_f32 v64, v64
v_exp_f32 v68, v68
v_exp_f32 v70, v70
v_mul_f32 v64, v64, v65
v_add_f32 v96, v96, v97
v_add_f32 v98, v98, v99
""")
    dpp("v_add_f32", 64, 64, "quad_perm:[1,0,3,2]")
    a("v_mul_f32 v96, v96, v68\nv_fmac_f32 v96, v98, v70")
    dpp("v_add_f32", 64, 64, "quad_perm:[2,3,0,1]")
    a("v_mov_b32 v97, v96")
    dpp("v_add_f32", 64, 64, "row_half_mirror")
    a("v_permlane16_swap_b32 v96, v97\nv_rcp_f32 v64, v64\nv_add_f32 v96, v96, v97\nv_mov_b32 v97, v96\nv_permlane32_swap_b32 v96, v97\nv_add_f32 v96, v96, v97")
    a("v_mul_f32 v96, v96, v64")
    tag8(96)
    if L4:
        a(f"""
s_mov_b32 {u0}, 0x1000
s_add_u32 {u1}, {t2}, 0x1000
s_mov_b64 exec, 0xffff
buffer_store_dword v96, v15, {S(R_WS)}, {u0} offen
s_mov_b64 exec, -1
""")
    else:
        a(f"""
s_mov_b64 exec, 0xffff
buffer_store_dword v96, v15, {S(R_WS)}, 0 offen sc1
s_mov_b64 exec, 1
buffer_atomic_add v12, off, {S(R_WS)}, {u0} sc1
""")
    stamp(12)
    c1 = -2.0 * math.sqrt(2 / math.pi) * math.log2(math.e)
    def ffn2():
        a(f"""
v_cvt_pk_bf16_f32 v124, v124, v125
v_and_b32 v125, {sMSK}, v124
v_lshlrev_b32 v124, 16, v124
v_mul_f32 v100, v124, v124
v_mov_b32 v101, 0x{f2u(c1):08x}
v_fmac_f32 v101, 0x{f2u(c1*0.044715):08x}, v100
v_mul_f32 v100, v101, v124
v_exp_f32 v100, v100
v_add_f32 v100, 1.0, v100
v_rcp_f32 v100, v100
v_mul_f32 v124, v124, v100
""")
        bfround(124, 124)
        a("v_mul_f32 v124, v124, v125")
        bfround(13, 124)
        for e in range(8): a(f"v_mul_f32 v{168+e}, v13, v{168+e}")
        rs8(168, 125)
        tag8(125)
    gpub = f"s_mov_b64 exec, 0xffff\nbuffer_store_dword v96, v15, {S(R_WS)}, 0 offen sc1\ns_mov_b64 exec, -1"
    if L4:
        if opt.get("f2f", 0): ffn2()
        a(f"buffer_load_dwordx2 v[104:105], v9, {S(R_WS)}, {u1} offen sc1")
        if EA5 == 3: a(f"s_mov_b64 exec, 1\nbuffer_atomic_add v12, off, {S(R_WS)}, s12 sc1\ns_mov_b64 exec, -1")
        if not opt.get("f2f", 0): ffn2()
        if EA5 == 2: a(f"s_mov_b64 exec, 1\nbuffer_atomic_add v12, off, {S(R_WS)}, s12 sc1\ns_mov_b64 exec, -1")
        a(f"s_mov_b32 {sCNT}, {NL}\ns_waitcnt vmcnt({1 if EA5 >= 2 else 0})\ns_branch L_l4w\nL_l4:\nbuffer_load_dwordx2 v[104:105], v9, {S(R_WS)}, {u1} offen sc1\ns_waitcnt vmcnt(0)\nL_l4w:")
        check([("0xff", [(104, vT8), (105, vT8)])], 68)
        a(f"s_cbranch_vccz L_l4d\ns_sub_u32 {sCNT}, {sCNT}, 1\ns_cbranch_scc0 L_l4")
        a(gpub)
        gather([f"buffer_load_dwordx2 v[104:105], v9, {S(R_WS)}, {t2} offen sc1"], [("0xff", [(104, vT8), (105, vT8)])], 68, "L_h4", sel="wave")
        a("L_l4d:")
    else:
        hint(u1, 8, "L_c4", mid=ffn2, execset=True)
        stamp2(8)
        gather([f"buffer_load_dwordx2 v[104:105], v9, {S(R_WS)}, {t2} offen sc1"], [("0xff", [(104, vT8), (105, vT8)])], 68, "L_h4", sel="wave")
    stamp(13)
    if EA5 == 1: a(f"s_mov_b64 exec, 1\nbuffer_atomic_add v12, off, {S(R_WS)}, s12 sc1\ns_mov_b64 exec, -1")
    allred_lo8([104, 105], "v_add_f32")
    a("v_cvt_pk_bf16_f32 v64, v104, v105")
    for c in range(8): a(f"v_dot2_f32_bf16 v{72+c}, v{WOP+c}, v64, 0")
    rs8(72, 124)
    tag8(124)
    a(f"buffer_store_dwordx2 v[124:125], v11, {S(R_WS)}, {t3} offen sc1")
    if not EA5: a(f"s_mov_b64 exec, 1\nbuffer_atomic_add v12, off, {S(R_WS)}, s12 sc1\ns_mov_b64 exec, -1")
    stamp(14)
    if L4 and not opt.get("gp2", 1): a(gpub)
    if L4 and opt.get("gp2", 1):
        a(f"s_cmp_ge_u32 {sFG}, 24\ns_cbranch_scc1 L_isf\n{gpub}\ns_branch L_fin\nL_isf:")
    else: a(f"s_cmp_lt_u32 {sFG}, 24\ns_cbranch_scc1 L_fin")
    hint("s11", 8 if C5 else 32, "L_c5", lanes=4 if C5 else 1, voff="v179" if C5 else None, mid=lambda: a("global_load_ushort v127, v176, s[4:5]" + (("\n" + gpub) if (L4 and opt.get("gp2", 1)) else "")))
    stamp2(7)
    gather([f"buffer_load_dwordx4 {V(64+4*k)}, v{vL16}, {S(R_WS)}, {['s8','s9'][k]} offen sc1" for k in range(2)],
           [("0xff", [(64 + k, vT8) for k in range(8)])], 80, "L_h5")
    stamp(1)
    a("""
v_pk_add_f32 v[64:65], v[64:65], v[68:69]
v_pk_add_f32 v[66:67], v[66:67], v[70:71]
v_permlane32_swap_b32 v64, v66
v_permlane32_swap_b32 v65, v67
v_pk_add_f32 v[64:65], v[64:65], v[66:67]
v_permlane16_swap_b32 v64, v65
v_add_f32 v64, v64, v65
""")
    dpp("v_add_f32", 64, 64, "row_ror:8"); dpp("v_add_f32", 64, 64, "row_ror:4")
    a(f"""
ds_write_b32 v177, v64
s_waitcnt lgkmcnt(0)
s_barrier
s_cmp_lg_u32 {sW}, 0
s_cbranch_scc1 L_fin
ds_read_b128 v[72:75], v178 offset:256
ds_read_b128 v[76:79], v178 offset:272
ds_read_b128 v[64:67], v178
ds_read_b128 v[68:71], v178 offset:16
s_waitcnt lgkmcnt(2)
v_pk_add_f32 v[72:73], v[72:73], v[74:75]
v_pk_add_f32 v[76:77], v[76:77], v[78:79]
v_pk_add_f32 v[72:73], v[72:73], v[76:77]
v_add_f32 v72, v72, v73
""")
    bfround(72, 72)
    a(f"""
v_mul_f32 v73, 0x{f2u(-math.log2(math.e)):08x}, v72
v_exp_f32 v73, v73
s_waitcnt lgkmcnt(0)
v_pk_add_f32 v[64:65], v[64:65], v[66:67]
v_pk_add_f32 v[68:69], v[68:69], v[70:71]
v_add_f32 v73, 1.0, v73
v_rcp_f32 v73, v73
v_pk_add_f32 v[64:65], v[64:65], v[68:69]
v_add_f32 v64, v64, v65
v_mul_f32 v72, v72, v73
v_cvt_pk_bf16_f32 v64, v64, v72
v_lshlrev_b32 v65, 16, v64
v_and_b32 v64, {sMSK}, v64
v_mul_f32 v64, v64, v65
""")
    bfround(64, 64)
    a(f"""
v_lshlrev_b32 v12, 16, v127
v_add_f32 v64, v64, v12
v_cvt_pk_bf16_f32 v64, v64, v64
s_mov_b64 exec, 0xff
global_store_short v176, v64, s[24:25]
s_cmp_lg_u32 s13, 0
s_cbranch_scc1 L_fin0
s_mov_b64 exec, 1
v_mov_b32 v65, {sTAG}
buffer_store_dword v65, off, {S(R_WS)}, 0 sc1
L_fin0:
s_mov_b64 exec, -1
L_fin:
""")
    if opt.get("hold", 0):
        if "holdwg" in opt: a(f"s_cmp_lg_u32 s2, {opt['holdwg']}\ns_cbranch_scc1 L_end")
        a(f"s_add_u32 s{ST0+4}, s{ST0}, {opt['hold']}\nL_hold:\ns_memrealtime s[{ST0+2}:{ST0+3}]\ns_waitcnt lgkmcnt(0)\ns_sub_u32 s{ST0+5}, s{ST0+2}, s{ST0+4}\ns_cmp_lt_i32 s{ST0+5}, 0\ns_cbranch_scc1 L_hold")
    if DIAG:
        stamp(15)
        for k in range(16): a(f"v_mov_b32 v{64+k}, s{ST0+2*k}")
        a(f"""
s_lshl_b32 {t0}, s2, 3
s_add_u32 {t0}, {t0}, {sW}
s_lshl_b32 {t0}, {t0}, 6
s_add_u32 {t0}, {t0}, {STAMP}
v_mov_b32 v8, 0
s_mov_b64 exec, 1
""")
        for k in range(4): a(f"buffer_store_dwordx4 {V(64+4*k)}, v8, {S(R_WS)}, {t0} offen offset:{16*k}")
    a("L_end:\ns_endpgm")
    if opt.get("nost", 0):
        out = []; seen_b = False
        for l in a.lines:
            if l.strip() == "L_ba:": seen_b = True
            if not seen_b and "sc1" in l and ("store" in l or (opt["nost"] >= 2 and "load" in l)): l = "    s_nop 0"
            out.append(l)
        a.lines = out
    lines, n = hazard.fix(a.lines)
    body = "\n".join(lines) + "\n"
    return wrap_single(body, 256, 512, LDS_BYTES, 256), n

if __name__ == "__main__":
    name = sys.argv[1]
    opt = {}
    for kv in sys.argv[2:]:
        k, v = kv.split("=")
        try: opt[k] = int(v, 0)
        except ValueError: opt[k] = v
    s, n = gen(opt)
    open(name, "w").write(s)
    print("wrote", name, "nops inserted", n, "lines", s.count("\n"))
```

```python
import sys, math, struct
from asmlib import *
import hazard

def f2u(x): return struct.unpack("<I", struct.pack("<f", x))[0]

STAMP = 0x2000000
KTAG = 0x9E3779B9
RS = 1056
L_P = 128 * RS
L_MX = L_P + 4096
L_ST2 = L_MX + 512
L_QS = L_ST2 + 64
L_XN = L_QS + 512
L_RI = L_XN + 128
L_HS = L_RI + 16
L_FIN = L_HS + 64
L_OR = L_FIN + 1024
L_Q = (L_OR + 2560 + 255) // 256 * 256
L_UV = L_Q
LDS_BYTES = L_Q + 16 * RS
assert LDS_BYTES <= 163840, LDS_BYTES

def gen(opt):
    SPREAD = opt.get("spread", 0)
    DIAG = opt.get("diag", 0)
    THR = opt.get("thr", 8)
    N0 = opt.get("n0", 0); N3 = opt.get("n3", 8); UKE = opt.get("uke", 0)
    REL = opt.get("rel", "iss")
    NT = opt.get("nt", "nt")
    NTC = opt.get("ntc", NT)
    if NT == "-": NT = ""
    if NTC == "-": NTC = ""
    NTU = "" if opt.get("ukd2", 0) else NT
    SPIN = opt.get("spin", 100000)
    HINT = opt.get("hint", 200)
    T1AT = opt.get("t1at", "s")
    WOAT = opt.get("woat", "h3")
    H4C = opt.get("h4c", 1)
    H2C = opt.get("h2c", 0)
    H1C = opt.get("h1c", 0)
    C5 = opt.get("c5", 0); L4 = opt.get("l4", 1); NL = opt.get("nl", 24); L1 = opt.get("l1", 0); RELP = opt.get("relp", 1)
    PP = opt.get("pp", 0)
    LNF = opt.get("lnf", 1)
    B0AT = opt.get("b0at", 6)
    HB = opt.get("hb", 0x41000)
    IB = 16384 + 384
    OH = 8 * IB
    SB = 16384 + 192
    QP = 0x10000; CP = QP + 0x1000; FP = QP + 0x4000; QA = QP + 0x3000
    CN = QP + 0x3800
    CN4 = QP + 0x3C00
    CN1 = CN4 + 64
    ML = 0x900000
    OP = 0xA00000
    SP = 0x1400000
    if opt.get("compact", 0):
        HB = 0x6000; ML = 0xE0000; SP = 0xF0000; OP = 0x200000
    QPL = 0x6000
    assert HB >= 0x7000 and QP + 32 * HB <= ML
    a = Asm()
    sW = "s3"
    sX, sIDX, sG, sJ, sH, sI, sFG, sTAG = "s30", "s31", "s32", "s33", "s34", "s35", "s36", "s37"
    sLO, sHI, sCNT = "s38", "s39", "s40"
    t0, t1, t2, t3, t4, t5 = "s41", "s42", "s43", "s44", "s45", "s46"
    u0, u1 = "s26", "s27"
    w0_, w1_ = "s6", "s7"
    sMSK = "s47"
    R_WS, R_A, R_B, R_O, R_D = 48, 52, 56, 60, 64
    sM8, sM1 = "s68", "s69"
    sHB, sFB, sGB, sH8 = "s30", "s31", "s17", "s16"
    ST0 = 70
    def srd(d, p, n):
        a(f"s_mov_b32 s{d}, s{p}\ns_mov_b32 s{d+1}, s{p+1}\ns_mov_b32 s{d+2}, {n}\ns_mov_b32 s{d+3}, 0x00020000")
    def S(r): return f"s[{r}:{r+3}]"
    def V(r, n=4): return f"v[{r}:{r+n-1}]"
    def stamp2(k):
        if DIAG == 2: a(f"s_memrealtime s[{ST0+2*k}:{ST0+2*k+1}]\ns_waitcnt lgkmcnt(0)")
    def stamp3(k):
        if DIAG == 3: a(f"s_memrealtime s[{ST0+2*k}:{ST0+2*k+1}]")
    def stamp(k):
        if DIAG == 3 and 1 <= k <= 6: return
        if DIAG == 2 and 1 <= k <= 8: return
        if DIAG: a(f"s_memrealtime s[{ST0+2*k}:{ST0+2*k+1}]\ns_waitcnt lgkmcnt(0)")
    vL16, vN, vG, vM8, vR8 = 1, 2, 3, 4, 5
    vT8 = 7
    XP = 16; PATL = 20; PATG = 24; WB = 32
    QF = 64; AF = 128; TF = 192
    WO = 48; WD = 56; WOP = 160
    def allred_hi(v, tmp, op):
        a(f"v_mov_b32 v{tmp}, v{v}\nv_permlane16_swap_b32 v{v}, v{tmp}\n{op} v{v}, v{v}, v{tmp}")
        a(f"v_mov_b32 v{tmp}, v{v}\nv_permlane32_swap_b32 v{v}, v{tmp}\n{op} v{v}, v{v}, v{tmp}")
    def dpp(op, d, s, mode, bank="0xf"):
        a(f"{op}_dpp v{d}, v{s}, v{s} {mode} row_mask:0xf bank_mask:{bank}")
    def allred_lo8(vs, op):
        if isinstance(vs, int): vs = [vs]
        for m in ("quad_perm:[1,0,3,2]", "quad_perm:[2,3,0,1]", "row_half_mirror"):
            for v in vs: dpp(op, v, v, m)
    def wave_sum(v, tmp):
        allred_lo8(v, "v_add_f32"); dpp("v_add_f32", v, v, "row_mirror"); allred_hi(v, tmp, "v_add_f32")
    def rs8(acc, out):
        for c in range(4): a(f"v_permlane32_swap_b32 v{acc+c}, v{acc+c+4}")
        a(f"v_pk_add_f32 {V(acc,2)}, {V(acc,2)}, {V(acc+4,2)}\nv_pk_add_f32 {V(acc+2,2)}, {V(acc+2,2)}, {V(acc+6,2)}")
        for c in range(2): a(f"v_permlane16_swap_b32 v{acc+c}, v{acc+c+2}")
        a(f"v_pk_add_f32 {V(acc,2)}, {V(acc,2)}, {V(acc+2,2)}")
        dpp("v_add_f32", out, acc, "row_ror:8", "0x3"); dpp("v_add_f32", out, acc + 1, "row_ror:8", "0xc")
    def bfround(d, s):
        a(f"v_cvt_pk_bf16_f32 v{d}, v{s}, v{s}\nv_lshlrev_b32 v{d}, 16, v{d}")
    def gemv(W, P, acc, out, waits=None, nk=4):
        for k in range(nk):
            if waits: waits(k)
            for e in range(4):
                a(f"v_perm_b32 v{P+2*e}, v{W+8*k+4+e}, v{W+8*k+e}, {sLO}")
                a(f"v_perm_b32 v{P+2*e+1}, v{W+8*k+4+e}, v{W+8*k+e}, {sHI}")
            for c in range(8):
                a(f"v_dot2_f32_bf16 v{acc+c}, v{P+c}, v{XP+k}, {'0' if k == 0 else 'v%d' % (acc+c)}")
        rs8(acc, out)
    def tag8(v): a(f"v_and_or_b32 v{v}, v{v}, {sM8}, v{vT8}")
    def check(checks, bad):
        for gi, (mask, pairs) in enumerate(checks):
            b = bad + gi
            for d, e in pairs: a(f"v_xor_b32 v{d}, v{d}, v{e}")
            ds = [d for d, e in pairs]
            if len(ds) == 2: a(f"v_or_b32 v{b}, v{ds[0]}, v{ds[1]}")
            else:
                a(f"v_or3_b32 v{b}, v{ds[0]}, v{ds[1]}, v{ds[2]}")
                k = 3
                while k < len(ds):
                    if k + 1 < len(ds): a(f"v_or3_b32 v{b}, v{ds[k]}, v{ds[k+1]}, v{b}"); k += 2
                    else: a(f"v_or_b32 v{b}, v{ds[k]}, v{b}"); k += 1
            if gi == 0: a(f"v_and_b32 v{b}, {mask}, v{b}")
            else: a(f"v_and_or_b32 v{bad}, v{b}, {mask}, v{bad}")
        a(f"v_cmp_ne_u32 vcc, 0, v{bad}")
    def gather(loads, checks, bad, name, sel="lane", mid=None, issue=True):
        L = a.label(name); D = a.label(name + "d")
        if issue:
            for l in loads: a(l)
        if mid: mid()
        a(f"s_mov_b32 {sCNT}, {SPIN}")
        a(f"{L}:\ns_waitcnt vmcnt(0)")
        check(checks, bad)
        a(f"s_cbranch_vccz {D}\ns_sub_u32 {sCNT}, {sCNT}, 1\ns_cbranch_scc1 {D}")
        if sel == "quad": a("s_wqm_b64 exec, vcc")
        elif sel == "lane": a("s_mov_b64 exec, vcc")
        for l in loads: a(l)
        a(f"s_branch {L}\n{D}:")
        if sel != "wave": a("s_mov_b64 exec, -1")
    def hint(soff, target, name, mid=None, execset=False, lanes=1, voff=None):
        L = a.label(name); D = a.label(name + "d"); W = a.label(name + "w")
        em = (1 << lanes) - 1
        at = f"buffer_atomic_add v126, off, {S(R_WS)}, {soff} sc0 sc1" if voff is None else f"buffer_atomic_add v126, {voff}, {S(R_WS)}, {soff} offen sc0 sc1"
        if not execset: a(f"s_mov_b64 exec, {em}")
        a(f"v_mov_b32 v126, 0\n{at}")
        if mid:
            a("s_mov_b64 exec, -1"); mid(); a(f"s_mov_b64 exec, {em}")
        a(f"""
s_mov_b32 {sCNT}, {HINT}
s_branch {W}
{L}:
{"s_mov_b64 exec, vcc" if lanes > 1 else ""}
v_mov_b32 v126, 0
{at}
s_sub_u32 {sCNT}, {sCNT}, 1
s_cbranch_scc1 {D}
{W}:
s_waitcnt vmcnt(0)
v_cmp_gt_u32 vcc, {target}, v126
s_cbranch_vccnz {L}
{D}:
s_mov_b64 exec, -1
""")
    def cnaddr(dst, k, tmp):
        a(f"s_and_b32 {tmp}, {k}, 31\ns_mul_i32 {tmp}, {tmp}, {HB}\ns_lshr_b32 {dst}, {k}, 5\ns_lshl_b32 {dst}, {dst}, 7\ns_add_u32 {dst}, {dst}, {tmp}\ns_add_u32 {dst}, {dst}, {CN}")
    def mk_pat(dst, sel):
        a(f"""
v_and_b32 v{dst}, 1, v{sel}
v_lshlrev_b32 v{dst}, 16, v{dst}
v_and_b32 v{dst+2}, 2, v{sel}
v_lshlrev_b32 v{dst+2}, 15, v{dst+2}
v_or_b32 v{dst+2}, 1, v{dst+2}
v_mov_b32 v{dst+1}, {t4}
v_mov_b32 v{dst+3}, {t5}
""")
    def mk_tags():
        a(f"""
s_add_u32 {sTAG}, {sTAG}, {KTAG}
s_and_b32 {t5}, {sTAG}, 0xff
v_mov_b32 v{vT8}, {t5}
s_and_b32 {t4}, {sTAG}, 3
s_mul_i32 {t4}, {t4}, 0x8001
s_and_b32 {t4}, {t4}, {sM1}
s_bfe_u32 {t5}, {sTAG}, 0x20002
s_mul_i32 {t5}, {t5}, 0x8001
s_and_b32 {t5}, {t5}, {sM1}
""")
        mk_pat(PATL, 0); mk_pat(PATG, vG)
    def consts():
        a(f"""
s_mov_b32 {sLO}, 0x05040100
s_mov_b32 {sHI}, 0x07060302
s_mov_b32 {sMSK}, 0xffff0000
s_mov_b32 {sM8}, 0xffffff00
s_mov_b32 {sM1}, 0x00010001
s_mov_b32 {sH8}, 0x8000
""")
        if "fgm" in opt:
            xa, xb = divmod(opt["fgm"], 10)
            ch = [8 + xa, 8 + xb, 24 + xa, 24 + xb]
            m = {}
            free = [28, 29, 30, 31]
            src = [g for g in ch if g not in free]; dst = [g for g in free if g not in ch]
            for g1, g2 in zip(src, dst): m[g1] = g2; m[g2] = g1
            a(f"s_mov_b32 {sGB}, {sFG}")
            for g1, g2 in m.items(): a(f"s_cmp_eq_u32 {sGB}, {g1}\ns_cselect_b32 {sFG}, {g2}, {sFG}")
        a(f"""
s_mul_i32 {sHB}, {sH}, {HB}
s_mul_i32 {sFB}, {sFG}, {HB}
s_mul_i32 {sGB}, {sG}, {16*HB}
""")
        if DIAG:
            for k in range(1, 16): a(f"s_mov_b32 s{ST0+2*k}, 0")
        srd(R_WS, 28, 0x10000000)

    stamp_entry = f"s_memrealtime s[{ST0}:{ST0+1}]" if (DIAG or opt.get("hold", 0)) else ""
    a(f"""
{stamp_entry}
s_getpc_b64 s[{R_B}:{R_B+1}]
L_pc:
v_subrev_u32 v8, 256, v0
v_lshlrev_b32 v8, 6, v8
v_cmp_gt_u32 vcc, L_end-L_pc, v8
s_and_saveexec_b64 s[4:5], vcc
s_cbranch_execz L_npf
global_load_dword v9, v8, s[{R_B}:{R_B+1}]
L_npf:
s_mov_b64 exec, s[4:5]
s_cmp_ge_u32 s2, 256
s_cbranch_scc1 L_end
s_load_dwordx16 s[4:19], s[0:1], 0
s_load_dwordx8 s[20:27], s[0:1], 64
s_load_dwordx2 s[28:29], s[0:1], 96
v_lshrrev_b32 v1, 6, v0
v_and_b32 v0, 63, v0
v_readfirstlane_b32 {sW}, v1
v_lshlrev_b32 v{vL16}, 4, v0
v_mov_b32 v19, 0
v_mov_b32 v60, 0
v_mov_b32 v61, 0
v_and_b32 v{vN}, 15, v0
v_lshrrev_b32 v{vG}, 4, v0
v_and_b32 v{vM8}, 7, v0
v_lshrrev_b32 v{vR8}, 3, v0
s_and_b32 {sX}, s2, 7
s_lshr_b32 {sIDX}, s2, 3
s_lshr_b32 {sG}, {sIDX}, 4
s_and_b32 {sJ}, {sIDX}, 7
s_lshr_b32 {t0}, {sIDX}, 3
s_and_b32 {t1}, {t0}, 1
s_lshl_b32 {sH}, {sG}, 4
s_lshl_b32 {t2}, {sX}, 1
s_add_u32 {sH}, {sH}, {t2}
s_add_u32 {sH}, {sH}, {t1}
s_lshl_b32 {sI}, {sX}, 4
s_and_b32 {t1}, {sIDX}, 15
s_add_u32 {sI}, {sI}, {t1}
s_lshl_b32 {sFG}, {t0}, 3
s_add_u32 {sFG}, {sFG}, {sX}
v_lshlrev_b32 v64, 4, v{vR8}
s_lshl_b32 {t0}, {sJ}, 7
v_add_u32 v64, {t0}, v64
v_lshlrev_b32 v65, 16, v{vR8}
v_lshl_add_u32 v65, v{vM8}, 4, v65
s_lshl_b32 {t0}, {sJ}, 19
s_lshl_b32 {t1}, {sH}, 8
s_add_u32 {t2}, {t0}, {t1}
s_lshl_b32 {t1}, {sW}, 7
s_add_u32 {t0}, {t2}, {t1}
s_mov_b32 s{R_A+2}, 4194304
s_mov_b32 s{R_A+3}, 0x00020000
s_cmp_ge_u32 {sW}, 2
s_waitcnt lgkmcnt(0)
s_cbranch_scc1 L_not01
s_mov_b64 s[{R_A}:{R_A+1}], s[8:9]
s_setprio 3
global_load_dwordx4 v[8:11], v{vL16}, s[4:5]
global_load_dwordx4 v[12:15], v64, s[4:5]
""")
    for u in range(8):
        a(f"buffer_load_dwordx4 {V(WB+4*u)}, v65, {S(R_A)}, {t0} offen {NT}")
        if u < 7: a(f"s_add_u32 {t0}, {t0}, 8192")
    a(f"s_load_dword {sTAG}, s[28:29], 0")
    BSAT = opt.get("bsat", "start")
    if N0 and BSAT == "start": a("s_barrier")
    UK = 128
    consts()
    a(f"""
s_add_u32 {t3}, {sHB}, {QP}
s_lshl_b32 {t0}, {sJ}, 9
s_add_u32 {t0}, {t0}, {t3}
s_lshl_b32 {t1}, {sW}, 8
s_add_u32 {t0}, {t0}, {t1}
v_lshl_add_u32 v29, v0, 2, {t0}
s_waitcnt vmcnt(9)
""")
    for e in range(4):
        a(f"v_lshlrev_b32 v{64+2*e}, 16, v{8+e}\nv_and_b32 v{65+2*e}, {sMSK}, v{8+e}")
    a("""
v_pk_add_f32 v[72:73], v[64:65], v[66:67]
v_pk_add_f32 v[74:75], v[68:69], v[70:71]
v_pk_add_f32 v[72:73], v[72:73], v[74:75]
v_add_f32 v72, v72, v73
""")
    wave_sum(72, 73)
    a(f"v_mul_f32 v72, 0x{f2u(1/512):08x}, v72")
    bfround(76, 72)
    for e in range(8): a(f"v_sub_f32 v{64+e}, v{64+e}, v72")
    a("v_mul_f32 v74, v64, v64\nv_mul_f32 v75, v65, v65")
    for e in range(2, 8): a(f"v_fmac_f32 v{74+(e&1)}, v{64+e}, v{64+e}")
    a("v_add_f32 v74, v74, v75")
    wave_sum(74, 73)
    a(f"v_mul_f32 v74, 0x{f2u(1/512):08x}, v74")
    bfround(74, 74)
    a(f"v_add_f32 v74, 0x{f2u(1e-5):08x}, v74")
    bfround(74, 74)
    a("v_sqrt_f32 v74, v74")
    bfround(74, 74)
    a("v_rcp_f32 v74, v74")
    a("s_waitcnt vmcnt(8)")
    for e in range(4):
        a(f"v_lshlrev_b32 v{80+2*e}, 16, v{12+e}\nv_and_b32 v{81+2*e}, {sMSK}, v{12+e}")
    for e in range(8): a(f"v_sub_f32 v{80+e}, v{80+e}, v76")
    for e in range(4): a(f"v_cvt_pk_bf16_f32 v{XP+e}, v{80+2*e}, v{81+2*e}")
    for e in range(4):
        a(f"v_lshlrev_b32 v{64+2*e}, 16, v{XP+e}\nv_and_b32 v{65+2*e}, {sMSK}, v{XP+e}")
    for e in range(8): a(f"v_mul_f32 v{64+e}, v{64+e}, v74")
    for e in range(4): a(f"v_cvt_pk_bf16_f32 v{XP+e}, v{64+2*e}, v{65+2*e}")
    a(f"""
s_waitcnt lgkmcnt(0)
s_add_u32 {t5}, {sTAG}, {KTAG}
s_and_b32 {t5}, {t5}, 0xff
v_mov_b32 v{vT8}, {t5}
""")
    stamp(1)
    if N0 and BSAT == "ln": a("s_barrier")
    gemv(WB, 80, 96, 30, waits=lambda k: a(f"s_waitcnt vmcnt({6-2*k})"))
    tag8(30)
    if L1: a(f"s_movk_i32 {t0}, {QPL}\nbuffer_store_dword v30, v29, {S(R_WS)}, {t0} offen")
    else: a(f"buffer_store_dword v30, v29, {S(R_WS)}, 0 offen sc1")
    if N0 and BSAT == "pub": a("s_barrier")
    stamp(2)
    a(f"v_lshlrev_b32 v104, 4, v{vR8}\nv_add_u32 v104, {L_XN}, v104\nds_write_b128 v104, {V(XP)}")
    a("s_waitcnt lgkmcnt(0)" if (L1 and RELP) else "s_waitcnt vmcnt(0) lgkmcnt(0)")
    stamp(3)
    a("s_barrier")
    if L4: a(f"s_lshl_b32 {t0}, {sJ}, 9\ns_add_u32 {t0}, {t0}, {sHB}\ns_add_u32 {t0}, {t0}, {CP+0x1000}\nv_lshlrev_b32 v64, 3, v0\nbuffer_load_dword v65, v64, {S(R_WS)}, {t0} offen")
    mk_tags()
    if L1: a(f"s_sleep 32\nbuffer_store_dword v30, v29, {S(R_WS)}, 0 offen sc1" if opt.get("gdel", 0) else f"buffer_store_dword v30, v29, {S(R_WS)}, 0 offen sc1")
    a("s_branch L_b0")
    a(f"L_not01:\ns_load_dword {sTAG}, s[28:29], 0")
    a(f"s_cmp_ge_u32 {sW}, 4\ns_cbranch_scc1 L_loader")
    consts()
    a(f"""
s_lshl_b32 {t0}, {sJ}, 7
s_add_u32 {t0}, {t0}, {sHB}
s_add_u32 {t0}, {t0}, {CN4}
""")
    a(f"s_and_b32 {t4}, s2, 63\ns_lshl_b32 {t5}, {sG}, 6\ns_or_b32 {t4}, {t4}, {t5}\ns_and_b32 {t5}, s2, 64\ns_lshl_b32 {t5}, {t5}, 1\ns_or_b32 {t4}, {t4}, {t5}")
    cnaddr(t3, t4, t1)
    a(f"""
s_cmp_eq_u32 {sW}, 2
s_cselect_b32 {t0}, {t0}, {t3}
v_mov_b32 v64, 0
v_mov_b32 v65, 0
v_mov_b32 v66, 0
v_mov_b32 v67, 0
s_mov_b64 exec, 0xff
{"s_cbranch_scc1 L_nz" if (L4 and not C5) else ""}
buffer_store_dwordx4 v[64:67], v{vL16}, {S(R_WS)}, {t0} offen sc1
L_nz:
s_mov_b64 exec, -1
""")
    if L1: a(f"s_add_u32 {t0}, {sHB}, {QP+QPL}\nv_lshlrev_b32 v68, 6, v0\nbuffer_load_dword v69, v68, {S(R_WS)}, {t0} offen")
    if N0 and BSAT == "start": a("s_barrier")
    srd(R_B, 10, 4194304)
    a(f"""
s_and_b32 s11, {sW}, 1
v_lshlrev_b32 v28, 13, v{vN}
v_lshl_add_u32 v28, v{vG}, 4, v28
s_lshl_b32 {t1}, s11, 18
s_add_u32 {u0}, {t2}, {t1}
s_add_u32 {u1}, {u0}, 131072
s_add_u32 {t3}, {sHB}, {QP}
v_and_b32 v104, 31, v0
v_lshrrev_b32 v105, 5, v0
v_lshlrev_b32 v106, 11, v105
v_lshl_add_u32 v106, v104, 4, v106
s_waitcnt {"vmcnt(0) " if opt.get("ukd", 0) else ""}lgkmcnt(0)
""")
    for t in range(2):
        for s_ in range(4):
            a(f"buffer_load_dwordx4 {V(UK+16*t+4*s_)}, v28, {S(R_B)}, {u0 if t == 0 else u1} offen offset:{64*s_} {NTU}")
    a(f"""
s_lshl_b32 {t1}, s11, 8
s_add_u32 {t1}, {t1}, {L_QS}
v_and_b32 v107, 1, v104
v_lshlrev_b32 v107, 6, v107
v_lshl_add_u32 v107, v105, 5, v107
v_and_b32 v111, 14, v104
v_add_u32 v107, v111, v107
v_and_b32 v111, 16, v104
v_lshl_add_u32 v107, v111, 3, v107
v_add_u32 v107, {t1}, v107
v_lshlrev_b32 v108, 4, v{vG}
v_add_u32 v108, {t1}, v108
v_lshlrev_b32 v109, 5, v{vN}
v_lshl_add_u32 v109, v{vG}, 3, v109
v_lshrrev_b32 v110, 4, v109
s_lshl_b32 {t1}, {sJ}, 7
s_add_u32 {t0}, {sHB}, {t1}
s_lshl_b32 {t1}, s11, 6
s_add_u32 {t0}, {t0}, {t1}
s_add_u32 {t0}, {t0}, {QA}
v_add_u32 v109, {t0}, v109
""")
    mk_tags()
    mk_pat(120, 110)
    a(f"""
v_and_b32 v110, 1, v{vG}
v_cmp_eq_u32 vcc, 1, v110
v_cndmask_b32 v120, v120, v122, vcc
v_cndmask_b32 v121, v121, v123, vcc
s_setprio 3
{"s_barrier" if (N0 and BSAT != "start") else ""}
{"" if L1 == 2 else "s_barrier"}
""")
    G1 = 64
    sc = (128 ** -0.5) * math.log2(math.e)
    a(f"v_mov_b32 v111, 0x{f2u(sc):08x}")
    if L1:
        a(f"s_add_u32 {t0}, {t3}, {QPL}\ns_mov_b32 {sCNT}, {NL if L1 == 1 else 40}\nL_l1:")
        for u in range(4): a(f"buffer_load_dwordx4 {V(G1+4*u)}, v106, {S(R_WS)}, {t0} offen offset:{u*512} sc1")
        a("s_waitcnt vmcnt(0)")
        check([("0xff", [(G1 + k, vT8) for k in range(16)])], 96)
        if L1 == 2:
            a(f"s_cbranch_vccz L_l1b\ns_mov_b64 exec, vcc\ns_sub_u32 {sCNT}, {sCNT}, 1\ns_cbranch_scc0 L_l1\ns_barrier")
        else: a(f"s_cbranch_vccz L_l1d\ns_mov_b64 exec, vcc\ns_sub_u32 {sCNT}, {sCNT}, 1\ns_cbranch_scc0 L_l1")
    gather([f"buffer_load_dwordx4 {V(G1+4*u)}, v106, {S(R_WS)}, {t3} offen offset:{u*512} sc1" for u in range(4)],
           [("0xff", [(G1 + k, vT8) for k in range(16)])], 96, "L_h1")
    if L1 == 2: a("s_branch L_l1d\nL_l1b:\ns_barrier")
    if L1: a("L_l1d:\ns_mov_b64 exec, -1")
    stamp(4)
    for e in (0, 2): a(f"v_pk_add_f32 {V(G1+e,2)}, {V(G1+e,2)}, {V(G1+4+e,2)}\nv_pk_add_f32 {V(G1+8+e,2)}, {V(G1+8+e,2)}, {V(G1+12+e,2)}")
    for e in (0, 2): a(f"v_pk_add_f32 {V(G1+e,2)}, {V(G1+e,2)}, {V(G1+8+e,2)}")
    a(f"""
v_permlane32_swap_b32 v{G1}, v{G1+2}
v_permlane32_swap_b32 v{G1+1}, v{G1+3}
v_pk_add_f32 {V(G1,2)}, {V(G1,2)}, {V(G1+2,2)}
v_cvt_pk_bf16_f32 v{G1}, v{G1}, v{G1+1}
ds_write_b16 v107, v{G1}
ds_write_b16_d16_hi v107, v{G1} offset:16
s_waitcnt lgkmcnt(0)
""")
    for s_ in range(4): a(f"ds_read_b128 {V(80+4*s_)}, v108 offset:{64*s_}")
    for s_ in range(4):
        a(f"s_waitcnt lgkmcnt({3-s_})")
        for t in range(2):
            a(f"v_mfma_f32_16x16x32_bf16 {V(112+4*t)}, {V(UK+16*t+4*s_)}, {V(80+4*s_)}, {'0' if s_ == 0 else V(112+4*t)}")
    a(f"""
s_mov_b32 exec_lo, 0x00020002
s_mov_b32 exec_hi, 0x00020002
v_mov_b32 v112, v116
v_mov_b32 v113, v117
v_mov_b32 v114, v118
v_mov_b32 v115, v119
s_mov_b32 exec_lo, 0x00030003
s_mov_b32 exec_hi, 0x00030003
v_mul_f32 v112, v111, v112
v_mul_f32 v113, v111, v113
v_mul_f32 v114, v111, v114
v_mul_f32 v115, v111, v115
v_add_u32 v112, 0x10000, v112
v_add_u32 v113, 0x10000, v113
v_add_u32 v114, 0x10000, v114
v_add_u32 v115, 0x10000, v115
v_perm_b32 v12, v113, v112, {sHI}
v_perm_b32 v13, v115, v114, {sHI}
v_bfi_b32 v12, {sM1}, v120, v12
v_bfi_b32 v13, {sM1}, v121, v13
buffer_store_dwordx2 v[12:13], v109, {S(R_WS)}, 0 offen sc1
s_mov_b64 exec, -1
""")
    stamp(5)
    a("s_branch L_b0")
    a("L_loader:")
    srd(R_A, 6, 16777216)
    consts()
    a("s_waitcnt lgkmcnt(0)")
    mk_tags()
    GUAT = opt.get("guat", 2)
    a(f"""
s_mul_i32 {u1}, {sJ}, {64*3584}
s_lshl_b32 {t3}, {sFG}, 7
s_add_u32 {u1}, {u1}, {t3}
s_and_b32 {t1}, {sW}, 1
s_mul_i32 {t1}, {t1}, {32*3584}
s_add_u32 {u1}, {u1}, {t1}
s_cmp_lt_u32 {sFG}, 28
s_cselect_b32 s{R_B+2}, 1835008, 0
s_bitcmp0_b32 {sW}, 1
s_cselect_b64 s[{R_B}:{R_B+1}], s[18:19], s[20:21]
s_mov_b32 s{R_B+3}, 0x00020000
v_mul_u32_u24 v13, {4*3584}, v{vR8}
v_lshl_add_u32 v13, v{vM8}, 4, v13
v_add_u32 v14, 7168, v13
s_sub_u32 {t0}, {sW}, 4
""")
    if SPREAD:
        a(f"""
s_lshl_b32 {t1}, {t0}, 4
s_add_u32 {t1}, {t1}, {sI}
s_and_b32 {t1}, {t1}, 127
s_xor_b32 {t3}, {t1}, 64
s_add_u32 {t3}, {t3}, 512
s_lshl_b32 {t2}, {t0}, 7
s_add_u32 {t1}, {t1}, {t2}
s_add_u32 {t3}, {t3}, {t2}
s_lshl_b32 {t1}, {t1}, 14
s_lshl_b32 {t3}, {t3}, 14
s_mul_i32 {t2}, {t0}, {16*RS}
""")
    else:
        a(f"""
s_lshl_b32 {t1}, {sI}, 17
s_lshl_b32 {t2}, {t0}, 14
s_add_u32 {t1}, {t1}, {t2}
s_add_u32 {t3}, {t1}, 65536
s_mul_i32 {t2}, {t0}, {16*RS}
""")
    if N0: a("s_barrier")
    c0, c1, c2 = "s8", "s9", "s10"
    a(f"s_mov_b32 {c0}, {t1}\ns_mov_b32 {c1}, {t2}\ns_mov_b32 {c2}, {t3}")
    def cgroup(grp, R):
        if grp == N0: a("s_barrier")
        if grp == GUAT:
            for k in range(4):
                a(f"buffer_load_dwordx4 {V(WB+16+4*k)}, v{13+(k>>1)}, {S(R_B)}, {u1} offen offset:{3584*(k&1)} {NT}")
                if THR: a(f"s_waitcnt vmcnt({THR})")
        for r in range(4):
            a(f"s_add_u32 m0, {c1}, {32*r}")
            a(f"buffer_load_dwordx4 v{vL16}, {S(R)}, {c0} offen offset:{1024*r} {NTC} lds")
            if THR: a(f"s_waitcnt vmcnt({THR})")
        if grp == 3: a(f"s_mov_b32 {c0}, {c2}\ns_add_u32 {c1}, {c1}, {52*RS}")
        elif grp < 7: a(f"s_add_u32 {c0}, {c0}, 4096\ns_add_u32 {c1}, {c1}, {4*RS}")
    for grp in range(B0AT): cgroup(grp, R_A)
    stamp(1)
    a(f"s_waitcnt vmcnt({4*(B0AT-4)})")
    a("L_b0:")
    srd(R_O, 14, 4194304)
    srd(R_D, 22, 1835008)
    srd(R_A, 12, 4194304)
    srd(R_B, 6, 16777216)
    a(f"""
s_lshl_b32 {t0}, {sG}, 6
s_lshl_b32 {t1}, {sW}, 3
s_add_u32 {t0}, {t0}, {t1}
s_and_b32 {t1}, s2, 7
s_add_u32 {t0}, {t0}, {t1}
""")
    cnaddr("s11", t0, t1)
    a(f"s_lshl_b32 {t0}, {sG}, 6\ns_lshl_b32 {t1}, {sJ}, 3\ns_add_u32 {t0}, {t0}, {t1}\ns_add_u32 {t0}, {t0}, {sW}")
    cnaddr("s18", t0, t1)
    a(f"""
v_mul_u32_u24 v8, {RS}, v{vN}
v_lshl_add_u32 v8, v{vG}, 4, v8
s_mul_i32 {t0}, {sW}, {16*RS}
v_add_u32 v9, {t0}, v8
v_add_u32 v8, {L_Q}, v8
v_lshrrev_b32 v10, 2, v0
v_mul_u32_u24 v10, {RS}, v10
v_and_b32 v11, 3, v0
v_lshl_add_u32 v10, v11, 3, v10
s_lshl_b32 {t0}, {sW}, 7
v_add_u32 v10, {t0}, v10
v_add_u32 v11, {64*RS}, v10
s_lshl_b32 {t0}, {sJ}, 19
s_lshl_b32 {t1}, {sH}, 8
s_add_u32 {t0}, {t0}, {t1}
s_and_b32 {t1}, {sW}, 3
s_lshl_b32 {t1}, {t1}, 17
s_add_u32 {u0}, {t0}, {t1}
s_lshl_b32 {t1}, {sJ}, 10
s_add_u32 {u1}, {sFB}, {t1}
s_and_b32 {t1}, {sW}, 3
s_lshl_b32 {t1}, {t1}, 8
s_add_u32 {u1}, {u1}, {t1}
s_add_u32 {u1}, {u1}, {FP}
s_and_b32 {t1}, {sW}, 1
s_lshl_b32 {t1}, {t1}, 6
s_add_u32 {t1}, {t1}, {L_XN}
v_lshl_add_u32 v15, v{vR8}, 3, {t1}
v_lshlrev_b32 v13, 11, v{vR8}
v_lshl_add_u32 v13, v{vM8}, 4, v13
v_lshlrev_b32 v14, 13, v{vR8}
v_lshl_add_u32 v14, v{vM8}, 4, v14
v_lshrrev_b32 v28, 1, v{vN}
v_xor_b32 v28, v28, v{vG}
v_lshlrev_b32 v28, 5, v28
v_and_b32 v29, 1, v0
v_lshl_add_u32 v28, v29, 4, v28
v_lshl_add_u32 v28, v{vG}, 13, v28
v_xor_b32 v29, 128, v28
v_add_u32 v29, 32768, v29
v_mul_u32_u24 v30, {OH}, v{vM8}
v_lshl_add_u32 v30, v{vG}, 4, v30
v_and_b32 v31, 8, v0
v_lshl_add_u32 v30, v31, 3, v30
s_mul_i32 {t3}, {sG}, {16*OH}
s_mul_i32 {t4}, {sW}, {IB}
s_add_u32 {t3}, {t3}, {t4}
s_lshl_b32 {t4}, {sI}, 7
s_add_u32 {t3}, {t3}, {t4}
s_add_u32 {t3}, {t3}, {OP}
v_add_u32 v30, {t3}, v30
v_add_u32 v31, {8*OH}, v30
v_lshlrev_b32 v6, 4, v{vN}
v_add_u32 v6, {L_MX}, v6
s_lshl_b32 {t2}, {sH}, 17
s_lshl_b32 {t3}, {sJ}, 14
s_add_u32 {t2}, {t2}, {t3}
s_lshl_b32 {t5}, {sW}, 7
s_add_u32 {w0_}, {t2}, {t5}
s_lshl_b32 {t3}, {sFG}, 16
s_add_u32 {t5}, {t5}, {t3}
s_lshl_b32 {t3}, {sJ}, 10
s_add_u32 {w1_}, {t5}, {t3}
s_mul_i32 {t3}, {sW}, {4*RS}
s_add_u32 {t3}, {t3}, {L_Q}
v_add_u32 v12, {t3}, v{vL16}
s_mul_i32 {t0}, {sW}, {4*HB}
s_add_u32 {t0}, {t0}, {sGB}
s_add_u32 {t0}, {t0}, {QA}
s_add_u32 {t1}, {t0}, {HB}
s_add_u32 {t2}, {t1}, {HB}
s_add_u32 {t3}, {t2}, {HB}
s_add_u32 {t4}, {u0}, 65536
s_cmp_ge_u32 {sW}, 4
""")
    wol = [f"buffer_load_dwordx4 {V(WO)}, v13, {S(R_O)}, {w0_} offen {NT}", f"buffer_load_dwordx4 {V(WO+4)}, v13, {S(R_O)}, {w0_} offen offset:1024 {NT}",
           f"buffer_load_dwordx4 {V(WD)}, v14, {S(R_D)}, {w1_} offen {NT}"]
    WO03 = opt.get("wo03", "ba")
    if WO03 == "b0":
        a("s_cbranch_scc1 L_nwo")
        for l in wol: a(l)
        a("L_nwo:")
    a("s_waitcnt lgkmcnt(0)\ns_barrier")
    def rdTh(ks, T, half):
        r = TF + 16 * ks + 4 * T + 2 * half
        a(f"ds_read_b64_tr_b16 {V(r,2)}, {'v11' if half else 'v10'} offset:{16*ks*RS + 32*T}")
    G2 = 64
    h2loads = [f"buffer_load_dwordx4 {V(G2+4*k)}, v{vL16}, {S(R_WS)}, {[t0,t1,t2,t3][k]} offen sc1" for k in range(4)]
    T1T = opt.get("t1t", THR)
    NE = opt.get("ne", 4)
    LT = opt.get("lt", "")
    if LT: NE = 0
    tl = [f"buffer_load_dwordx4 {V(WB+4*k)}, v{28+(k&1)}, {S(R_A)}, {u0 if k < 2 else t4} offen {NT}" for k in range(4)] + wol
    PFR = 80
    a("s_cbranch_scc1 L_ng")
    for l in h2loads: a(l)
    stamp(6)
    for ks in range(4):
        if ks == 2: a("s_waitcnt lgkmcnt(7)")
        for T in range(4): rdTh(ks, T, 0)
    gather(h2loads, [(sM1, [(G2 + 4 * k + e, PATL + e) for k in range(4) for e in range(4)])], 96, "L_h2g", sel="quad", issue=False)
    a("s_waitcnt lgkmcnt(8)")
    for k in range(4): a(f"ds_write_b128 v12, {V(G2+4*k)} offset:{k*RS}")
    W3 = opt.get("w3", "b2")
    a(f"s_setprio 0\nv_add_u32 v76, {L_P}, v{vL16}\ns_waitcnt lgkmcnt(0)\ns_barrier")
    stamp(7)
    if W3 == "bq":
        for l in wol: a(l)
    a("s_barrier\nds_read_b128 v[68:71], v6")
    for ks in range(4):
        if ks == 3: a("s_waitcnt lgkmcnt(7)")
        for T in range(4): rdTh(ks, T, 1)
    if W3 == "b2":
        for l in wol: a(l)
    a(f"""
v_max3_f32 v66, v68, v69, v70
v_max_f32 v66, v66, v71
v_and_b32 v66, {sM8}, v66
s_barrier
""")
    for ks in range(4): a(f"ds_read_b128 {V(PFR+4*ks)}, v76 offset:{1024*ks}")
    a("s_branch L_pv\nL_ng:")
    AFa = TF; AFb = AF; SA = 12; SB_ = 60
    FPAT = opt.get("fpat", "t"); fpst = f"buffer_store_dword v18, v19, {S(R_WS)}, {u1} offen sc1"
    a(f"v_subrev_u32 v12, {64*RS}, v9\nds_read_b64 {V(XP,2)}, v15")
    for s in range(8): a(f"ds_read_b128 {V(AFa+4*s)}, v12 offset:{64*s}")
    for grp in range(B0AT, 8):
        cgroup(grp, R_B)
        if grp == B0AT:
            a("s_waitcnt lgkmcnt(0)")
            for s in range(8, 16): a(f"ds_read_b128 {V(AFa+4*s)}, v12 offset:{64*s}")
    stamp(6)
    gemv(WB + 16, 64, 72, 18, nk=2)
    tag8(18)
    a(f"""
v_lshlrev_b32 v19, 2, v0
v_mov_b32 v16, v13
v_mov_b32 v17, v14
{fpst if FPAT == "bq" else ""}
s_waitcnt lgkmcnt(0)
s_barrier
""")
    stamp(7)
    tl2 = [l.replace("v13,", "v16,").replace("v14,", "v17,") for l in tl]
    PRE = 12
    for s in range(PRE): a(f"ds_read_b128 {V(QF+4*s)}, v8 offset:{64*s}")
    for s in range(16):
        rem = min(16, s + PRE) - (s + 1)
        a(f"s_waitcnt lgkmcnt({rem})")
        a(f"v_mfma_f32_16x16x32_bf16 {V(SA)}, {V(AFa+4*s)}, {V(QF+4*s)}, {'0' if s == 0 else V(SA)}")
        if s + PRE < 16: a(f"ds_read_b128 {V(QF+4*(s+PRE))}, v8 offset:{64*(s+PRE)}")
    for ks in range(2):
        for T in range(4): rdTh(ks, T, 0)
    for l in tl2[:NE]:
        if T1T: a(f"s_waitcnt vmcnt({T1T-1})")
        a(l)
    a("s_waitcnt lgkmcnt(7)")
    for ks in range(2, 4):
        for T in range(4): rdTh(ks, T, 0)
    a(f"s_setprio 3\ns_waitcnt vmcnt({NE}) lgkmcnt(3)")
    stamp(8)
    for s in range(PRE): a(f"ds_read_b128 {V(AFb+4*s)}, v9 offset:{64*s}")
    for l in tl2[NE:]: a(l)
    a(f"""
{fpst if FPAT == "t" else ""}
s_and_b32 {t0}, {sW}, 3
s_lshl_b32 {t2}, {t0}, 2
s_lshl_b32 {t0}, {t0}, 10
s_add_u32 {t3}, {t0}, {L_P}
v_add_u32 v28, {t2}, v6
v_add_u32 v29, {t3}, v{vL16}
v_max3_f32 v16, v{SA}, v{SA+1}, v{SA+2}
""")
    for s in range(16):
        rem = min(16, s + PRE) - (s + 1)
        a(f"s_waitcnt lgkmcnt({rem})")
        a(f"v_mfma_f32_16x16x32_bf16 {V(SB_)}, {V(AFb+4*s)}, {V(QF+4*s)}, {'0' if s == 0 else V(SB_)}")
        if s + PRE < 16: a(f"ds_read_b128 {V(AFb+4*(s+PRE))}, v9 offset:{64*(s+PRE)}")
    a(f"""
v_add_u32 v76, {L_P}, v{vL16}
v_max3_f32 v67, v{SB_}, v{SB_+1}, v{SB_+2}
v_max3_f32 v66, v16, v{SA+3}, v{SB_+3}
v_max_f32 v66, v66, v67
""")
    allred_hi(66, 67, "v_max_f32")
    a("ds_write_b32 v28, v66")
    stamp3(1)
    a("s_waitcnt lgkmcnt(0)\ns_barrier")
    if DIAG == 3: stamp3(2); a("s_waitcnt lgkmcnt(0)")
    a("ds_read_b128 v[68:71], v6")
    for ks in range(2):
        for T in range(4): rdTh(ks, T, 1)
    a(f"""
s_waitcnt lgkmcnt(8)
v_max3_f32 v66, v68, v69, v70
v_max_f32 v66, v66, v71
v_and_b32 v66, {sM8}, v66
""")
    for b in (SA, SB_):
        for r in range(4): a(f"v_sub_f32 v{b+r}, v{b+r}, v66")
    for b in (SA, SB_):
        for r in range(4): a(f"v_exp_f32 v{b+r}, v{b+r}")
    a(f"""
v_cvt_pk_bf16_f32 v68, v{SA}, v{SA+1}
v_cvt_pk_bf16_f32 v69, v{SA+2}, v{SA+3}
v_cvt_pk_bf16_f32 v70, v{SB_}, v{SB_+1}
v_cvt_pk_bf16_f32 v71, v{SB_+2}, v{SB_+3}
s_waitcnt lgkmcnt(6)
ds_write_b128 v29, v[68:71]
""")
    for ks in range(2, 4):
        for T in range(4): rdTh(ks, T, 1)
    if DIAG == 3: stamp3(3); a("s_waitcnt lgkmcnt(0)")
    a("s_waitcnt lgkmcnt(8)\ns_setprio 0\ns_barrier")
    if DIAG == 3: stamp3(4); a("s_waitcnt lgkmcnt(0)")
    for ks in range(4): a(f"ds_read_b128 {V(PFR+4*ks)}, v76 offset:{1024*ks}")
    if FPAT == "b3": a(fpst)
    a("L_pv:")
    def late_tail():
        L = a.label("L_lt")
        a(f"""
v_lshlrev_b32 v62, 11, v{vR8}
v_lshl_add_u32 v62, v{vM8}, 4, v62
v_lshlrev_b32 v63, 13, v{vR8}
v_lshl_add_u32 v63, v{vM8}, 4, v63
s_cmp_lt_u32 {sW}, 4
s_cbranch_scc1 {L}
""")
        for k in range(4): a(f"buffer_load_dwordx4 {V(WB+4*k)}, v{60+(k&1)}, {S(R_A)}, {u0 if k < 2 else 's19'} offen {NT}")
        a(f"{L}:")
        for l in wol: a(l.replace("v13,", "v62,").replace("v14,", "v63,"))
    if LT == "b3": late_tail()
    OA = AF; LA = AF + 16; ONE = AF + 20
    a(f"v_mov_b32 v77, 1\ns_cmp_lg_u32 {sW}, 2\ns_cbranch_scc1 L_noml")
    for r in range(4): a(f"v_mov_b32 v{ONE+r}, 0x3f803f80")
    a(f"""
v_lshlrev_b32 v75, 3, v0
s_lshl_b32 {t3}, {sG}, 14
s_lshl_b32 {t4}, {sI}, 7
s_add_u32 {t3}, {t3}, {t4}
s_add_u32 {t3}, {t3}, {ML}
v_or_b32 v108, v66, v{vT8}
""")
    for ks in range(4):
        a(f"s_waitcnt lgkmcnt({3-ks})")
        a(f"v_mfma_f32_16x16x32_bf16 {V(LA)}, {V(ONE)}, {V(PFR+4*ks)}, {'0' if ks == 0 else V(LA)}")
    a(f"""
v_and_or_b32 v109, v{LA}, {sM8}, v{vT8}
s_mov_b64 exec, 0xffff
buffer_store_dwordx2 v[108:109], v75, {S(R_WS)}, {t3} offen sc1
s_mov_b64 exec, -1
L_noml:
""")
    for ks in range(4):
        a(f"s_waitcnt lgkmcnt({3-ks})")
        for T in range(4):
            a(f"v_mfma_f32_16x16x32_bf16 {V(OA+4*T)}, {V(TF+16*ks+4*T)}, {V(PFR+4*ks)}, {'0' if ks == 0 else V(OA+4*T)}")
    EA3 = opt.get("ea3", 1); EA5 = opt.get("ea5", 1)
    if EA3 == 2: a(f"s_mov_b64 exec, 1\nbuffer_atomic_add v77, off, {S(R_WS)}, s11 sc1\ns_mov_b64 exec, -1")
    for T in range(4):
        a(f"v_cvt_pk_bf16_f32 v{96+2*T}, v{OA+4*T}, v{OA+4*T+1}\nv_cvt_pk_bf16_f32 v{97+2*T}, v{OA+4*T+2}, v{OA+4*T+3}")
        if T < 2:
            a(f"v_bfi_b32 v{104+2*T}, {sM1}, v{PATG+2*T}, v{96+2*T}\nv_bfi_b32 v{105+2*T}, {sM1}, v{PATG+2*T+1}, v{97+2*T}")
        a(f"v_bfi_b32 v{96+2*T}, {sM1}, v{PATG+(2*T)%4}, v{96+2*T}\nv_bfi_b32 v{97+2*T}, {sM1}, v{PATG+(2*T+1)%4}, v{97+2*T}")
    stamp3(5)
    if EA3 == 1: a(f"s_mov_b64 exec, 1\nbuffer_atomic_add v77, off, {S(R_WS)}, s11 sc1\ns_mov_b64 exec, -1")
    for e in range(4): a(f"v_mov_b32_dpp v{96+e}, v{100+e} row_ror:8 row_mask:0xf bank_mask:0xc")
    a(f"buffer_store_dwordx4 v[96:99], v30, {S(R_WS)}, 0 offen sc1")
    for e in range(4): a(f"v_mov_b32_dpp v{100+e}, v{104+e} row_ror:8 row_mask:0xf bank_mask:0x3")
    a(f"buffer_store_dwordx4 v[100:103], v31, {S(R_WS)}, 0 offen sc1")
    a("s_mov_b64 exec, 1" if EA3 else f"s_mov_b64 exec, 1\nbuffer_atomic_add v77, off, {S(R_WS)}, s11 sc1")
    stamp(9)
    if LT == "pv": a("s_mov_b64 exec, -1"); late_tail(); a("s_mov_b64 exec, 1")
    hfloads = [f"buffer_load_dword v{104+k}, v10, {S(R_WS)}, {t4} offen offset:{256*k} sc1" for k in range(4)]
    def ffn2s():
        for e in range(4):
            a(f"v_lshlrev_b32 v{168+2*e}, 16, v{WD+e}\nv_and_b32 v{169+2*e}, {sMSK}, v{WD+e}")
        for e in range(4):
            a(f"v_perm_b32 v{WOP+2*e}, v{WO+4+e}, v{WO+e}, {sLO}\nv_perm_b32 v{WOP+2*e+1}, v{WO+4+e}, v{WO+e}, {sHI}")
    def fin_addr():
        a(f"""
s_lshr_b32 s14, s2, 4
s_and_b32 s14, s14, 7
s_lshl_b32 s15, {sW}, 3
s_add_u32 s15, s15, s14
s_add_u32 s15, s15, 128
""")
        if C5:
            a(f"s_lshl_b32 s14, s14, 2\ns_and_b32 s15, s2, 3\ns_add_u32 s14, s14, s15\ns_mul_i32 s14, s14, {HB}\ns_lshl_b32 s15, {sW}, 7\ns_add_u32 s12, s14, s15\ns_add_u32 s12, s12, {CN4}")
        else: cnaddr("s12", "s15", "s14")
        a(f"""
s_sub_u32 s13, {sFG}, 24
s_and_b32 s13, s13, 7
s_lshl_b32 s15, s13, 3
s_add_u32 s14, s15, {sW}
s_add_u32 s14, s14, 128
""")
        if C5:
            a(f"s_mul_i32 s14, {sW}, {4*HB}\ns_lshl_b32 s11, s13, 7\ns_add_u32 s11, s11, s14\ns_add_u32 s11, s11, {CN4}\nv_mul_u32_u24 v179, {HB}, v0")
        else: cnaddr("s11", "s14", "s10")
        a(f"""
s_add_u32 s15, s15, {sJ}
s_mul_i32 s8, s15, {SB}
s_lshl_b32 s9, {sW}, 10
s_add_u32 s8, s8, s9
s_add_u32 s8, s8, {SP}
s_add_u32 s9, s8, 8192
s_lshl_b32 s13, s13, 6
s_add_u32 s13, s13, {sJ}
s_lshl_b32 s13, s13, 1
v_lshl_add_u32 v176, v{vM8}, 4, s13
v_bfe_u32 v177, v0, 4, 1
v_lshlrev_b32 v177, 8, v177
v_and_b32 v178, 3, v0
v_lshl_add_u32 v177, v178, 6, v177
v_lshrrev_b32 v178, 5, v0
v_lshl_add_u32 v177, v178, 5, v177
s_lshl_b32 s14, {sW}, 2
s_add_u32 s14, s14, {L_FIN}
v_add_u32 v177, s14, v177
v_lshlrev_b32 v178, 5, v{vM8}
v_add_u32 v178, {L_FIN}, v178
""")
    def mid3():
        fin_addr()
        a(f"""
s_cmp_lt_u32 {sW}, 4
s_cbranch_scc1 L_pc0
s_lshl_b32 {t0}, {sW}, 12
s_add_u32 {t0}, {t0}, {L_UV - 4*4096}
v_add_u32 v9, {t0}, v{vL16}
s_waitcnt vmcnt({ 7 if FPAT == 'bq' else 8 })
""")
        for u in range(4): a(f"ds_write_b128 v9, {V(WB+4*u)} offset:{1024*u}")
        a(f"""
L_pc0:
v_lshlrev_b32 v8, 7, v{vR8}
s_lshl_b32 {t0}, {sG}, 14
s_lshl_b32 {t1}, {sW}, 11
s_add_u32 {t0}, {t0}, {t1}
s_and_b32 {t1}, {sH}, 15
s_lshl_b32 {t1}, {t1}, 3
s_add_u32 {t0}, {t0}, {t1}
s_add_u32 {t0}, {t0}, {ML}
s_mul_i32 {t1}, {sH}, {OH}
s_mul_i32 {t2}, {sJ}, {IB}
s_add_u32 {t1}, {t1}, {t2}
s_lshl_b32 {t2}, {sW}, 11
s_add_u32 {t1}, {t1}, {t2}
s_add_u32 {t1}, {t1}, {OP}
s_lshl_b32 {t2}, {sW}, 3
s_add_u32 {t2}, {t2}, {L_ST2}
v_mov_b32 v74, {t2}
v_bfe_u32 v75, v0, 3, 1
v_mul_u32_u24 v75, 160, v75
v_lshl_add_u32 v75, v{vM8}, 4, v75
v_lshl_add_u32 v75, v{vG}, 2, v75
s_mul_i32 {t2}, {sW}, 320
s_add_u32 {t2}, {t2}, {L_OR}
v_add_u32 v75, {t2}, v75
v_mul_u32_u24 v76, 160, v{vN}
v_lshl_add_u32 v76, v{vG}, 4, v76
v_add_u32 v76, {L_OR}, v76
v_lshrrev_b32 v77, 2, v0
v_and_b32 v78, 7, v77
v_xor_b32 v78, {sW}, v78
v_lshlrev_b32 v77, 8, v77
v_lshl_add_u32 v77, v78, 5, v77
v_and_b32 v78, 3, v0
v_lshl_add_u32 v77, v78, 3, v77
v_add_u32 v77, {L_UV}, v77
v_lshlrev_b32 v78, 3, v{vM8}
v_add_u32 v78, {L_ST2}, v78
v_lshlrev_b32 v79, 4, v{vG}
v_add_u32 v79, {L_ST2}, v79
v_mov_b32 v14, {sH8}
s_lshl_b32 {t2}, {sW}, 9
s_add_u32 {t2}, {sHB}, {t2}
s_lshl_b32 {t3}, {sJ}, 6
s_add_u32 {t2}, {t2}, {t3}
s_add_u32 {t2}, {t2}, {CP}
v_lshl_add_u32 v15, v0, 2, {t2}
s_lshl_b32 {t2}, {sJ}, 9
s_add_u32 {t2}, {sHB}, {t2}
s_add_u32 {t2}, {t2}, {CP}
v_lshlrev_b32 v9, 6, v{vM8}
v_lshl_add_u32 v9, v{vR8}, 3, v9
v_mul_u32_u24 v11, {SB}, v{vR8}
v_lshl_add_u32 v11, v{vM8}, 3, v11
s_mul_i32 {t3}, {sW}, {8*SB}
s_lshl_b32 {t4}, s2, 6
s_add_u32 {t3}, {t3}, {t4}
s_add_u32 {t3}, {t3}, {SP}
v_lshlrev_b32 v10, 10, v{vM8}
v_lshl_add_u32 v10, v{vR8}, 2, v10
s_lshl_b32 {t4}, {sJ}, 5
s_add_u32 {t4}, {sFB}, {t4}
s_add_u32 {t4}, {t4}, {FP}
s_lshl_b32 {u0}, {sW}, 7
s_add_u32 {u0}, {u0}, {sHB}
s_add_u32 {u0}, {u0}, {CN4}
s_lshl_b32 {u1}, {sJ}, 7
s_add_u32 {u1}, {u1}, {sHB}
s_add_u32 {u1}, {u1}, {CN4}
v_mov_b32 v12, 1
v_lshlrev_b32 v13, 3, v{vR8}
v_add_u32 v13, {L_HS}, v13
s_and_b32 {t5}, s2, 7
""")
    hint("s18", 16, "L_c3", mid=mid3, execset=True)
    stamp(10)
    h3loads = [f"buffer_load_dwordx2 v[64:65], v8, {S(R_WS)}, {t0} offen sc1",
            f"buffer_load_dwordx2 v[68:69], v8, {S(R_WS)}, {t0} offen offset:1024 sc1",
            f"buffer_load_dwordx4 v[80:83], v{vL16}, {S(R_WS)}, {t1} offen sc1",
            f"buffer_load_dwordx4 v[84:87], v{vL16}, {S(R_WS)}, {t1} offen offset:1024 sc1"]
    a(f"s_mov_b32 {sCNT}, {SPIN}\ns_cmp_lg_u32 {t5}, {sW}\ns_cbranch_scc1 L_h3")
    for l in hfloads: a(l)
    a("L_h3:")
    for l in h3loads: a(l)
    ffn2s()
    a(f"""
s_waitcnt vmcnt(2)
v_xor_b32 v64, v64, v{vT8}
v_xor_b32 v68, v68, v{vT8}
v_xor_b32 v65, v65, v{vT8}
v_xor_b32 v69, v69, v{vT8}
v_max_f32 v72, v64, v68
v_or3_b32 v70, v64, v65, v68
v_or_b32 v70, v70, v69
""")
    dpp("v_max_f32", 72, 72, "row_ror:8")
    a("v_and_b32 v70, 0xff, v70")
    allred_hi(72, 73, "v_max_f32")
    a("v_sub_f32 v64, v64, v72\nv_sub_f32 v68, v68, v72\nv_exp_f32 v64, v64\nv_exp_f32 v68, v68")
    a("v_mul_f32 v73, v64, v65\nv_fmac_f32 v73, v68, v69\nv_mov_b32 v65, v64\nv_mov_b32 v69, v68")
    dpp("v_add_f32", 73, 73, "row_ror:8")
    allred_hi(73, 71, "v_add_f32")
    a("s_waitcnt vmcnt(0)")
    for k in range(8): a(f"v_xor_b32 v{80+k}, v{80+k}, v{PATL+(k&3)}")
    a(f"""
v_or3_b32 v71, v80, v81, v82
v_or3_b32 v71, v83, v84, v71
v_or3_b32 v71, v85, v86, v71
v_or_b32 v71, v87, v71
v_and_or_b32 v70, v71, {sM1}, v70
v_cmp_ne_u32 vcc, 0, v70
s_cbranch_vccz L_h3d
s_sub_u32 {sCNT}, {sCNT}, 1
s_cbranch_scc0 L_h3
L_h3d:
""")
    stamp(11)
    def unp(d, s):
        a(f"v_lshl_or_b32 v{d}, v{s}, 16, v14\nv_and_or_b32 v{d+1}, v{s}, {sMSK}, v14")
    a("ds_write_b64 v74, v[72:73]")
    for e in range(4): unp(88 + 2 * e, 80 + e)
    for e in range(4): unp(96 + 2 * e, 84 + e)
    for e in range(0, 8, 2): a(f"v_pk_mul_f32 v[{88+e}:{89+e}], v[64:65], v[{88+e}:{89+e}]")
    for e in range(0, 8, 2): a(f"v_pk_fma_f32 v[{88+e}:{89+e}], v[68:69], v[{96+e}:{97+e}], v[{88+e}:{89+e}]")
    for c in range(4): a(f"v_permlane32_swap_b32 v{88+c}, v{92+c}")
    a("v_pk_add_f32 v[88:89], v[88:89], v[92:93]\nv_pk_add_f32 v[90:91], v[90:91], v[94:95]")
    for c in range(2): a(f"v_permlane16_swap_b32 v{88+c}, v{90+c}")
    a("v_pk_add_f32 v[88:89], v[88:89], v[90:91]")
    a(f"""
v_cvt_pk_bf16_f32 v88, v88, v89
ds_write_b32 v75, v88
s_cmp_lg_u32 {t5}, {sW}
s_cbranch_scc1 L_nhf
""")
    gather(hfloads, [("0xff", [(104 + k, vT8) for k in range(4)])], 108, "L_hf", sel="wave", issue=False)
    a("v_add_f32 v104, v104, v105\nv_add_f32 v105, v106, v107")
    allred_lo8([104, 105], "v_add_f32")
    a("ds_write_b64 v13, v[104:105]\nL_nhf:\ns_waitcnt lgkmcnt(0)")
    stamp2(3)
    a("s_barrier")
    stamp2(4)
    a(f"""
ds_read_b64 v[64:65], v78
ds_read_b128 v[80:83], v76
ds_read_b64_tr_b16 v[88:89], v77
ds_read_b64_tr_b16 v[90:91], v77 offset:4096
ds_read_b128 v[84:87], v76 offset:64
ds_read_b64_tr_b16 v[92:93], v77 offset:8192
ds_read_b64_tr_b16 v[94:95], v77 offset:12288
ds_read_b128 v[68:71], v79
""")
    a("ds_read_b64 v[124:125], v13\ns_waitcnt lgkmcnt(8)")
    a("v_max_f32_dpp v66, v64, v64 quad_perm:[1,0,3,2] row_mask:0xf bank_mask:0xf")
    a("s_waitcnt lgkmcnt(5)\nv_mfma_f32_16x16x32_bf16 v[96:99], v[80:83], v[88:91], 0")
    dpp("v_max_f32", 66, 66, "quad_perm:[2,3,0,1]")
    a("s_waitcnt lgkmcnt(2)\nv_mfma_f32_16x16x32_bf16 v[96:99], v[84:87], v[92:95], v[96:99]")
    dpp("v_max_f32", 66, 66, "row_half_mirror")
    a("""
s_waitcnt lgkmcnt(0)
v_sub_f32 v64, v64, v66
v_sub_f32 v68, v68, v66
v_sub_f32 v70, v70, v66
v_exp_f32 v64, v64
v_exp_f32 v68, v68
v_exp_f32 v70, v70
v_mul_f32 v64, v64, v65
v_add_f32 v96, v96, v97
v_add_f32 v98, v98, v99
""")
    dpp("v_add_f32", 64, 64, "quad_perm:[1,0,3,2]")
    a("v_mul_f32 v96, v96, v68\nv_fmac_f32 v96, v98, v70")
    dpp("v_add_f32", 64, 64, "quad_perm:[2,3,0,1]")
    a("v_mov_b32 v97, v96")
    dpp("v_add_f32", 64, 64, "row_half_mirror")
    a("v_permlane16_swap_b32 v96, v97\nv_rcp_f32 v64, v64\nv_add_f32 v96, v96, v97\nv_mov_b32 v97, v96\nv_permlane32_swap_b32 v96, v97\nv_add_f32 v96, v96, v97")
    a("v_mul_f32 v96, v96, v64")
    tag8(96)
    if L4:
        a(f"""
s_mov_b32 {u0}, 0x1000
s_add_u32 {u1}, {t2}, 0x1000
s_mov_b64 exec, 0xffff
buffer_store_dword v96, v15, {S(R_WS)}, {u0} offen
s_mov_b64 exec, -1
""")
    else:
        a(f"""
s_mov_b64 exec, 0xffff
buffer_store_dword v96, v15, {S(R_WS)}, 0 offen sc1
s_mov_b64 exec, 1
buffer_atomic_add v12, off, {S(R_WS)}, {u0} sc1
""")
    stamp(12)
    c1 = -2.0 * math.sqrt(2 / math.pi) * math.log2(math.e)
    def ffn2():
        a(f"""
v_cvt_pk_bf16_f32 v124, v124, v125
v_and_b32 v125, {sMSK}, v124
v_lshlrev_b32 v124, 16, v124
v_mul_f32 v100, v124, v124
v_mov_b32 v101, 0x{f2u(c1):08x}
v_fmac_f32 v101, 0x{f2u(c1*0.044715):08x}, v100
v_mul_f32 v100, v101, v124
v_exp_f32 v100, v100
v_add_f32 v100, 1.0, v100
v_rcp_f32 v100, v100
v_mul_f32 v124, v124, v100
""")
        bfround(124, 124)
        a("v_mul_f32 v124, v124, v125")
        bfround(13, 124)
        for e in range(8): a(f"v_mul_f32 v{168+e}, v13, v{168+e}")
        rs8(168, 125)
        tag8(125)
    gpub = f"s_mov_b64 exec, 0xffff\nbuffer_store_dword v96, v15, {S(R_WS)}, 0 offen sc1\ns_mov_b64 exec, -1"
    if L4:
        if opt.get("f2f", 0): ffn2()
        a(f"buffer_load_dwordx2 v[104:105], v9, {S(R_WS)}, {u1} offen sc1")
        if EA5 == 3: a(f"s_mov_b64 exec, 1\nbuffer_atomic_add v12, off, {S(R_WS)}, s12 sc1\ns_mov_b64 exec, -1")
        if not opt.get("f2f", 0): ffn2()
        if EA5 == 2: a(f"s_mov_b64 exec, 1\nbuffer_atomic_add v12, off, {S(R_WS)}, s12 sc1\ns_mov_b64 exec, -1")
        a(f"s_mov_b32 {sCNT}, {NL}\ns_waitcnt vmcnt({1 if EA5 >= 2 else 0})\ns_branch L_l4w\nL_l4:\nbuffer_load_dwordx2 v[104:105], v9, {S(R_WS)}, {u1} offen sc1\ns_waitcnt vmcnt(0)\nL_l4w:")
        check([("0xff", [(104, vT8), (105, vT8)])], 68)
        a(f"s_cbranch_vccz L_l4d\ns_sub_u32 {sCNT}, {sCNT}, 1\ns_cbranch_scc0 L_l4")
        a(gpub)
        gather([f"buffer_load_dwordx2 v[104:105], v9, {S(R_WS)}, {t2} offen sc1"], [("0xff", [(104, vT8), (105, vT8)])], 68, "L_h4", sel="wave")
        a("L_l4d:")
    else:
        hint(u1, 8, "L_c4", mid=ffn2, execset=True)
        stamp2(8)
        gather([f"buffer_load_dwordx2 v[104:105], v9, {S(R_WS)}, {t2} offen sc1"], [("0xff", [(104, vT8), (105, vT8)])], 68, "L_h4", sel="wave")
    stamp(13)
    if EA5 == 1: a(f"s_mov_b64 exec, 1\nbuffer_atomic_add v12, off, {S(R_WS)}, s12 sc1\ns_mov_b64 exec, -1")
    allred_lo8([104, 105], "v_add_f32")
    a("v_cvt_pk_bf16_f32 v64, v104, v105")
    for c in range(8): a(f"v_dot2_f32_bf16 v{72+c}, v{WOP+c}, v64, 0")
    rs8(72, 124)
    tag8(124)
    a(f"buffer_store_dwordx2 v[124:125], v11, {S(R_WS)}, {t3} offen sc1")
    if not EA5: a(f"s_mov_b64 exec, 1\nbuffer_atomic_add v12, off, {S(R_WS)}, s12 sc1\ns_mov_b64 exec, -1")
    stamp(14)
    if L4 and not opt.get("gp2", 1): a(gpub)
    if L4 and opt.get("gp2", 1):
        a(f"s_cmp_ge_u32 {sFG}, 24\ns_cbranch_scc1 L_isf\n{gpub}\ns_branch L_fin\nL_isf:")
    else: a(f"s_cmp_lt_u32 {sFG}, 24\ns_cbranch_scc1 L_fin")
    hint("s11", 8 if C5 else 32, "L_c5", lanes=4 if C5 else 1, voff="v179" if C5 else None, mid=lambda: a("global_load_ushort v127, v176, s[4:5]" + (("\n" + gpub) if (L4 and opt.get("gp2", 1)) else "")))
    stamp2(7)
    gather([f"buffer_load_dwordx4 {V(64+4*k)}, v{vL16}, {S(R_WS)}, {['s8','s9'][k]} offen sc1" for k in range(2)],
           [("0xff", [(64 + k, vT8) for k in range(8)])], 80, "L_h5")
    stamp(1)
    a("""
v_pk_add_f32 v[64:65], v[64:65], v[68:69]
v_pk_add_f32 v[66:67], v[66:67], v[70:71]
v_permlane32_swap_b32 v64, v66
v_permlane32_swap_b32 v65, v67
v_pk_add_f32 v[64:65], v[64:65], v[66:67]
v_permlane16_swap_b32 v64, v65
v_add_f32 v64, v64, v65
""")
    dpp("v_add_f32", 64, 64, "row_ror:8"); dpp("v_add_f32", 64, 64, "row_ror:4")
    a(f"""
ds_write_b32 v177, v64
s_waitcnt lgkmcnt(0)
s_barrier
s_cmp_lg_u32 {sW}, 0
s_cbranch_scc1 L_fin
ds_read_b128 v[72:75], v178 offset:256
ds_read_b128 v[76:79], v178 offset:272
ds_read_b128 v[64:67], v178
ds_read_b128 v[68:71], v178 offset:16
s_waitcnt lgkmcnt(2)
v_pk_add_f32 v[72:73], v[72:73], v[74:75]
v_pk_add_f32 v[76:77], v[76:77], v[78:79]
v_pk_add_f32 v[72:73], v[72:73], v[76:77]
v_add_f32 v72, v72, v73
""")
    bfround(72, 72)
    a(f"""
v_mul_f32 v73, 0x{f2u(-math.log2(math.e)):08x}, v72
v_exp_f32 v73, v73
s_waitcnt lgkmcnt(0)
v_pk_add_f32 v[64:65], v[64:65], v[66:67]
v_pk_add_f32 v[68:69], v[68:69], v[70:71]
v_add_f32 v73, 1.0, v73
v_rcp_f32 v73, v73
v_pk_add_f32 v[64:65], v[64:65], v[68:69]
v_add_f32 v64, v64, v65
v_mul_f32 v72, v72, v73
v_cvt_pk_bf16_f32 v64, v64, v72
v_lshlrev_b32 v65, 16, v64
v_and_b32 v64, {sMSK}, v64
v_mul_f32 v64, v64, v65
""")
    bfround(64, 64)
    a(f"""
v_lshlrev_b32 v12, 16, v127
v_add_f32 v64, v64, v12
v_cvt_pk_bf16_f32 v64, v64, v64
s_mov_b64 exec, 0xff
global_store_short v176, v64, s[24:25]
s_cmp_lg_u32 s13, 0
s_cbranch_scc1 L_fin0
s_mov_b64 exec, 1
v_mov_b32 v65, {sTAG}
buffer_store_dword v65, off, {S(R_WS)}, 0 sc1
L_fin0:
s_mov_b64 exec, -1
L_fin:
""")
    if opt.get("hold", 0):
        if "holdwg" in opt: a(f"s_cmp_lg_u32 s2, {opt['holdwg']}\ns_cbranch_scc1 L_end")
        a(f"s_add_u32 s{ST0+4}, s{ST0}, {opt['hold']}\nL_hold:\ns_memrealtime s[{ST0+2}:{ST0+3}]\ns_waitcnt lgkmcnt(0)\ns_sub_u32 s{ST0+5}, s{ST0+2}, s{ST0+4}\ns_cmp_lt_i32 s{ST0+5}, 0\ns_cbranch_scc1 L_hold")
    if DIAG:
        stamp(15)
        for k in range(16): a(f"v_mov_b32 v{64+k}, s{ST0+2*k}")
        a(f"""
s_lshl_b32 {t0}, s2, 3
s_add_u32 {t0}, {t0}, {sW}
s_lshl_b32 {t0}, {t0}, 6
s_add_u32 {t0}, {t0}, {STAMP}
v_mov_b32 v8, 0
s_mov_b64 exec, 1
""")
        for k in range(4): a(f"buffer_store_dwordx4 {V(64+4*k)}, v8, {S(R_WS)}, {t0} offen offset:{16*k}")
    a("L_end:\ns_endpgm")
    if opt.get("nost", 0):
        out = []; seen_b = False
        for l in a.lines:
            if l.strip() == "L_ba:": seen_b = True
            if not seen_b and "sc1" in l and ("store" in l or (opt["nost"] >= 2 and "load" in l)): l = "    s_nop 0"
            out.append(l)
        a.lines = out
    lines, n = hazard.fix(a.lines)
    body = "\n".join(lines) + "\n"
    return wrap_single(body, 256, 512, LDS_BYTES, 256), n

if __name__ == "__main__":
    name = sys.argv[1]
    opt = {}
    for kv in sys.argv[2:]:
        k, v = kv.split("=")
        try: opt[k] = int(v, 0)
        except ValueError: opt[k] = v
    s, n = gen(opt)
    open(name, "w").write(s)
    print("wrote", name, "nops inserted", n, "lines", s.count("\n"))
```

```python
import sys, math, struct
from asmlib import *
import hazard

def f2u(x): return struct.unpack("<I", struct.pack("<f", x))[0]

STAMP = 0x2000000
KTAG = 0x9E3779B9
RS = 1056
L_P = 128 * RS
L_MX = L_P + 4096
L_ST2 = L_MX + 512
L_QS = L_ST2 + 64
L_XN = L_QS + 512
L_RI = L_XN + 128
L_HS = L_RI + 16
L_FIN = L_HS + 64
L_OR = L_FIN + 1024
L_Q = (L_OR + 2560 + 255) // 256 * 256
L_UV = L_Q
LDS_BYTES = L_Q + 16 * RS
assert LDS_BYTES <= 163840, LDS_BYTES

def gen(opt):
    SPREAD = opt.get("spread", 0)
    DIAG = opt.get("diag", 0)
    THR = opt.get("thr", 8)
    N0 = opt.get("n0", 0); N3 = opt.get("n3", 8); UKE = opt.get("uke", 0)
    REL = opt.get("rel", "iss")
    NT = opt.get("nt", "nt")
    NTC = opt.get("ntc", NT)
    if NT == "-": NT = ""
    if NTC == "-": NTC = ""
    NTU = "" if opt.get("ukd2", 1) else NT
    SPIN = opt.get("spin", 100000)
    HINT = opt.get("hint", 200)
    T1AT = opt.get("t1at", "s")
    WOAT = opt.get("woat", "h3")
    H4C = opt.get("h4c", 1)
    H2C = opt.get("h2c", 0)
    H1C = opt.get("h1c", 0)
    C5 = opt.get("c5", 0); L4 = opt.get("l4", 1); NL = opt.get("nl", 24); L1 = opt.get("l1", 0); RELP = opt.get("relp", 1)
    PP = opt.get("pp", 0)
    LNF = opt.get("lnf", 1)
    PFM = opt.get("pfm", 0)
    B0AT = opt.get("b0at", 6)
    HB = opt.get("hb", 0x41000)
    IB = 16384 + 384
    OH = 8 * IB
    SB = 16384 + 192
    QP = 0x10000; CP = QP + 0x1000; FP = QP + 0x4000; QA = QP + 0x3000
    CN = QP + 0x3800
    CN4 = QP + 0x3C00
    CN1 = CN4 + 64
    ML = 0x900000
    OP = 0xA00000
    SP = 0x1400000
    if opt.get("compact", 0):
        HB = 0x7000; ML = 0xF0000; SP = 0xF8000; OP = 0x200000
    QPL = 0x6000
    assert HB >= 0x7000 and QP + 32 * HB <= ML
    a = Asm()
    sW = "s3"
    sX, sIDX, sG, sJ, sH, sI, sFG, sTAG = "s30", "s31", "s32", "s33", "s34", "s35", "s36", "s37"
    sLO, sHI, sCNT = "s38", "s39", "s40"
    t0, t1, t2, t3, t4, t5 = "s41", "s42", "s43", "s44", "s45", "s46"
    u0, u1 = "s26", "s27"
    w0_, w1_ = "s6", "s7"
    sMSK = "s47"
    R_WS, R_A, R_B, R_O, R_D = 48, 52, 56, 60, 64
    sM8, sM1 = "s68", "s69"
    sHB, sFB, sGB, sH8 = "s30", "s31", "s17", "s16"
    ST0 = 70
    def srd(d, p, n):
        a(f"s_mov_b32 s{d}, s{p}\ns_mov_b32 s{d+1}, s{p+1}\ns_mov_b32 s{d+2}, {n}\ns_mov_b32 s{d+3}, 0x00020000")
    def S(r): return f"s[{r}:{r+3}]"
    def V(r, n=4): return f"v[{r}:{r+n-1}]"
    def stamp2(k):
        if DIAG == 2: a(f"s_memrealtime s[{ST0+2*k}:{ST0+2*k+1}]\ns_waitcnt lgkmcnt(0)")
    def stamp3(k):
        if DIAG == 3: a(f"s_memrealtime s[{ST0+2*k}:{ST0+2*k+1}]")
    def stamp(k):
        if DIAG == 3 and 1 <= k <= 6: return
        if DIAG == 2 and 1 <= k <= 8: return
        if DIAG: a(f"s_memrealtime s[{ST0+2*k}:{ST0+2*k+1}]\ns_waitcnt lgkmcnt(0)")
    vL16, vN, vG, vM8, vR8 = 1, 2, 3, 4, 5
    vT8 = 7
    XP = 16; PATL = 20; PATG = 24; WB = 32
    QF = 64; AF = 128; TF = 192
    WO = 48; WD = 56; WOP = 160
    def allred_hi(v, tmp, op):
        a(f"v_mov_b32 v{tmp}, v{v}\nv_permlane16_swap_b32 v{v}, v{tmp}\n{op} v{v}, v{v}, v{tmp}")
        a(f"v_mov_b32 v{tmp}, v{v}\nv_permlane32_swap_b32 v{v}, v{tmp}\n{op} v{v}, v{v}, v{tmp}")
    def dpp(op, d, s, mode, bank="0xf"):
        a(f"{op}_dpp v{d}, v{s}, v{s} {mode} row_mask:0xf bank_mask:{bank}")
    def allred_lo8(vs, op):
        if isinstance(vs, int): vs = [vs]
        for m in ("quad_perm:[1,0,3,2]", "quad_perm:[2,3,0,1]", "row_half_mirror"):
            for v in vs: dpp(op, v, v, m)
    def wave_sum(v, tmp):
        allred_lo8(v, "v_add_f32"); dpp("v_add_f32", v, v, "row_mirror"); allred_hi(v, tmp, "v_add_f32")
    def rs8(acc, out):
        for c in range(4): a(f"v_permlane32_swap_b32 v{acc+c}, v{acc+c+4}")
        a(f"v_pk_add_f32 {V(acc,2)}, {V(acc,2)}, {V(acc+4,2)}\nv_pk_add_f32 {V(acc+2,2)}, {V(acc+2,2)}, {V(acc+6,2)}")
        for c in range(2): a(f"v_permlane16_swap_b32 v{acc+c}, v{acc+c+2}")
        a(f"v_pk_add_f32 {V(acc,2)}, {V(acc,2)}, {V(acc+2,2)}")
        dpp("v_add_f32", out, acc, "row_ror:8", "0x3"); dpp("v_add_f32", out, acc + 1, "row_ror:8", "0xc")
    def bfround(d, s):
        a(f"v_cvt_pk_bf16_f32 v{d}, v{s}, v{s}\nv_lshlrev_b32 v{d}, 16, v{d}")
    def gemv(W, P, acc, out, waits=None, nk=4):
        for k in range(nk):
            if waits: waits(k)
            for e in range(4):
                a(f"v_perm_b32 v{P+2*e}, v{W+8*k+4+e}, v{W+8*k+e}, {sLO}")
                a(f"v_perm_b32 v{P+2*e+1}, v{W+8*k+4+e}, v{W+8*k+e}, {sHI}")
            for c in range(8):
                a(f"v_dot2_f32_bf16 v{acc+c}, v{P+c}, v{XP+k}, {'0' if k == 0 else 'v%d' % (acc+c)}")
        rs8(acc, out)
    def tag8(v): a(f"v_and_or_b32 v{v}, v{v}, {sM8}, v{vT8}")
    def check(checks, bad):
        for gi, (mask, pairs) in enumerate(checks):
            b = bad + gi
            for d, e in pairs: a(f"v_xor_b32 v{d}, v{d}, v{e}")
            ds = [d for d, e in pairs]
            if len(ds) == 2: a(f"v_or_b32 v{b}, v{ds[0]}, v{ds[1]}")
            else:
                a(f"v_or3_b32 v{b}, v{ds[0]}, v{ds[1]}, v{ds[2]}")
                k = 3
                while k < len(ds):
                    if k + 1 < len(ds): a(f"v_or3_b32 v{b}, v{ds[k]}, v{ds[k+1]}, v{b}"); k += 2
                    else: a(f"v_or_b32 v{b}, v{ds[k]}, v{b}"); k += 1
            if gi == 0: a(f"v_and_b32 v{b}, {mask}, v{b}")
            else: a(f"v_and_or_b32 v{bad}, v{b}, {mask}, v{bad}")
        a(f"v_cmp_ne_u32 vcc, 0, v{bad}")
    def gather(loads, checks, bad, name, sel="lane", mid=None, issue=True):
        L = a.label(name); D = a.label(name + "d")
        if issue:
            for l in loads: a(l)
        if mid: mid()
        a(f"s_mov_b32 {sCNT}, {SPIN}")
        a(f"{L}:\ns_waitcnt vmcnt(0)")
        check(checks, bad)
        a(f"s_cbranch_vccz {D}\ns_sub_u32 {sCNT}, {sCNT}, 1\ns_cbranch_scc1 {D}")
        if sel == "quad": a("s_wqm_b64 exec, vcc")
        elif sel == "lane": a("s_mov_b64 exec, vcc")
        for l in loads: a(l)
        a(f"s_branch {L}\n{D}:")
        if sel != "wave": a("s_mov_b64 exec, -1")
    def hint(soff, target, name, mid=None, execset=False, lanes=1, voff=None):
        L = a.label(name); D = a.label(name + "d"); W = a.label(name + "w")
        em = (1 << lanes) - 1
        at = f"buffer_atomic_add v126, off, {S(R_WS)}, {soff} sc0 sc1" if voff is None else f"buffer_atomic_add v126, {voff}, {S(R_WS)}, {soff} offen sc0 sc1"
        if not execset: a(f"s_mov_b64 exec, {em}")
        a(f"v_mov_b32 v126, 0\n{at}")
        if mid:
            a("s_mov_b64 exec, -1"); mid(); a(f"s_mov_b64 exec, {em}")
        a(f"""
s_mov_b32 {sCNT}, {HINT}
s_branch {W}
{L}:
{"s_mov_b64 exec, vcc" if lanes > 1 else ""}
v_mov_b32 v126, 0
{at}
s_sub_u32 {sCNT}, {sCNT}, 1
s_cbranch_scc1 {D}
{W}:
s_waitcnt vmcnt(0)
v_cmp_gt_u32 vcc, {target}, v126
s_cbranch_vccnz {L}
{D}:
s_mov_b64 exec, -1
""")
    def cnaddr(dst, k, tmp):
        a(f"s_and_b32 {tmp}, {k}, 31\ns_mul_i32 {tmp}, {tmp}, {HB}\ns_lshr_b32 {dst}, {k}, 5\ns_lshl_b32 {dst}, {dst}, 7\ns_add_u32 {dst}, {dst}, {tmp}\ns_add_u32 {dst}, {dst}, {CN}")
    def mk_pat(dst, sel):
        a(f"""
v_and_b32 v{dst}, 1, v{sel}
v_lshlrev_b32 v{dst}, 16, v{dst}
v_and_b32 v{dst+2}, 2, v{sel}
v_lshlrev_b32 v{dst+2}, 15, v{dst+2}
v_or_b32 v{dst+2}, 1, v{dst+2}
v_mov_b32 v{dst+1}, {t4}
v_mov_b32 v{dst+3}, {t5}
""")
    def mk_tags():
        a(f"""
s_add_u32 {sTAG}, {sTAG}, {KTAG}
s_and_b32 {t5}, {sTAG}, 0xff
v_mov_b32 v{vT8}, {t5}
s_and_b32 {t4}, {sTAG}, 3
s_mul_i32 {t4}, {t4}, 0x8001
s_and_b32 {t4}, {t4}, {sM1}
s_bfe_u32 {t5}, {sTAG}, 0x20002
s_mul_i32 {t5}, {t5}, 0x8001
s_and_b32 {t5}, {t5}, {sM1}
""")
        mk_pat(PATL, 0); mk_pat(PATG, vG)
    def consts():
        a(f"""
s_mov_b32 {sLO}, 0x05040100
s_mov_b32 {sHI}, 0x07060302
s_mov_b32 {sMSK}, 0xffff0000
s_mov_b32 {sM8}, 0xffffff00
s_mov_b32 {sM1}, 0x00010001
s_mov_b32 {sH8}, 0x8000
""")
        if "fgm" in opt:
            xa, xb = divmod(opt["fgm"], 10)
            ch = [8 + xa, 8 + xb, 24 + xa, 24 + xb]
            m = {}
            free = [28, 29, 30, 31]
            src = [g for g in ch if g not in free]; dst = [g for g in free if g not in ch]
            for g1, g2 in zip(src, dst): m[g1] = g2; m[g2] = g1
            a(f"s_mov_b32 {sGB}, {sFG}")
            for g1, g2 in m.items(): a(f"s_cmp_eq_u32 {sGB}, {g1}\ns_cselect_b32 {sFG}, {g2}, {sFG}")
        a(f"""
s_mul_i32 {sHB}, {sH}, {HB}
s_mul_i32 {sFB}, {sFG}, {HB}
s_mul_i32 {sGB}, {sG}, {16*HB}
""")
        if DIAG:
            for k in range(1, 16): a(f"s_mov_b32 s{ST0+2*k}, 0")
        srd(R_WS, 28, 0x10000000)

    stamp_entry = f"s_memrealtime s[{ST0}:{ST0+1}]" if (DIAG or opt.get("hold", 0)) else ""
    a(f"""
{stamp_entry}
s_load_dwordx16 s[4:19], s[0:1], 0
s_load_dwordx8 s[20:27], s[0:1], 64
s_load_dwordx2 s[28:29], s[0:1], 96
s_getpc_b64 s[{R_B}:{R_B+1}]
L_pc:
v_subrev_u32 v8, {384 if PFM else 256}, v0
v_lshlrev_b32 v8, {7 if PFM else 6}, v8
v_cmp_gt_u32 vcc, L_end-L_pc, v8
s_and_saveexec_b64 s[60:61], vcc
s_cbranch_execz L_npf
{("s_cmp_ge_u32 s2, %d" % PFM) if PFM else ""}
{"s_cbranch_scc1 L_npf" if PFM else ""}
global_load_dword v9, v8, s[{R_B}:{R_B+1}]
L_npf:
s_mov_b64 exec, s[60:61]
s_cmp_ge_u32 s2, 256
s_cbranch_scc1 L_end
v_lshrrev_b32 v1, 6, v0
v_and_b32 v0, 63, v0
v_readfirstlane_b32 {sW}, v1
v_lshlrev_b32 v{vL16}, 4, v0
v_mov_b32 v19, 0
v_mov_b32 v60, 0
v_mov_b32 v61, 0
v_and_b32 v{vN}, 15, v0
v_lshrrev_b32 v{vG}, 4, v0
v_and_b32 v{vM8}, 7, v0
v_lshrrev_b32 v{vR8}, 3, v0
s_and_b32 {sX}, s2, 7
s_lshr_b32 {sIDX}, s2, 3
s_lshr_b32 {sG}, {sIDX}, 4
s_and_b32 {sJ}, {sIDX}, 7
s_lshr_b32 {t0}, {sIDX}, 3
s_and_b32 {t1}, {t0}, 1
s_lshl_b32 {sH}, {sG}, 4
s_lshl_b32 {t2}, {sX}, 1
s_add_u32 {sH}, {sH}, {t2}
s_add_u32 {sH}, {sH}, {t1}
s_lshl_b32 {sI}, {sX}, 4
s_and_b32 {t1}, {sIDX}, 15
s_add_u32 {sI}, {sI}, {t1}
s_lshl_b32 {sFG}, {t0}, 3
s_add_u32 {sFG}, {sFG}, {sX}
v_lshlrev_b32 v64, 4, v{vR8}
s_lshl_b32 {t0}, {sJ}, 7
v_add_u32 v64, {t0}, v64
v_lshlrev_b32 v65, 16, v{vR8}
v_lshl_add_u32 v65, v{vM8}, 4, v65
s_lshl_b32 {t0}, {sJ}, 19
s_lshl_b32 {t1}, {sH}, 8
s_add_u32 {t2}, {t0}, {t1}
s_lshl_b32 {t1}, {sW}, 7
s_add_u32 {t0}, {t2}, {t1}
s_mov_b32 s{R_A+2}, 4194304
s_mov_b32 s{R_A+3}, 0x00020000
s_cmp_ge_u32 {sW}, 2
s_waitcnt lgkmcnt(0)
s_cbranch_scc1 L_not01
s_mov_b64 s[{R_A}:{R_A+1}], s[8:9]
s_setprio 3
global_load_dwordx4 v[8:11], v{vL16}, s[4:5]
global_load_dwordx4 v[12:15], v64, s[4:5]
""")
    for u in range(8):
        a(f"buffer_load_dwordx4 {V(WB+4*u)}, v65, {S(R_A)}, {t0} offen {NT}")
        if u < 7: a(f"s_add_u32 {t0}, {t0}, 8192")
    a(f"s_load_dword {sTAG}, s[28:29], 0")
    BSAT = opt.get("bsat", "start")
    if N0 and BSAT == "start": a("s_barrier")
    UK = 128
    consts()
    a(f"""
s_add_u32 {t3}, {sHB}, {QP}
s_lshl_b32 {t0}, {sJ}, 9
s_add_u32 {t0}, {t0}, {t3}
s_lshl_b32 {t1}, {sW}, 8
s_add_u32 {t0}, {t0}, {t1}
v_lshl_add_u32 v29, v0, 2, {t0}
s_waitcnt vmcnt(9)
""")
    for e in range(4):
        a(f"v_lshlrev_b32 v{64+2*e}, 16, v{8+e}\nv_and_b32 v{65+2*e}, {sMSK}, v{8+e}")
    a("""
v_pk_add_f32 v[72:73], v[64:65], v[66:67]
v_pk_add_f32 v[74:75], v[68:69], v[70:71]
v_pk_add_f32 v[72:73], v[72:73], v[74:75]
v_add_f32 v72, v72, v73
""")
    wave_sum(72, 73)
    a(f"v_mul_f32 v72, 0x{f2u(1/512):08x}, v72")
    bfround(76, 72)
    for e in range(8): a(f"v_sub_f32 v{64+e}, v{64+e}, v72")
    a("v_mul_f32 v74, v64, v64\nv_mul_f32 v75, v65, v65")
    for e in range(2, 8): a(f"v_fmac_f32 v{74+(e&1)}, v{64+e}, v{64+e}")
    a("v_add_f32 v74, v74, v75")
    wave_sum(74, 73)
    a(f"v_mul_f32 v74, 0x{f2u(1/512):08x}, v74")
    bfround(74, 74)
    a(f"v_add_f32 v74, 0x{f2u(1e-5):08x}, v74")
    bfround(74, 74)
    a("v_sqrt_f32 v74, v74")
    bfround(74, 74)
    a("v_rcp_f32 v74, v74")
    a("s_waitcnt vmcnt(8)")
    for e in range(4):
        a(f"v_lshlrev_b32 v{80+2*e}, 16, v{12+e}\nv_and_b32 v{81+2*e}, {sMSK}, v{12+e}")
    for e in range(8): a(f"v_sub_f32 v{80+e}, v{80+e}, v76")
    for e in range(4): a(f"v_cvt_pk_bf16_f32 v{XP+e}, v{80+2*e}, v{81+2*e}")
    for e in range(4):
        a(f"v_lshlrev_b32 v{64+2*e}, 16, v{XP+e}\nv_and_b32 v{65+2*e}, {sMSK}, v{XP+e}")
    for e in range(8): a(f"v_mul_f32 v{64+e}, v{64+e}, v74")
    for e in range(4): a(f"v_cvt_pk_bf16_f32 v{XP+e}, v{64+2*e}, v{65+2*e}")
    a(f"""
s_waitcnt lgkmcnt(0)
s_add_u32 {t5}, {sTAG}, {KTAG}
s_and_b32 {t5}, {t5}, 0xff
v_mov_b32 v{vT8}, {t5}
""")
    stamp(1)
    if N0 and BSAT == "ln": a("s_barrier")
    gemv(WB, 80, 96, 30, waits=lambda k: a(f"s_waitcnt vmcnt({6-2*k})"))
    tag8(30)
    if L1: a(f"s_movk_i32 {t0}, {QPL}\nbuffer_store_dword v30, v29, {S(R_WS)}, {t0} offen")
    else: a(f"buffer_store_dword v30, v29, {S(R_WS)}, 0 offen sc1")
    if N0 and BSAT == "pub": a("s_barrier")
    stamp(2)
    a(f"v_lshlrev_b32 v104, 4, v{vR8}\nv_add_u32 v104, {L_XN}, v104\nds_write_b128 v104, {V(XP)}")
    a("s_waitcnt lgkmcnt(0)" if (L1 and RELP) else "s_waitcnt vmcnt(0) lgkmcnt(0)")
    stamp(3)
    a("s_barrier")
    if L4: a(f"s_lshl_b32 {t0}, {sJ}, 9\ns_add_u32 {t0}, {t0}, {sHB}\ns_add_u32 {t0}, {t0}, {CP+0x1000}\nv_lshlrev_b32 v64, 3, v0\nbuffer_load_dword v65, v64, {S(R_WS)}, {t0} offen")
    mk_tags()
    if L1: a(f"s_sleep 32\nbuffer_store_dword v30, v29, {S(R_WS)}, 0 offen sc1" if opt.get("gdel", 0) else f"buffer_store_dword v30, v29, {S(R_WS)}, 0 offen sc1")
    a("s_branch L_b0")
    a(f"L_not01:\ns_load_dword {sTAG}, s[28:29], 0")
    a(f"s_cmp_ge_u32 {sW}, 4\ns_cbranch_scc1 L_loader")
    consts()
    a(f"""
s_lshl_b32 {t0}, {sJ}, 7
s_add_u32 {t0}, {t0}, {sHB}
s_add_u32 {t0}, {t0}, {CN4}
""")
    a(f"s_and_b32 {t4}, s2, 63\ns_lshl_b32 {t5}, {sG}, 6\ns_or_b32 {t4}, {t4}, {t5}\ns_and_b32 {t5}, s2, 64\ns_lshl_b32 {t5}, {t5}, 1\ns_or_b32 {t4}, {t4}, {t5}")
    cnaddr(t3, t4, t1)
    a(f"""
s_cmp_eq_u32 {sW}, 2
s_cselect_b32 {t0}, {t0}, {t3}
v_mov_b32 v64, 0
v_mov_b32 v65, 0
v_mov_b32 v66, 0
v_mov_b32 v67, 0
s_mov_b64 exec, 0xff
{"s_cbranch_scc1 L_nz" if (L4 and not C5) else ""}
buffer_store_dwordx4 v[64:67], v{vL16}, {S(R_WS)}, {t0} offen sc1
L_nz:
s_mov_b64 exec, -1
""")
    if L1: a(f"s_add_u32 {t0}, {sHB}, {QP+QPL}\nv_lshlrev_b32 v68, 6, v0\nbuffer_load_dword v69, v68, {S(R_WS)}, {t0} offen")
    if N0 and BSAT == "start": a("s_barrier")
    srd(R_B, 10, 4194304)
    a(f"""
s_and_b32 s11, {sW}, 1
v_lshlrev_b32 v28, 13, v{vN}
v_lshl_add_u32 v28, v{vG}, 4, v28
s_lshl_b32 {t1}, s11, 18
s_add_u32 {u0}, {t2}, {t1}
s_add_u32 {u1}, {u0}, 131072
s_add_u32 {t3}, {sHB}, {QP}
v_and_b32 v104, 31, v0
v_lshrrev_b32 v105, 5, v0
v_lshlrev_b32 v106, 11, v105
v_lshl_add_u32 v106, v104, 4, v106
s_waitcnt {"vmcnt(0) " if opt.get("ukd", 0) else ""}lgkmcnt(0)
""")
    for t in range(2):
        for s_ in range(4):
            a(f"buffer_load_dwordx4 {V(UK+16*t+4*s_)}, v28, {S(R_B)}, {u0 if t == 0 else u1} offen offset:{64*s_} {NTU}")
    a(f"""
s_lshl_b32 {t1}, s11, 8
s_add_u32 {t1}, {t1}, {L_QS}
v_and_b32 v107, 1, v104
v_lshlrev_b32 v107, 6, v107
v_lshl_add_u32 v107, v105, 5, v107
v_and_b32 v111, 14, v104
v_add_u32 v107, v111, v107
v_and_b32 v111, 16, v104
v_lshl_add_u32 v107, v111, 3, v107
v_add_u32 v107, {t1}, v107
v_lshlrev_b32 v108, 4, v{vG}
v_add_u32 v108, {t1}, v108
v_lshlrev_b32 v109, 5, v{vN}
v_lshl_add_u32 v109, v{vG}, 3, v109
v_lshrrev_b32 v110, 4, v109
s_lshl_b32 {t1}, {sJ}, 7
s_add_u32 {t0}, {sHB}, {t1}
s_lshl_b32 {t1}, s11, 6
s_add_u32 {t0}, {t0}, {t1}
s_add_u32 {t0}, {t0}, {QA}
v_add_u32 v109, {t0}, v109
""")
    mk_tags()
    mk_pat(120, 110)
    a(f"""
v_and_b32 v110, 1, v{vG}
v_cmp_eq_u32 vcc, 1, v110
v_cndmask_b32 v120, v120, v122, vcc
v_cndmask_b32 v121, v121, v123, vcc
s_setprio 3
{"s_barrier" if (N0 and BSAT != "start") else ""}
{"" if L1 == 2 else "s_barrier"}
""")
    G1 = 64
    sc = (128 ** -0.5) * math.log2(math.e)
    a(f"v_mov_b32 v111, 0x{f2u(sc):08x}")
    if L1:
        a(f"s_add_u32 {t0}, {t3}, {QPL}\ns_mov_b32 {sCNT}, {NL if L1 == 1 else 40}\nL_l1:")
        for u in range(4): a(f"buffer_load_dwordx4 {V(G1+4*u)}, v106, {S(R_WS)}, {t0} offen offset:{u*512} sc1")
        a("s_waitcnt vmcnt(0)")
        check([("0xff", [(G1 + k, vT8) for k in range(16)])], 96)
        if L1 == 2:
            a(f"s_cbranch_vccz L_l1b\ns_mov_b64 exec, vcc\ns_sub_u32 {sCNT}, {sCNT}, 1\ns_cbranch_scc0 L_l1\ns_barrier")
        else: a(f"s_cbranch_vccz L_l1d\ns_mov_b64 exec, vcc\ns_sub_u32 {sCNT}, {sCNT}, 1\ns_cbranch_scc0 L_l1")
    gather([f"buffer_load_dwordx4 {V(G1+4*u)}, v106, {S(R_WS)}, {t3} offen offset:{u*512} sc1" for u in range(4)],
           [("0xff", [(G1 + k, vT8) for k in range(16)])], 96, "L_h1")
    if L1 == 2: a("s_branch L_l1d\nL_l1b:\ns_barrier")
    if L1: a("L_l1d:\ns_mov_b64 exec, -1")
    stamp(4)
    for e in (0, 2): a(f"v_pk_add_f32 {V(G1+e,2)}, {V(G1+e,2)}, {V(G1+4+e,2)}\nv_pk_add_f32 {V(G1+8+e,2)}, {V(G1+8+e,2)}, {V(G1+12+e,2)}")
    for e in (0, 2): a(f"v_pk_add_f32 {V(G1+e,2)}, {V(G1+e,2)}, {V(G1+8+e,2)}")
    a(f"""
v_permlane32_swap_b32 v{G1}, v{G1+2}
v_permlane32_swap_b32 v{G1+1}, v{G1+3}
v_pk_add_f32 {V(G1,2)}, {V(G1,2)}, {V(G1+2,2)}
v_cvt_pk_bf16_f32 v{G1}, v{G1}, v{G1+1}
ds_write_b16 v107, v{G1}
ds_write_b16_d16_hi v107, v{G1} offset:16
s_waitcnt lgkmcnt(0)
""")
    for s_ in range(4): a(f"ds_read_b128 {V(80+4*s_)}, v108 offset:{64*s_}")
    for s_ in range(4):
        a(f"s_waitcnt lgkmcnt({3-s_})")
        for t in range(2):
            a(f"v_mfma_f32_16x16x32_bf16 {V(112+4*t)}, {V(UK+16*t+4*s_)}, {V(80+4*s_)}, {'0' if s_ == 0 else V(112+4*t)}")
    a(f"""
s_mov_b32 exec_lo, 0x00020002
s_mov_b32 exec_hi, 0x00020002
v_mov_b32 v112, v116
v_mov_b32 v113, v117
v_mov_b32 v114, v118
v_mov_b32 v115, v119
s_mov_b32 exec_lo, 0x00030003
s_mov_b32 exec_hi, 0x00030003
v_mul_f32 v112, v111, v112
v_mul_f32 v113, v111, v113
v_mul_f32 v114, v111, v114
v_mul_f32 v115, v111, v115
v_add_u32 v112, 0x10000, v112
v_add_u32 v113, 0x10000, v113
v_add_u32 v114, 0x10000, v114
v_add_u32 v115, 0x10000, v115
v_perm_b32 v12, v113, v112, {sHI}
v_perm_b32 v13, v115, v114, {sHI}
v_bfi_b32 v12, {sM1}, v120, v12
v_bfi_b32 v13, {sM1}, v121, v13
buffer_store_dwordx2 v[12:13], v109, {S(R_WS)}, 0 offen sc1
s_mov_b64 exec, -1
""")
    stamp(5)
    a("s_branch L_b0")
    a("L_loader:")
    srd(R_A, 6, 16777216)
    if opt.get("tlb2", 0):
        a(f"""
s_cmp_lg_u32 {sW}, 7
s_cbranch_scc1 L_ntl
v_lshlrev_b32 v8, 21, v0
s_lshl_b32 {t0}, {sI}, 17
v_mov_b32 v10, {t0}
s_mov_b64 exec, 0x1
global_load_dword v75, v10, s[6:7] nt
global_load_dword v76, v8, s[18:19] nt
global_load_dword v77, v8, s[20:21] nt
s_mov_b64 exec, 0x7ff
global_load_dword v71, v8, s[28:29] offset:256 nt
s_mov_b64 exec, 0x3
global_load_dword v74, v8, s[12:13] nt
global_load_dword v70, v8, s[14:15] nt
s_mov_b64 exec, 0x1
global_load_dword v72, v8, s[22:23] nt
global_load_dword v73, v8, s[24:25] nt
s_mov_b64 exec, -1
L_ntl:
""")
    consts()
    a("s_waitcnt lgkmcnt(0)")
    mk_tags()
    GUAT = opt.get("guat", 2)
    a(f"""
s_mul_i32 {u1}, {sJ}, {64*3584}
s_lshl_b32 {t3}, {sFG}, 7
s_add_u32 {u1}, {u1}, {t3}
s_and_b32 {t1}, {sW}, 1
s_mul_i32 {t1}, {t1}, {32*3584}
s_add_u32 {u1}, {u1}, {t1}
s_cmp_lt_u32 {sFG}, 28
s_cselect_b32 s{R_B+2}, 1835008, 0
s_bitcmp0_b32 {sW}, 1
s_cselect_b64 s[{R_B}:{R_B+1}], s[18:19], s[20:21]
s_mov_b32 s{R_B+3}, 0x00020000
v_mul_u32_u24 v13, {4*3584}, v{vR8}
v_lshl_add_u32 v13, v{vM8}, 4, v13
v_add_u32 v14, 7168, v13
s_sub_u32 {t0}, {sW}, 4
""")
    if SPREAD:
        a(f"""
s_lshl_b32 {t1}, {t0}, 4
s_add_u32 {t1}, {t1}, {sI}
s_and_b32 {t1}, {t1}, 127
s_xor_b32 {t3}, {t1}, 64
s_add_u32 {t3}, {t3}, 512
s_lshl_b32 {t2}, {t0}, 7
s_add_u32 {t1}, {t1}, {t2}
s_add_u32 {t3}, {t3}, {t2}
s_lshl_b32 {t1}, {t1}, 14
s_lshl_b32 {t3}, {t3}, 14
s_mul_i32 {t2}, {t0}, {16*RS}
""")
    else:
        a(f"""
s_lshl_b32 {t1}, {sI}, 17
s_lshl_b32 {t2}, {t0}, 14
s_add_u32 {t1}, {t1}, {t2}
s_add_u32 {t3}, {t1}, 65536
s_mul_i32 {t2}, {t0}, {16*RS}
""")
    if N0: a("s_barrier")
    c0, c1, c2 = "s8", "s9", "s10"
    a(f"s_mov_b32 {c0}, {t1}\ns_mov_b32 {c1}, {t2}\ns_mov_b32 {c2}, {t3}")
    def cgroup(grp, R):
        if grp == N0: a("s_barrier")
        if grp == GUAT:
            for k in range(4):
                a(f"buffer_load_dwordx4 {V(WB+16+4*k)}, v{13+(k>>1)}, {S(R_B)}, {u1} offen offset:{3584*(k&1)} {NT}")
                if THR: a(f"s_waitcnt vmcnt({THR})")
        for r in range(4):
            a(f"s_add_u32 m0, {c1}, {32*r}")
            a(f"buffer_load_dwordx4 v{vL16}, {S(R)}, {c0} offen offset:{1024*r} {NTC} lds")
            if THR: a(f"s_waitcnt vmcnt({THR})")
        if grp == 3: a(f"s_mov_b32 {c0}, {c2}\ns_add_u32 {c1}, {c1}, {52*RS}")
        elif grp < 7: a(f"s_add_u32 {c0}, {c0}, 4096\ns_add_u32 {c1}, {c1}, {4*RS}")
    for grp in range(B0AT): cgroup(grp, R_A)
    stamp(1)
    a(f"s_waitcnt vmcnt({4*(B0AT-4)})")
    a("L_b0:")
    srd(R_O, 14, 4194304)
    srd(R_D, 22, 1835008)
    srd(R_A, 12, 4194304)
    srd(R_B, 6, 16777216)
    a(f"""
s_lshl_b32 {t0}, {sG}, 6
s_lshl_b32 {t1}, {sW}, 3
s_add_u32 {t0}, {t0}, {t1}
s_and_b32 {t1}, s2, 7
s_add_u32 {t0}, {t0}, {t1}
""")
    cnaddr("s11", t0, t1)
    a(f"s_lshl_b32 {t0}, {sG}, 6\ns_lshl_b32 {t1}, {sJ}, 3\ns_add_u32 {t0}, {t0}, {t1}\ns_add_u32 {t0}, {t0}, {sW}")
    cnaddr("s18", t0, t1)
    a(f"""
v_mul_u32_u24 v8, {RS}, v{vN}
v_lshl_add_u32 v8, v{vG}, 4, v8
s_mul_i32 {t0}, {sW}, {16*RS}
v_add_u32 v9, {t0}, v8
v_add_u32 v8, {L_Q}, v8
v_lshrrev_b32 v10, 2, v0
v_mul_u32_u24 v10, {RS}, v10
v_and_b32 v11, 3, v0
v_lshl_add_u32 v10, v11, 3, v10
s_lshl_b32 {t0}, {sW}, 7
v_add_u32 v10, {t0}, v10
v_add_u32 v11, {64*RS}, v10
s_lshl_b32 {t0}, {sJ}, 19
s_lshl_b32 {t1}, {sH}, 8
s_add_u32 {t0}, {t0}, {t1}
s_and_b32 {t1}, {sW}, 3
s_lshl_b32 {t1}, {t1}, 17
s_add_u32 {u0}, {t0}, {t1}
s_lshl_b32 {t1}, {sJ}, 10
s_add_u32 {u1}, {sFB}, {t1}
s_and_b32 {t1}, {sW}, 3
s_lshl_b32 {t1}, {t1}, 8
s_add_u32 {u1}, {u1}, {t1}
s_add_u32 {u1}, {u1}, {FP}
s_and_b32 {t1}, {sW}, 1
s_lshl_b32 {t1}, {t1}, 6
s_add_u32 {t1}, {t1}, {L_XN}
v_lshl_add_u32 v15, v{vR8}, 3, {t1}
v_lshlrev_b32 v13, 11, v{vR8}
v_lshl_add_u32 v13, v{vM8}, 4, v13
v_lshlrev_b32 v14, 13, v{vR8}
v_lshl_add_u32 v14, v{vM8}, 4, v14
v_lshrrev_b32 v28, 1, v{vN}
v_xor_b32 v28, v28, v{vG}
v_lshlrev_b32 v28, 5, v28
v_and_b32 v29, 1, v0
v_lshl_add_u32 v28, v29, 4, v28
v_lshl_add_u32 v28, v{vG}, 13, v28
v_xor_b32 v29, 128, v28
v_add_u32 v29, 32768, v29
v_mul_u32_u24 v30, {OH}, v{vM8}
v_lshl_add_u32 v30, v{vG}, 4, v30
v_and_b32 v31, 8, v0
v_lshl_add_u32 v30, v31, 3, v30
s_mul_i32 {t3}, {sG}, {16*OH}
s_mul_i32 {t4}, {sW}, {IB}
s_add_u32 {t3}, {t3}, {t4}
s_lshl_b32 {t4}, {sI}, 7
s_add_u32 {t3}, {t3}, {t4}
s_add_u32 {t3}, {t3}, {OP}
v_add_u32 v30, {t3}, v30
v_add_u32 v31, {8*OH}, v30
v_lshlrev_b32 v6, 4, v{vN}
v_add_u32 v6, {L_MX}, v6
s_lshl_b32 {t2}, {sH}, 17
s_lshl_b32 {t3}, {sJ}, 14
s_add_u32 {t2}, {t2}, {t3}
s_lshl_b32 {t5}, {sW}, 7
s_add_u32 {w0_}, {t2}, {t5}
s_lshl_b32 {t3}, {sFG}, 16
s_add_u32 {t5}, {t5}, {t3}
s_lshl_b32 {t3}, {sJ}, 10
s_add_u32 {w1_}, {t5}, {t3}
s_mul_i32 {t3}, {sW}, {4*RS}
s_add_u32 {t3}, {t3}, {L_Q}
v_add_u32 v12, {t3}, v{vL16}
s_mul_i32 {t0}, {sW}, {4*HB}
s_add_u32 {t0}, {t0}, {sGB}
s_add_u32 {t0}, {t0}, {QA}
s_add_u32 {t1}, {t0}, {HB}
s_add_u32 {t2}, {t1}, {HB}
s_add_u32 {t3}, {t2}, {HB}
s_add_u32 {t4}, {u0}, 65536
s_cmp_ge_u32 {sW}, 4
""")
    wol = [f"buffer_load_dwordx4 {V(WO)}, v13, {S(R_O)}, {w0_} offen {NT}", f"buffer_load_dwordx4 {V(WO+4)}, v13, {S(R_O)}, {w0_} offen offset:1024 {NT}",
           f"buffer_load_dwordx4 {V(WD)}, v14, {S(R_D)}, {w1_} offen {NT}"]
    WO03 = opt.get("wo03", "ba")
    if WO03 == "b0":
        a("s_cbranch_scc1 L_nwo")
        for l in wol: a(l)
        a("L_nwo:")
    a("s_waitcnt lgkmcnt(0)\ns_barrier")
    def rdTh(ks, T, half):
        r = TF + 16 * ks + 4 * T + 2 * half
        a(f"ds_read_b64_tr_b16 {V(r,2)}, {'v11' if half else 'v10'} offset:{16*ks*RS + 32*T}")
    G2 = 64
    h2loads = [f"buffer_load_dwordx4 {V(G2+4*k)}, v{vL16}, {S(R_WS)}, {[t0,t1,t2,t3][k]} offen sc1" for k in range(4)]
    T1T = opt.get("t1t", THR)
    NE = opt.get("ne", 4)
    LT = opt.get("lt", "")
    if LT: NE = 0
    tl = [f"buffer_load_dwordx4 {V(WB+4*k)}, v{28+(k&1)}, {S(R_A)}, {u0 if k < 2 else t4} offen {NT}" for k in range(4)] + wol
    PFR = 80
    a("s_cbranch_scc1 L_ng")
    for l in h2loads: a(l)
    stamp(6)
    for ks in range(4):
        if ks == 2: a("s_waitcnt lgkmcnt(7)")
        for T in range(4): rdTh(ks, T, 0)
    gather(h2loads, [(sM1, [(G2 + 4 * k + e, PATL + e) for k in range(4) for e in range(4)])], 96, "L_h2g", sel="quad", issue=False)
    a("s_waitcnt lgkmcnt(8)")
    for k in range(4): a(f"ds_write_b128 v12, {V(G2+4*k)} offset:{k*RS}")
    W3 = opt.get("w3", "b2")
    a(f"s_setprio 0\nv_add_u32 v76, {L_P}, v{vL16}\ns_waitcnt lgkmcnt(0)\ns_barrier")
    stamp(7)
    if W3 == "bq":
        for l in wol: a(l)
    a("s_barrier\nds_read_b128 v[68:71], v6")
    for ks in range(4):
        if ks == 3: a("s_waitcnt lgkmcnt(7)")
        for T in range(4): rdTh(ks, T, 1)
    if W3 == "b2":
        for l in wol: a(l)
    a(f"""
v_max3_f32 v66, v68, v69, v70
v_max_f32 v66, v66, v71
v_and_b32 v66, {sM8}, v66
s_barrier
""")
    for ks in range(4): a(f"ds_read_b128 {V(PFR+4*ks)}, v76 offset:{1024*ks}")
    a("s_branch L_pv\nL_ng:")
    AFa = TF; AFb = AF; SA = 12; SB_ = 60
    FPAT = opt.get("fpat", "t"); fpst = f"buffer_store_dword v18, v19, {S(R_WS)}, {u1} offen sc1"
    a(f"v_subrev_u32 v12, {64*RS}, v9\nds_read_b64 {V(XP,2)}, v15")
    for s in range(8): a(f"ds_read_b128 {V(AFa+4*s)}, v12 offset:{64*s}")
    for grp in range(B0AT, 8):
        cgroup(grp, R_B)
        if grp == B0AT:
            a("s_waitcnt lgkmcnt(0)")
            for s in range(8, 16): a(f"ds_read_b128 {V(AFa+4*s)}, v12 offset:{64*s}")
    stamp(6)
    gemv(WB + 16, 64, 72, 18, nk=2)
    tag8(18)
    a(f"""
v_lshlrev_b32 v19, 2, v0
v_mov_b32 v16, v13
v_mov_b32 v17, v14
{fpst if FPAT == "bq" else ""}
s_waitcnt lgkmcnt(0)
s_barrier
""")
    stamp(7)
    tl2 = [l.replace("v13,", "v16,").replace("v14,", "v17,") for l in tl]
    PRE = 12
    for s in range(PRE): a(f"ds_read_b128 {V(QF+4*s)}, v8 offset:{64*s}")
    for s in range(16):
        rem = min(16, s + PRE) - (s + 1)
        a(f"s_waitcnt lgkmcnt({rem})")
        a(f"v_mfma_f32_16x16x32_bf16 {V(SA)}, {V(AFa+4*s)}, {V(QF+4*s)}, {'0' if s == 0 else V(SA)}")
        if s + PRE < 16: a(f"ds_read_b128 {V(QF+4*(s+PRE))}, v8 offset:{64*(s+PRE)}")
    for ks in range(2):
        for T in range(4): rdTh(ks, T, 0)
    for l in tl2[:NE]:
        if T1T: a(f"s_waitcnt vmcnt({T1T-1})")
        a(l)
    a("s_waitcnt lgkmcnt(7)")
    for ks in range(2, 4):
        for T in range(4): rdTh(ks, T, 0)
    a(f"s_setprio 3\ns_waitcnt vmcnt({NE}) lgkmcnt(3)")
    stamp(8)
    for s in range(PRE): a(f"ds_read_b128 {V(AFb+4*s)}, v9 offset:{64*s}")
    for l in tl2[NE:]: a(l)
    a(f"""
{fpst if FPAT == "t" else ""}
s_and_b32 {t0}, {sW}, 3
s_lshl_b32 {t2}, {t0}, 2
s_lshl_b32 {t0}, {t0}, 10
s_add_u32 {t3}, {t0}, {L_P}
v_add_u32 v28, {t2}, v6
v_add_u32 v29, {t3}, v{vL16}
v_max3_f32 v16, v{SA}, v{SA+1}, v{SA+2}
""")
    for s in range(16):
        rem = min(16, s + PRE) - (s + 1)
        a(f"s_waitcnt lgkmcnt({rem})")
        a(f"v_mfma_f32_16x16x32_bf16 {V(SB_)}, {V(AFb+4*s)}, {V(QF+4*s)}, {'0' if s == 0 else V(SB_)}")
        if s + PRE < 16: a(f"ds_read_b128 {V(AFb+4*(s+PRE))}, v9 offset:{64*(s+PRE)}")
    a(f"""
v_add_u32 v76, {L_P}, v{vL16}
v_max3_f32 v67, v{SB_}, v{SB_+1}, v{SB_+2}
v_max3_f32 v66, v16, v{SA+3}, v{SB_+3}
v_max_f32 v66, v66, v67
""")
    allred_hi(66, 67, "v_max_f32")
    a("ds_write_b32 v28, v66")
    stamp3(1)
    a("s_waitcnt lgkmcnt(0)\ns_barrier")
    if DIAG == 3: stamp3(2); a("s_waitcnt lgkmcnt(0)")
    a("ds_read_b128 v[68:71], v6")
    for ks in range(2):
        for T in range(4): rdTh(ks, T, 1)
    a(f"""
s_waitcnt lgkmcnt(8)
v_max3_f32 v66, v68, v69, v70
v_max_f32 v66, v66, v71
v_and_b32 v66, {sM8}, v66
""")
    for b in (SA, SB_):
        for r in range(4): a(f"v_sub_f32 v{b+r}, v{b+r}, v66")
    for b in (SA, SB_):
        for r in range(4): a(f"v_exp_f32 v{b+r}, v{b+r}")
    a(f"""
v_cvt_pk_bf16_f32 v68, v{SA}, v{SA+1}
v_cvt_pk_bf16_f32 v69, v{SA+2}, v{SA+3}
v_cvt_pk_bf16_f32 v70, v{SB_}, v{SB_+1}
v_cvt_pk_bf16_f32 v71, v{SB_+2}, v{SB_+3}
s_waitcnt lgkmcnt(6)
ds_write_b128 v29, v[68:71]
""")
    for ks in range(2, 4):
        for T in range(4): rdTh(ks, T, 1)
    if DIAG == 3: stamp3(3); a("s_waitcnt lgkmcnt(0)")
    a("s_waitcnt lgkmcnt(8)\ns_setprio 0\ns_barrier")
    if DIAG == 3: stamp3(4); a("s_waitcnt lgkmcnt(0)")
    for ks in range(4): a(f"ds_read_b128 {V(PFR+4*ks)}, v76 offset:{1024*ks}")
    if FPAT == "b3": a(fpst)
    a("L_pv:")
    def late_tail():
        L = a.label("L_lt")
        a(f"""
v_lshlrev_b32 v62, 11, v{vR8}
v_lshl_add_u32 v62, v{vM8}, 4, v62
v_lshlrev_b32 v63, 13, v{vR8}
v_lshl_add_u32 v63, v{vM8}, 4, v63
s_cmp_lt_u32 {sW}, 4
s_cbranch_scc1 {L}
""")
        for k in range(4): a(f"buffer_load_dwordx4 {V(WB+4*k)}, v{60+(k&1)}, {S(R_A)}, {u0 if k < 2 else 's19'} offen {NT}")
        a(f"{L}:")
        for l in wol: a(l.replace("v13,", "v62,").replace("v14,", "v63,"))
    if LT == "b3": late_tail()
    OA = AF; LA = AF + 16; ONE = AF + 20
    a(f"v_mov_b32 v77, 1\ns_cmp_lg_u32 {sW}, 2\ns_cbranch_scc1 L_noml")
    for r in range(4): a(f"v_mov_b32 v{ONE+r}, 0x3f803f80")
    a(f"""
v_lshlrev_b32 v75, 3, v0
s_lshl_b32 {t3}, {sG}, 14
s_lshl_b32 {t4}, {sI}, 7
s_add_u32 {t3}, {t3}, {t4}
s_add_u32 {t3}, {t3}, {ML}
v_or_b32 v108, v66, v{vT8}
""")
    for ks in range(4):
        a(f"s_waitcnt lgkmcnt({3-ks})")
        a(f"v_mfma_f32_16x16x32_bf16 {V(LA)}, {V(ONE)}, {V(PFR+4*ks)}, {'0' if ks == 0 else V(LA)}")
    a(f"""
v_and_or_b32 v109, v{LA}, {sM8}, v{vT8}
s_mov_b64 exec, 0xffff
buffer_store_dwordx2 v[108:109], v75, {S(R_WS)}, {t3} offen sc1
s_mov_b64 exec, -1
L_noml:
""")
    for ks in range(4):
        a(f"s_waitcnt lgkmcnt({3-ks})")
        for T in range(4):
            a(f"v_mfma_f32_16x16x32_bf16 {V(OA+4*T)}, {V(TF+16*ks+4*T)}, {V(PFR+4*ks)}, {'0' if ks == 0 else V(OA+4*T)}")
    EA3 = opt.get("ea3", 1); EA5 = opt.get("ea5", 1)
    if EA3 == 2: a(f"s_mov_b64 exec, 1\nbuffer_atomic_add v77, off, {S(R_WS)}, s11 sc1\ns_mov_b64 exec, -1")
    for T in range(4):
        a(f"v_cvt_pk_bf16_f32 v{96+2*T}, v{OA+4*T}, v{OA+4*T+1}\nv_cvt_pk_bf16_f32 v{97+2*T}, v{OA+4*T+2}, v{OA+4*T+3}")
        if T < 2:
            a(f"v_bfi_b32 v{104+2*T}, {sM1}, v{PATG+2*T}, v{96+2*T}\nv_bfi_b32 v{105+2*T}, {sM1}, v{PATG+2*T+1}, v{97+2*T}")
        a(f"v_bfi_b32 v{96+2*T}, {sM1}, v{PATG+(2*T)%4}, v{96+2*T}\nv_bfi_b32 v{97+2*T}, {sM1}, v{PATG+(2*T+1)%4}, v{97+2*T}")
    stamp3(5)
    if EA3 == 1: a(f"s_mov_b64 exec, 1\nbuffer_atomic_add v77, off, {S(R_WS)}, s11 sc1\ns_mov_b64 exec, -1")
    for e in range(4): a(f"v_mov_b32_dpp v{96+e}, v{100+e} row_ror:8 row_mask:0xf bank_mask:0xc")
    a(f"buffer_store_dwordx4 v[96:99], v30, {S(R_WS)}, 0 offen sc1")
    for e in range(4): a(f"v_mov_b32_dpp v{100+e}, v{104+e} row_ror:8 row_mask:0xf bank_mask:0x3")
    a(f"buffer_store_dwordx4 v[100:103], v31, {S(R_WS)}, 0 offen sc1")
    a("s_mov_b64 exec, 1" if EA3 else f"s_mov_b64 exec, 1\nbuffer_atomic_add v77, off, {S(R_WS)}, s11 sc1")
    stamp(9)
    if LT == "pv": a("s_mov_b64 exec, -1"); late_tail(); a("s_mov_b64 exec, 1")
    hfloads = [f"buffer_load_dword v{104+k}, v10, {S(R_WS)}, {t4} offen offset:{256*k} sc1" for k in range(4)]
    def ffn2s():
        for e in range(4):
            a(f"v_lshlrev_b32 v{168+2*e}, 16, v{WD+e}\nv_and_b32 v{169+2*e}, {sMSK}, v{WD+e}")
        for e in range(4):
            a(f"v_perm_b32 v{WOP+2*e}, v{WO+4+e}, v{WO+e}, {sLO}\nv_perm_b32 v{WOP+2*e+1}, v{WO+4+e}, v{WO+e}, {sHI}")
    def fin_addr():
        a(f"""
s_lshr_b32 s14, s2, 4
s_and_b32 s14, s14, 7
s_lshl_b32 s15, {sW}, 3
s_add_u32 s15, s15, s14
s_add_u32 s15, s15, 128
""")
        if C5:
            a(f"s_lshl_b32 s14, s14, 2\ns_and_b32 s15, s2, 3\ns_add_u32 s14, s14, s15\ns_mul_i32 s14, s14, {HB}\ns_lshl_b32 s15, {sW}, 7\ns_add_u32 s12, s14, s15\ns_add_u32 s12, s12, {CN4}")
        else: cnaddr("s12", "s15", "s14")
        a(f"""
s_sub_u32 s13, {sFG}, 24
s_and_b32 s13, s13, 7
s_lshl_b32 s15, s13, 3
s_add_u32 s14, s15, {sW}
s_add_u32 s14, s14, 128
""")
        if C5:
            a(f"s_mul_i32 s14, {sW}, {4*HB}\ns_lshl_b32 s11, s13, 7\ns_add_u32 s11, s11, s14\ns_add_u32 s11, s11, {CN4}\nv_mul_u32_u24 v179, {HB}, v0")
        else: cnaddr("s11", "s14", "s10")
        a(f"""
s_add_u32 s15, s15, {sJ}
s_mul_i32 s8, s15, {SB}
s_lshl_b32 s9, {sW}, 10
s_add_u32 s8, s8, s9
s_add_u32 s8, s8, {SP}
s_add_u32 s9, s8, 8192
s_lshl_b32 s13, s13, 6
s_add_u32 s13, s13, {sJ}
s_lshl_b32 s13, s13, 1
v_lshl_add_u32 v176, v{vM8}, 4, s13
v_bfe_u32 v177, v0, 4, 1
v_lshlrev_b32 v177, 8, v177
v_and_b32 v178, 3, v0
v_lshl_add_u32 v177, v178, 6, v177
v_lshrrev_b32 v178, 5, v0
v_lshl_add_u32 v177, v178, 5, v177
s_lshl_b32 s14, {sW}, 2
s_add_u32 s14, s14, {L_FIN}
v_add_u32 v177, s14, v177
v_lshlrev_b32 v178, 5, v{vM8}
v_add_u32 v178, {L_FIN}, v178
""")
    def mid3():
        fin_addr()
        a(f"""
s_cmp_lt_u32 {sW}, 4
s_cbranch_scc1 L_pc0
s_lshl_b32 {t0}, {sW}, 12
s_add_u32 {t0}, {t0}, {L_UV - 4*4096}
v_add_u32 v9, {t0}, v{vL16}
s_waitcnt vmcnt({ 7 if FPAT == 'bq' else 8 })
""")
        for u in range(4): a(f"ds_write_b128 v9, {V(WB+4*u)} offset:{1024*u}")
        a(f"""
L_pc0:
v_lshlrev_b32 v8, 7, v{vR8}
s_lshl_b32 {t0}, {sG}, 14
s_lshl_b32 {t1}, {sW}, 11
s_add_u32 {t0}, {t0}, {t1}
s_and_b32 {t1}, {sH}, 15
s_lshl_b32 {t1}, {t1}, 3
s_add_u32 {t0}, {t0}, {t1}
s_add_u32 {t0}, {t0}, {ML}
s_mul_i32 {t1}, {sH}, {OH}
s_mul_i32 {t2}, {sJ}, {IB}
s_add_u32 {t1}, {t1}, {t2}
s_lshl_b32 {t2}, {sW}, 11
s_add_u32 {t1}, {t1}, {t2}
s_add_u32 {t1}, {t1}, {OP}
s_lshl_b32 {t2}, {sW}, 3
s_add_u32 {t2}, {t2}, {L_ST2}
v_mov_b32 v74, {t2}
v_bfe_u32 v75, v0, 3, 1
v_mul_u32_u24 v75, 160, v75
v_lshl_add_u32 v75, v{vM8}, 4, v75
v_lshl_add_u32 v75, v{vG}, 2, v75
s_mul_i32 {t2}, {sW}, 320
s_add_u32 {t2}, {t2}, {L_OR}
v_add_u32 v75, {t2}, v75
v_mul_u32_u24 v76, 160, v{vN}
v_lshl_add_u32 v76, v{vG}, 4, v76
v_add_u32 v76, {L_OR}, v76
v_lshrrev_b32 v77, 2, v0
v_and_b32 v78, 7, v77
v_xor_b32 v78, {sW}, v78
v_lshlrev_b32 v77, 8, v77
v_lshl_add_u32 v77, v78, 5, v77
v_and_b32 v78, 3, v0
v_lshl_add_u32 v77, v78, 3, v77
v_add_u32 v77, {L_UV}, v77
v_lshlrev_b32 v78, 3, v{vM8}
v_add_u32 v78, {L_ST2}, v78
v_lshlrev_b32 v79, 4, v{vG}
v_add_u32 v79, {L_ST2}, v79
v_mov_b32 v14, {sH8}
s_lshl_b32 {t2}, {sW}, 9
s_add_u32 {t2}, {sHB}, {t2}
s_lshl_b32 {t3}, {sJ}, 6
s_add_u32 {t2}, {t2}, {t3}
s_add_u32 {t2}, {t2}, {CP}
v_lshl_add_u32 v15, v0, 2, {t2}
s_lshl_b32 {t2}, {sJ}, 9
s_add_u32 {t2}, {sHB}, {t2}
s_add_u32 {t2}, {t2}, {CP}
v_lshlrev_b32 v9, 6, v{vM8}
v_lshl_add_u32 v9, v{vR8}, 3, v9
v_mul_u32_u24 v11, {SB}, v{vR8}
v_lshl_add_u32 v11, v{vM8}, 3, v11
s_mul_i32 {t3}, {sW}, {8*SB}
s_lshl_b32 {t4}, s2, 6
s_add_u32 {t3}, {t3}, {t4}
s_add_u32 {t3}, {t3}, {SP}
v_lshlrev_b32 v10, 10, v{vM8}
v_lshl_add_u32 v10, v{vR8}, 2, v10
s_lshl_b32 {t4}, {sJ}, 5
s_add_u32 {t4}, {sFB}, {t4}
s_add_u32 {t4}, {t4}, {FP}
s_lshl_b32 {u0}, {sW}, 7
s_add_u32 {u0}, {u0}, {sHB}
s_add_u32 {u0}, {u0}, {CN4}
s_lshl_b32 {u1}, {sJ}, 7
s_add_u32 {u1}, {u1}, {sHB}
s_add_u32 {u1}, {u1}, {CN4}
v_mov_b32 v12, 1
v_lshlrev_b32 v13, 3, v{vR8}
v_add_u32 v13, {L_HS}, v13
s_and_b32 {t5}, s2, 7
""")
    hint("s18", 16, "L_c3", mid=mid3, execset=True)
    stamp(10)
    h3loads = [f"buffer_load_dwordx2 v[64:65], v8, {S(R_WS)}, {t0} offen sc1",
            f"buffer_load_dwordx2 v[68:69], v8, {S(R_WS)}, {t0} offen offset:1024 sc1",
            f"buffer_load_dwordx4 v[80:83], v{vL16}, {S(R_WS)}, {t1} offen sc1",
            f"buffer_load_dwordx4 v[84:87], v{vL16}, {S(R_WS)}, {t1} offen offset:1024 sc1"]
    a(f"s_mov_b32 {sCNT}, {SPIN}\ns_cmp_lg_u32 {t5}, {sW}\ns_cbranch_scc1 L_h3")
    for l in hfloads: a(l)
    a("L_h3:")
    for l in h3loads: a(l)
    ffn2s()
    a(f"""
s_waitcnt vmcnt(2)
v_xor_b32 v64, v64, v{vT8}
v_xor_b32 v68, v68, v{vT8}
v_xor_b32 v65, v65, v{vT8}
v_xor_b32 v69, v69, v{vT8}
v_max_f32 v72, v64, v68
v_or3_b32 v70, v64, v65, v68
v_or_b32 v70, v70, v69
""")
    dpp("v_max_f32", 72, 72, "row_ror:8")
    a("v_and_b32 v70, 0xff, v70")
    allred_hi(72, 73, "v_max_f32")
    a("v_sub_f32 v64, v64, v72\nv_sub_f32 v68, v68, v72\nv_exp_f32 v64, v64\nv_exp_f32 v68, v68")
    a("v_mul_f32 v73, v64, v65\nv_fmac_f32 v73, v68, v69\nv_mov_b32 v65, v64\nv_mov_b32 v69, v68")
    dpp("v_add_f32", 73, 73, "row_ror:8")
    allred_hi(73, 71, "v_add_f32")
    a("s_waitcnt vmcnt(0)")
    for k in range(8): a(f"v_xor_b32 v{80+k}, v{80+k}, v{PATL+(k&3)}")
    a(f"""
v_or3_b32 v71, v80, v81, v82
v_or3_b32 v71, v83, v84, v71
v_or3_b32 v71, v85, v86, v71
v_or_b32 v71, v87, v71
v_and_or_b32 v70, v71, {sM1}, v70
v_cmp_ne_u32 vcc, 0, v70
s_cbranch_vccz L_h3d
s_sub_u32 {sCNT}, {sCNT}, 1
s_cbranch_scc0 L_h3
L_h3d:
""")
    stamp(11)
    def unp(d, s):
        a(f"v_lshl_or_b32 v{d}, v{s}, 16, v14\nv_and_or_b32 v{d+1}, v{s}, {sMSK}, v14")
    a("ds_write_b64 v74, v[72:73]")
    for e in range(4): unp(88 + 2 * e, 80 + e)
    for e in range(4): unp(96 + 2 * e, 84 + e)
    for e in range(0, 8, 2): a(f"v_pk_mul_f32 v[{88+e}:{89+e}], v[64:65], v[{88+e}:{89+e}]")
    for e in range(0, 8, 2): a(f"v_pk_fma_f32 v[{88+e}:{89+e}], v[68:69], v[{96+e}:{97+e}], v[{88+e}:{89+e}]")
    for c in range(4): a(f"v_permlane32_swap_b32 v{88+c}, v{92+c}")
    a("v_pk_add_f32 v[88:89], v[88:89], v[92:93]\nv_pk_add_f32 v[90:91], v[90:91], v[94:95]")
    for c in range(2): a(f"v_permlane16_swap_b32 v{88+c}, v{90+c}")
    a("v_pk_add_f32 v[88:89], v[88:89], v[90:91]")
    a(f"""
v_cvt_pk_bf16_f32 v88, v88, v89
ds_write_b32 v75, v88
s_cmp_lg_u32 {t5}, {sW}
s_cbranch_scc1 L_nhf
""")
    gather(hfloads, [("0xff", [(104 + k, vT8) for k in range(4)])], 108, "L_hf", sel="wave", issue=False)
    a("v_add_f32 v104, v104, v105\nv_add_f32 v105, v106, v107")
    allred_lo8([104, 105], "v_add_f32")
    a("ds_write_b64 v13, v[104:105]\nL_nhf:\ns_waitcnt lgkmcnt(0)")
    stamp2(3)
    a("s_barrier")
    stamp2(4)
    a(f"""
ds_read_b64 v[64:65], v78
ds_read_b128 v[80:83], v76
ds_read_b64_tr_b16 v[88:89], v77
ds_read_b64_tr_b16 v[90:91], v77 offset:4096
ds_read_b128 v[84:87], v76 offset:64
ds_read_b64_tr_b16 v[92:93], v77 offset:8192
ds_read_b64_tr_b16 v[94:95], v77 offset:12288
ds_read_b128 v[68:71], v79
""")
    a("ds_read_b64 v[124:125], v13\ns_waitcnt lgkmcnt(8)")
    a("v_max_f32_dpp v66, v64, v64 quad_perm:[1,0,3,2] row_mask:0xf bank_mask:0xf")
    a("s_waitcnt lgkmcnt(5)\nv_mfma_f32_16x16x32_bf16 v[96:99], v[80:83], v[88:91], 0")
    dpp("v_max_f32", 66, 66, "quad_perm:[2,3,0,1]")
    a("s_waitcnt lgkmcnt(2)\nv_mfma_f32_16x16x32_bf16 v[96:99], v[84:87], v[92:95], v[96:99]")
    dpp("v_max_f32", 66, 66, "row_half_mirror")
    a("""
s_waitcnt lgkmcnt(0)
v_sub_f32 v64, v64, v66
v_sub_f32 v68, v68, v66
v_sub_f32 v70, v70, v66
v_exp_f32 v64, v64
v_exp_f32 v68, v68
v_exp_f32 v70, v70
v_mul_f32 v64, v64, v65
v_add_f32 v96, v96, v97
v_add_f32 v98, v98, v99
""")
    dpp("v_add_f32", 64, 64, "quad_perm:[1,0,3,2]")
    a("v_mul_f32 v96, v96, v68\nv_fmac_f32 v96, v98, v70")
    dpp("v_add_f32", 64, 64, "quad_perm:[2,3,0,1]")
    a("v_mov_b32 v97, v96")
    dpp("v_add_f32", 64, 64, "row_half_mirror")
    a("v_permlane16_swap_b32 v96, v97\nv_rcp_f32 v64, v64\nv_add_f32 v96, v96, v97\nv_mov_b32 v97, v96\nv_permlane32_swap_b32 v96, v97\nv_add_f32 v96, v96, v97")
    a("v_mul_f32 v96, v96, v64")
    tag8(96)
    if L4:
        a(f"""
s_mov_b32 {u0}, 0x1000
s_add_u32 {u1}, {t2}, 0x1000
s_mov_b64 exec, 0xffff
buffer_store_dword v96, v15, {S(R_WS)}, {u0} offen
s_mov_b64 exec, -1
""")
    else:
        a(f"""
s_mov_b64 exec, 0xffff
buffer_store_dword v96, v15, {S(R_WS)}, 0 offen sc1
s_mov_b64 exec, 1
buffer_atomic_add v12, off, {S(R_WS)}, {u0} sc1
""")
    stamp(12)
    c1 = -2.0 * math.sqrt(2 / math.pi) * math.log2(math.e)
    def ffn2():
        a(f"""
v_cvt_pk_bf16_f32 v124, v124, v125
v_and_b32 v125, {sMSK}, v124
v_lshlrev_b32 v124, 16, v124
v_mul_f32 v100, v124, v124
v_mov_b32 v101, 0x{f2u(c1):08x}
v_fmac_f32 v101, 0x{f2u(c1*0.044715):08x}, v100
v_mul_f32 v100, v101, v124
v_exp_f32 v100, v100
v_add_f32 v100, 1.0, v100
v_rcp_f32 v100, v100
v_mul_f32 v124, v124, v100
""")
        bfround(124, 124)
        a("v_mul_f32 v124, v124, v125")
        bfround(13, 124)
        for e in range(8): a(f"v_mul_f32 v{168+e}, v13, v{168+e}")
        rs8(168, 125)
        tag8(125)
    gpub = f"s_mov_b64 exec, 0xffff\nbuffer_store_dword v96, v15, {S(R_WS)}, 0 offen sc1\ns_mov_b64 exec, -1"
    if L4:
        if opt.get("f2f", 0): ffn2()
        a(f"buffer_load_dwordx2 v[104:105], v9, {S(R_WS)}, {u1} offen sc1")
        if EA5 == 3: a(f"s_mov_b64 exec, 1\nbuffer_atomic_add v12, off, {S(R_WS)}, s12 sc1\ns_mov_b64 exec, -1")
        if not opt.get("f2f", 0): ffn2()
        if EA5 == 2: a(f"s_mov_b64 exec, 1\nbuffer_atomic_add v12, off, {S(R_WS)}, s12 sc1\ns_mov_b64 exec, -1")
        a(f"s_mov_b32 {sCNT}, {NL}\ns_waitcnt vmcnt({1 if EA5 >= 2 else 0})\ns_branch L_l4w\nL_l4:\nbuffer_load_dwordx2 v[104:105], v9, {S(R_WS)}, {u1} offen sc1\ns_waitcnt vmcnt(0)\nL_l4w:")
        check([("0xff", [(104, vT8), (105, vT8)])], 68)
        a(f"s_cbranch_vccz L_l4d\ns_sub_u32 {sCNT}, {sCNT}, 1\ns_cbranch_scc0 L_l4")
        a(gpub)
        gather([f"buffer_load_dwordx2 v[104:105], v9, {S(R_WS)}, {t2} offen sc1"], [("0xff", [(104, vT8), (105, vT8)])], 68, "L_h4", sel="wave")
        a("L_l4d:")
    else:
        hint(u1, 8, "L_c4", mid=ffn2, execset=True)
        stamp2(8)
        gather([f"buffer_load_dwordx2 v[104:105], v9, {S(R_WS)}, {t2} offen sc1"], [("0xff", [(104, vT8), (105, vT8)])], 68, "L_h4", sel="wave")
    stamp(13)
    if EA5 == 1: a(f"s_mov_b64 exec, 1\nbuffer_atomic_add v12, off, {S(R_WS)}, s12 sc1\ns_mov_b64 exec, -1")
    allred_lo8([104, 105], "v_add_f32")
    a("v_cvt_pk_bf16_f32 v64, v104, v105")
    for c in range(8): a(f"v_dot2_f32_bf16 v{72+c}, v{WOP+c}, v64, 0")
    rs8(72, 124)
    tag8(124)
    a(f"buffer_store_dwordx2 v[124:125], v11, {S(R_WS)}, {t3} offen sc1")
    if not EA5: a(f"s_mov_b64 exec, 1\nbuffer_atomic_add v12, off, {S(R_WS)}, s12 sc1\ns_mov_b64 exec, -1")
    stamp(14)
    if L4 and not opt.get("gp2", 1): a(gpub)
    if L4 and opt.get("gp2", 1):
        a(f"s_cmp_ge_u32 {sFG}, 24\ns_cbranch_scc1 L_isf\n{gpub}\ns_branch L_fin\nL_isf:")
    else: a(f"s_cmp_lt_u32 {sFG}, 24\ns_cbranch_scc1 L_fin")
    hint("s11", 8 if C5 else 32, "L_c5", lanes=4 if C5 else 1, voff="v179" if C5 else None, mid=lambda: a("global_load_ushort v127, v176, s[4:5]" + (("\n" + gpub) if (L4 and opt.get("gp2", 1)) else "")))
    stamp2(7)
    gather([f"buffer_load_dwordx4 {V(64+4*k)}, v{vL16}, {S(R_WS)}, {['s8','s9'][k]} offen sc1" for k in range(2)],
           [("0xff", [(64 + k, vT8) for k in range(8)])], 80, "L_h5")
    stamp(1)
    a("""
v_pk_add_f32 v[64:65], v[64:65], v[68:69]
v_pk_add_f32 v[66:67], v[66:67], v[70:71]
v_permlane32_swap_b32 v64, v66
v_permlane32_swap_b32 v65, v67
v_pk_add_f32 v[64:65], v[64:65], v[66:67]
v_permlane16_swap_b32 v64, v65
v_add_f32 v64, v64, v65
""")
    dpp("v_add_f32", 64, 64, "row_ror:8"); dpp("v_add_f32", 64, 64, "row_ror:4")
    a(f"""
ds_write_b32 v177, v64
s_waitcnt lgkmcnt(0)
s_barrier
s_cmp_lg_u32 {sW}, 0
s_cbranch_scc1 L_fin
ds_read_b128 v[72:75], v178 offset:256
ds_read_b128 v[76:79], v178 offset:272
ds_read_b128 v[64:67], v178
ds_read_b128 v[68:71], v178 offset:16
s_waitcnt lgkmcnt(2)
v_pk_add_f32 v[72:73], v[72:73], v[74:75]
v_pk_add_f32 v[76:77], v[76:77], v[78:79]
v_pk_add_f32 v[72:73], v[72:73], v[76:77]
v_add_f32 v72, v72, v73
""")
    bfround(72, 72)
    a(f"""
v_mul_f32 v73, 0x{f2u(-math.log2(math.e)):08x}, v72
v_exp_f32 v73, v73
s_waitcnt lgkmcnt(0)
v_pk_add_f32 v[64:65], v[64:65], v[66:67]
v_pk_add_f32 v[68:69], v[68:69], v[70:71]
v_add_f32 v73, 1.0, v73
v_rcp_f32 v73, v73
v_pk_add_f32 v[64:65], v[64:65], v[68:69]
v_add_f32 v64, v64, v65
v_mul_f32 v72, v72, v73
v_cvt_pk_bf16_f32 v64, v64, v72
v_lshlrev_b32 v65, 16, v64
v_and_b32 v64, {sMSK}, v64
v_mul_f32 v64, v64, v65
""")
    bfround(64, 64)
    a(f"""
v_lshlrev_b32 v12, 16, v127
v_add_f32 v64, v64, v12
v_cvt_pk_bf16_f32 v64, v64, v64
s_mov_b64 exec, 0xff
global_store_short v176, v64, s[24:25]
s_cmp_lg_u32 s13, 0
s_cbranch_scc1 L_fin0
s_mov_b64 exec, 1
v_mov_b32 v65, {sTAG}
buffer_store_dword v65, off, {S(R_WS)}, 0 sc1
L_fin0:
s_mov_b64 exec, -1
L_fin:
""")
    if opt.get("hold", 0):
        if "holdwg" in opt: a(f"s_cmp_lg_u32 s2, {opt['holdwg']}\ns_cbranch_scc1 L_end")
        a(f"s_add_u32 s{ST0+4}, s{ST0}, {opt['hold']}\nL_hold:\ns_memrealtime s[{ST0+2}:{ST0+3}]\ns_waitcnt lgkmcnt(0)\ns_sub_u32 s{ST0+5}, s{ST0+2}, s{ST0+4}\ns_cmp_lt_i32 s{ST0+5}, 0\ns_cbranch_scc1 L_hold")
    if DIAG:
        stamp(15)
        for k in range(16): a(f"v_mov_b32 v{64+k}, s{ST0+2*k}")
        a(f"""
s_lshl_b32 {t0}, s2, 3
s_add_u32 {t0}, {t0}, {sW}
s_lshl_b32 {t0}, {t0}, 6
s_add_u32 {t0}, {t0}, {STAMP}
v_mov_b32 v8, 0
s_mov_b64 exec, 1
""")
        for k in range(4): a(f"buffer_store_dwordx4 {V(64+4*k)}, v8, {S(R_WS)}, {t0} offen offset:{16*k}")
    a("L_end:\ns_endpgm")
    if opt.get("nost", 0):
        out = []; seen_b = False
        for l in a.lines:
            if l.strip() == "L_ba:": seen_b = True
            if not seen_b and "sc1" in l and ("store" in l or (opt["nost"] >= 2 and "load" in l)): l = "    s_nop 0"
            out.append(l)
        a.lines = out
    lines, n = hazard.fix(a.lines)
    body = "\n".join(lines) + "\n"
    return wrap_single(body, 256, 512, LDS_BYTES, 256), n

if __name__ == "__main__":
    name = sys.argv[1]
    opt = {}
    for kv in sys.argv[2:]:
        k, v = kv.split("=")
        try: opt[k] = int(v, 0)
        except ValueError: opt[k] = v
    s, n = gen(opt)
    open(name, "w").write(s)
    print("wrote", name, "nops inserted", n, "lines", s.count("\n"))
```
